```python
import torch

def _softmax(x, axis=-1):
    return torch.softmax(x, dim=axis)
def _gelu(x):
    return torch.nn.functional.gelu(x, approximate="tanh")
def _silu(x):
    return torch.nn.functional.silu(x)
def _sigmoid(x):
    return torch.sigmoid(x)
def _layernorm(x, axis=-1, eps=1e-5):
    m = x.mean(dim=axis, keepdim=True)
    v = x.var(dim=axis, keepdim=True, unbiased=False)
    return (x - m) / torch.sqrt(v + eps)
def _scatter_add(tgt, idx, src, axis=0):
    return tgt.clone().index_add_(axis, idx, src)
def _segment_sum(src, seg, n):
    out = torch.zeros((n,) + src.shape[1:], dtype=src.dtype)
    return out.index_add_(0, seg, src)
def _pad(x, pw):
    flat = tuple(v for pair in reversed(pw) for v in pair)
    return torch.nn.functional.pad(x, flat)

kernel_name = 'standalone__mha_block_cached__near_ridge'

def setup_inputs():

    _w = (lambda a: (lambda t: t.to(torch.bfloat16) if t.is_floating_point() else t)(torch.as_tensor(a)))
    B, Sq, D = 16, 192, 512
    H, Sk, Dh = 32, 512, 128
    return {
        "x": _w((lambda *s: torch.randn(*s, dtype=torch.bfloat16) * 0.8)(B, Sq, D)),
        "k_cache": _w((lambda *s: torch.randn(*s, dtype=torch.bfloat16) * 0.8)(B, H, Sk, Dh)),
        "v_cache": _w((lambda *s: torch.randn(*s, dtype=torch.bfloat16) * 0.05)(B, H, Sk, Dh)),
        "wq": _w((lambda *s: torch.randn(*s, dtype=torch.bfloat16) * 0.8)(D, H * Dh) * (D ** -0.5)),
        "wo": _w((lambda *s: torch.randn(*s, dtype=torch.bfloat16) * 0.05)(H * Dh, D) * ((H * Dh) ** -0.5)),
    }

def reference(x, k_cache, v_cache, wq, wo):
    B, Sq, D = x.shape
    H, Dh = 32, 128
    q = (lambda x, *d: x.permute(*d))((x @ wq).reshape(B, Sq, H, Dh), 0, 2, 1, 3)
    scores = torch.einsum("bhqd,bhkd->bhqk", q, k_cache) * (Dh ** -0.5)
    p = _softmax(scores, axis=-1)
    o = torch.einsum("bhqk,bhkd->bhqd", p, v_cache)
    return (lambda x, *d: x.permute(*d))(o, 0, 2, 1, 3).reshape(B, Sq, H * Dh) @ wo
```

```python
import re

REG_RE = re.compile(r'^(-?\|?)([vas])(?:(\d+)|\[(\d+):(\d+)\])\|?$')

def regs_of(tok):
    tok = tok.strip()
    if tok in ('vcc', 'exec'):
        return [tok]
    if tok in ('vcc_lo', 'vcc_hi'):
        return ['vcc']
    if tok in ('exec_lo', 'exec_hi'):
        return ['exec']
    if tok == 'm0':
        return ['m0']
    m = REG_RE.match(tok)
    if not m:
        return []
    f = m.group(2)
    if m.group(3) is not None:
        return [f + m.group(3)]
    return [f + str(i) for i in range(int(m.group(4)), int(m.group(5)) + 1)]

def keep(q, n):
    return q[max(0, len(q) - n):] if n else []

TRANS = ('v_exp_f32', 'v_log_f32', 'v_rcp_f32', 'v_rsq_f32', 'v_sqrt_f32', 'v_sin_f32', 'v_cos_f32')

class Ins:
    __slots__ = ('text', 'kind', 'wr', 'rd', 'mn', 'srcc', 'srcab', 'lw', 'lr', 'pre', 'comment', 'data')
    def __init__(self, text, lw=(), lr=(), comment=None):
        self.text = text.strip()
        self.lw = tuple(lw)
        self.lr = tuple(lr)
        self.pre = {}
        self.comment = comment
        self.srcc = []; self.srcab = []; self.data = []
        self.parse()
    def parse(self):
        t = self.text
        self.wr = []; self.rd = []
        if t.endswith(':'):
            self.kind = 'label'; self.mn = ''; return
        if t.startswith('.') or t.startswith(';') or not t:
            self.kind = 'dir'; self.mn = ''; return
        parts = t.split(None, 1)
        mn = parts[0]; self.mn = mn
        rest = parts[1] if len(parts) > 1 else ''
        ops = [o.strip() for o in rest.split(',')] if rest else []
        mods = ''
        if ops:
            sp = ops[-1].split(None, 1)
            if len(sp) > 1:
                ops[-1] = sp[0]; mods = sp[1]
        R = [regs_of(o) for o in ops]
        flat = lambda xs: [r for x in xs for r in x]
        if mn.startswith('v_mfma'):
            self.kind = 'mfma8' if '32x32' in mn else 'mfma4'
            self.wr = R[0]; self.srcab = R[1] + R[2]; self.srcc = R[3]; self.rd = self.srcab + self.srcc
        elif mn.startswith('ds_read'):
            self.kind = 'ds_r'; self.wr = R[0]; self.rd = flat(R[1:])
        elif mn.startswith('ds_write'):
            self.kind = 'ds_w'; self.rd = flat(R)
        elif mn.startswith('ds_'):
            self.kind = 'ds_r'; self.wr = R[0]; self.rd = flat(R[1:])
        elif mn.startswith('buffer_load') or mn.startswith('global_load'):
            if re.search(r'\blds\b', mods) or '_lds_' in mn:
                self.kind = 'dma'; self.rd = flat(R) + ['m0']
            else:
                self.kind = 'vm_ld'; self.wr = R[0]; self.rd = flat(R[1:])
        elif mn.startswith('buffer_store') or mn.startswith('buffer_atomic'):
            self.kind = 'vm_st'; self.rd = flat(R); self.data = R[0] if len(R[0]) >= 3 else []
        elif mn.startswith('global_store') or mn.startswith('global_atomic'):
            self.kind = 'vm_st'; self.rd = flat(R); self.data = R[1] if len(R[1]) >= 3 else []
        elif mn in ('buffer_wbl2', 'buffer_inv'):
            self.kind = 'vm_st'
        elif mn.startswith('v_'):
            self.kind = 'trans' if any(mn.startswith(x) for x in TRANS) else 'valu'
            if mn.startswith('v_permlane'):
                self.wr = R[0] + R[1]; self.rd = R[0] + R[1]
            elif mn.startswith('v_cmp'):
                self.wr = R[0]; self.rd = flat(R[1:])
            elif mn.startswith('v_fmac') or mn.startswith('v_writelane') or mn.startswith('v_dot2c'):
                self.wr = R[0]; self.rd = flat(R)
            elif mn.startswith('v_add_co') or mn.startswith('v_addc_co') or mn.startswith('v_sub_co'):
                self.wr = R[0] + R[1]; self.rd = flat(R[2:])
            elif mn == 'v_nop':
                pass
            else:
                self.wr = R[0]; self.rd = flat(R[1:])
        elif mn == 's_waitcnt':
            self.kind = 'wait'
        elif mn == 's_nop':
            self.kind = 'nop'
        elif mn == 's_barrier':
            self.kind = 'barrier'
        elif mn.startswith('s_cbranch') or mn == 's_branch' or mn == 's_endpgm':
            self.kind = 'branch'
        elif mn.startswith('s_load') or mn.startswith('s_mem') or mn.startswith('s_buffer_load'):
            self.kind = 'smem'; self.wr = R[0]; self.rd = flat(R[1:])
        elif mn.startswith('s_cmp') or mn.startswith('s_bitcmp'):
            self.kind = 'salu'; self.rd = flat(R); self.wr = ['scc']
        elif mn in ('s_setprio', 's_sleep', 's_sethalt'):
            self.kind = 'salu'
        elif mn.startswith('s_'):
            self.kind = 'salu'; self.wr = R[0]; self.rd = flat(R[1:])
            if 'saveexec' in mn: self.wr = self.wr + ['exec']
        else:
            raise ValueError('unknown instr ' + t)

class Prog:
    def __init__(self):
        self.items = []
        self.stack = [self.items]
    def I(self, text, **kw):
        for line in text.strip('\n').split('\n'):
            line = line.split(';')[0].strip() if not line.strip().startswith(';') else ''
            if not line: continue
            self.stack[-1].append(Ins(line, **kw))
    def add(self, ins):
        self.stack[-1].append(ins)
    def loop_begin(self, trips):
        body = []
        self.stack[-1].append(['loop', trips, body])
        self.stack.append(body)
    def loop_end(self):
        self.stack.pop()
    def reset_point(self):
        self.stack[-1].append(Ins('; reset'))
    def trace(self, items=None, maxtrips=3):
        items = self.items if items is None else items
        for it in items:
            if isinstance(it, list):
                for _ in range(min(it[1], maxtrips)):
                    yield from self.trace(it[2], maxtrips)
            else:
                yield it
    def flat(self, items=None):
        items = self.items if items is None else items
        for it in items:
            if isinstance(it, list):
                yield from self.flat(it[2])
            else:
                yield it
    def resolve(self, verbose=False):
        for it in range(10):
            changed = self._pass()
            if not changed: break
        else:
            raise RuntimeError('resolve did not converge')
    def _pass(self):
        changed = False
        lq = []
        vq = []
        hist = []
        def dist_to(pred):
            d = 0
            for ins, st in reversed(hist):
                if ins is not None and pred(ins): return d
                d += st
                if d > 24: return None
            return None
        for ins in self.trace():
            k = ins.kind
            if k in ('label', 'dir'): continue
            touched = set(ins.rd) | set(ins.wr)
            need_l = None; need_v = None
            for idx, (w, lr, sm) in enumerate(lq):
                if (touched & set(w)) or (set(ins.lw) & set(lr)):
                    n = 0 if any(x[2] for x in lq) else len(lq) - 1 - idx
                    need_l = n if need_l is None else min(need_l, n)
            for idx, (w, lw) in enumerate(vq):
                if (touched & set(w)) or (set(ins.lr) & set(lw)):
                    n = len(vq) - 1 - idx
                    need_v = n if need_v is None else min(need_v, n)
            if need_l is not None:
                need_l = min(need_l, 15)
                if ins.pre.get('lgkm', 99) > need_l: ins.pre['lgkm'] = need_l; changed = True
            if need_v is not None:
                need_v = min(need_v, 63)
                if ins.pre.get('vm', 99) > need_v: ins.pre['vm'] = need_v; changed = True
            if 'lgkm' in ins.pre or 'vm' in ins.pre:
                if 'lgkm' in ins.pre: lq = keep(lq, ins.pre['lgkm'])
                if 'vm' in ins.pre: vq = keep(vq, ins.pre['vm'])
                hist.append((None, 1))
            need = 0
            def req(pred, states):
                nonlocal need
                d = dist_to(pred)
                if d is not None and d < states: need = max(need, states - d)
            rd = set(ins.rd); wr = set(ins.wr)
            isvalu = k in ('valu', 'trans')
            VAL = ('valu', 'trans')
            if k in ('mfma8', 'mfma4'):
                req(lambda p: p.kind in VAL and set(p.wr) & rd, 2)
                ab = set(ins.srcab); c = set(ins.srcc)
                req(lambda p: p.kind == 'mfma8' and set(p.wr) & ab, 12)
                req(lambda p: p.kind == 'mfma4' and set(p.wr) & ab, 8)
                req(lambda p: p.kind == 'mfma8' and set(p.wr) & c and not (p.wr == ins.srcc and k == 'mfma8'), 10)
                req(lambda p: p.kind == 'mfma4' and set(p.wr) & c and not (p.wr == ins.srcc and k == 'mfma4'), 6)
                req(lambda p: p.kind == 'mfma8' and set(p.wr) & wr and not (p.wr == ins.srcc), 10)
                req(lambda p: p.kind in VAL and 'exec' in p.wr, 4)
            if isvalu or k in ('ds_r', 'ds_w', 'vm_ld', 'vm_st', 'dma'):
                req(lambda p: p.kind == 'mfma8' and set(p.wr) & (rd | wr), 12)
                req(lambda p: p.kind == 'mfma4' and set(p.wr) & (rd | wr), 8)
            if isvalu:
                req(lambda p: p.kind == 'mfma8' and set(p.srcc) & wr, 7)
                req(lambda p: p.kind == 'mfma4' and set(p.srcc) & wr, 3)
                if k != 'trans':
                    req(lambda p: p.kind == 'trans' and set(p.wr) & rd, 1)
                if ins.mn.startswith('v_permlane'):
                    req(lambda p: p.kind in VAL and set(p.wr) & rd, 2)
                if ins.mn.startswith('v_readfirstlane') or ins.mn.startswith('v_readlane'):
                    req(lambda p: p.kind in VAL and set(p.wr) & rd, 1)
                srd_ = {r for r in rd if r[0] == 's' or r == 'vcc'}
                if ins.mn.startswith('v_cndmask') and len(ins.text.split(',')) == 3: srd_.add('vcc')
                req(lambda p: p.kind in VAL and set(p.wr) & srd_, 2)
                req(lambda p: p.kind == 'vm_st' and set(p.data) & wr, 2)
                if 'dpp' in ins.text or 'row_' in ins.text or 'quad_perm' in ins.text:
                    req(lambda p: p.kind in VAL and set(p.wr) & rd, 2)
            if k in ('ds_r', 'vm_ld'):
                req(lambda p: p.kind == 'vm_st' and set(p.data) & wr, 1)
            if k in ('vm_ld', 'vm_st', 'dma'):
                sr = {r for r in rd if r[0] == 's'}
                req(lambda p: p.kind in VAL and set(p.wr) & sr, 5)
            if k == 'dma':
                req(lambda p: p.kind == 'salu' and 'm0' in p.wr, 1)
            if k in ('salu', 'branch'):
                sr = {r for r in rd if r[0] == 's' or r == 'vcc'}
                req(lambda p: p.kind in VAL and set(p.wr) & sr, 2)
                if 'vcc' in ins.mn: req(lambda p: p.kind in VAL and 'vcc' in p.wr, 5)
            have = ins.pre.get('nop', 0)
            if need > have:
                ins.pre['nop'] = need; changed = True; have = need
            if have: hist.append((None, have))
            if k == 'wait':
                m = re.search(r'lgkmcnt\((\d+)\)', ins.text)
                if m:
                    lq = keep(lq, int(m.group(1)))
                m = re.search(r'vmcnt\((\d+)\)', ins.text)
                if m:
                    vq = keep(vq, int(m.group(1)))
            elif k == 'ds_r': lq.append((ins.wr, ins.lr, False))
            elif k == 'ds_w': lq.append(((), (), False))
            elif k == 'smem': lq.append((ins.wr, (), True))
            elif k == 'vm_ld': vq.append((ins.wr, ()))
            elif k == 'vm_st': vq.append(((), ()))
            elif k == 'dma': vq.append(((), ins.lw))
            if len(vq) > 63: raise RuntimeError('vmcnt overflow at ' + ins.text)
            st = 1
            if k == 'nop': st = int(ins.text.split()[1], 0) + 1
            hist.append((ins, st))
            if len(hist) > 64: hist = hist[-40:]
        return changed
    def emit(self):
        out = []
        stats = {'nop': 0, 'wait': 0, 'n': 0}
        for ins in self.flat():
            if ins.kind == 'label':
                out.append(ins.text); continue
            w = []
            if 'vm' in ins.pre: w.append('vmcnt(%d)' % ins.pre['vm'])
            if 'lgkm' in ins.pre: w.append('lgkmcnt(%d)' % ins.pre['lgkm'])
            if w: out.append('  s_waitcnt ' + ' '.join(w)); stats['wait'] += 1
            n = ins.pre.get('nop', 0)
            while n > 0:
                c = min(n, 16); out.append('  s_nop %d' % (c - 1)); n -= c; stats['nop'] += c
            out.append('  ' + ins.text); stats['n'] += 1
        return '\n'.join(out) + '\n', stats
```

```python
import sys, math, struct
from asmlib import *
NAME = "standalone__mha_block_cached__near_ridge"
OPT = dict(stamp=0)
for a in sys.argv[2:]:
    k, v = a.split('='); OPT[k] = int(v)

def f2u(x): return struct.unpack('<I', struct.pack('<f', x))[0]
SCALE = math.log2(math.e) / math.sqrt(128.0)

XBLK = 1056; XSZ = 24 * XBLK
WQSZ = 32768
BUFSZ = XSZ + WQSZ
BUFA = 163840 - 2 * BUFSZ
KT = 8 * XBLK
KSL = 2 * KT
VSL = 16384
SLOT = KSL + VSL
PAIR = 2 * SLOT
O_WS_OFF = 0x1000000
O_BYTES = 16 * 192 * 4096 * 2

def srd(p, d, lo, hi, size):
    p.I(f"s_mov_b32 s{d}, s{lo}\ns_and_b32 s{d+1}, s{hi}, 0xffff\ns_mov_b32 s{d+2}, {size}\ns_mov_b32 s{d+3}, 0x00020000")

def stamp(p, idx):
    if OPT['stamp']:
        p.I(f"s_memrealtime s[78:79]\ns_waitcnt lgkmcnt(0)\ns_mov_b32 s{80+idx}, s78")

def stamp_out(p, nst, base_off, lane):
    if not OPT['stamp']: return
    p.I(f"""
s_mov_b32 s72, s18
s_and_b32 s73, s19, 0xffff
s_mov_b32 s74, 0x1000000
s_mov_b32 s75, 0x00020000
s_lshl_b32 s76, s2, 2
s_add_u32 s76, s76, s3
s_lshl_b32 s76, s76, 6
s_add_u32 s76, s76, {base_off}
v_mov_b32 v1, 0
""")
    for i in range(nst):
        p.I(f"v_mov_b32 v2, s{80+i}\nbuffer_store_dword v2, v1, s[72:75], s76 offen offset:{4*i}")

def interleave(p, mfmas, slots):
    for g, m in enumerate(mfmas):
        p.I(m)
        for f in slots.get(g, []):
            if isinstance(f, Ins): p.add(f)
            else: p.I(f)

def gen_k1():
    p = Prog()
    I = p.I
    vX, vW0, vW1, vOX, vOW, vOK, vOV, vK, vV0, vV1 = range(224, 234)
    vL = [234, 235, 236]; vM = [237, 238, 239]
    vT = list(range(240, 250)); vLane = 250
    S = [0, 48]; NEGM = 96; FR = 144; QV = 192
    def qfrag(t, ksd):
        qi = ksd * 3 + t
        return f"a[{192+qi*4}:{195+qi*4}]" if qi < 16 else f"v[{QV+(qi-16)*4}:{QV+(qi-16)*4+3}]"
    I("s_cmp_ge_u32 s2, 256\ns_cbranch_scc1 L1_end")
    I("s_load_dwordx16 s[4:19], s[0:1], 0")
    stamp(p, 0)
    I(f"""
v_lshrrev_b32 v1, 6, v0
v_and_b32 v{vLane}, 63, v0
v_readfirstlane_b32 s3, v1
s_and_b32 s66, s2, 7
s_lshr_b32 s67, s2, 3
s_and_b32 s48, s66, 1
s_lshl_b32 s48, s48, 3
s_and_b32 s68, s67, 7
s_add_u32 s48, s48, s68
s_lshr_b32 s49, s66, 1
s_lshl_b32 s49, s49, 2
s_lshr_b32 s69, s67, 3
s_add_u32 s49, s49, s69
s_lshl_b32 s52, s69, 1
s_add_u32 s52, s52, s68
s_and_b32 s52, s52, 7
""")
    L = f"v{vLane}"
    t0, t1, t2, t3, t4 = [f"v{x}" for x in vT[:5]]
    I(f"""
v_lshrrev_b32 {t0}, 3, {L}
v_and_b32 {t1}, 7, {L}
v_bfe_u32 {t2}, {L}, 4, 1
v_xor_b32 {t3}, {t1}, {t2}
v_lshlrev_b32 {t3}, 4, {t3}
v_lshlrev_b32 {t4}, 2, {t2}
v_xor_b32 {t4}, {t1}, {t4}
v_lshlrev_b32 {t4}, 4, {t4}
v_lshl_add_u32 v{vOX}, {t0}, 10, {t3}
v_lshl_add_u32 v{vOW}, {t0}, 13, {t4}
v_lshl_add_u32 v{vOK}, {t0}, 8, {t3}
v_lshl_add_u32 v{vOV}, {t0}, 8, {t4}
s_lshl_b32 s66, s3, 11
v_add_u32 v{vOK}, s66, v{vOK}
v_add_u32 v{vOV}, s66, v{vOV}
s_waitcnt lgkmcnt(0)
""")
    srd(p, 20, 4, 5, 16 * 192 * 1024)
    srd(p, 24, 10, 11, 512 * 8192)
    I(f"""
s_lshl_b32 s66, s48, 5
s_lshl_b32 s67, s49, 1
s_add_u32 s66, s66, s67
s_lshl_b32 s66, s66, 17
s_add_u32 s28, s6, s66
s_addc_u32 s29, s7, 0
s_and_b32 s29, s29, 0xffff
s_add_u32 s32, s28, 0x20000
s_addc_u32 s33, s29, 0
s_add_u32 s36, s8, s66
s_addc_u32 s37, s9, 0
s_and_b32 s37, s37, 0xffff
s_add_u32 s40, s36, 0x20000
s_addc_u32 s41, s37, 0
s_mov_b32 s30, 0x20000
s_mov_b32 s34, 0x20000
s_mov_b32 s38, 0x20000
s_mov_b32 s42, 0x20000
s_mov_b32 s31, 0x00020000
s_mov_b32 s35, 0x00020000
s_mov_b32 s39, 0x00020000
s_mov_b32 s43, 0x00020000
s_add_u32 s44, s18, {O_WS_OFF}
s_addc_u32 s45, s19, 0
s_and_b32 s45, s45, 0xffff
s_mov_b32 s46, {O_BYTES}
s_mov_b32 s47, 0x00020000
s_mul_i32 s50, s48, {192*1024}
s_mul_i32 s66, s3, {48*1024}
s_add_u32 s50, s50, s66
s_lshl_b32 s51, s49, 9
s_lshl_b32 s66, s3, 7
s_add_u32 s51, s51, s66
s_mul_i32 s57, s3, {6*XBLK}
s_add_u32 s57, s57, {BUFA}
s_lshl_b32 s58, s3, 10
s_add_u32 s58, s58, {BUFA + XSZ}
s_mul_i32 s61, s3, {XBLK}
s_lshl_b32 s62, s3, 10
s_add_u32 s62, s62, {KSL}
s_mov_b32 s64, {f2u(SCALE):#x}
s_mov_b32 s65, {f2u(SCALE):#x}
""")
    I(f"""
s_add_u32 s70, s57, {BUFSZ}
s_xor_b32 s70, s70, s57
s_add_u32 s71, s58, {BUFSZ}
s_xor_b32 s71, s71, s58
""")
    def stage_dma():
        out = []
        out.append([f"s_lshl_b32 s54, s52, 7", "s_add_u32 s54, s54, s50", f"s_lshl_b32 s55, s52, 19", "s_add_u32 s55, s55, s51"])
        for j in range(6):
            out.append([f"s_add_u32 m0, s57, {j*XBLK}", f"s_add_u32 s56, s54, {j*8192}",
                        f"buffer_load_dwordx4 v{vOX}, s[20:23], s56 offen lds"])
        for rg in range(8):
            out.append([f"s_add_u32 m0, s58, {rg*4096}", f"s_add_u32 s56, s55, {rg*65536}",
                        f"buffer_load_dwordx4 v{vOW}, s[24:27], s56 offen lds"])
        out.append(["s_add_u32 s52, s52, 1", "s_and_b32 s52, s52, 7", "s_xor_b32 s57, s57, s70", "s_xor_b32 s58, s58, s71"])
        return out
    def k_dma(dstreg, dstoff, soff):
        out = []
        for hd in range(2):
            for half in range(2):
                out.append([f"s_add_u32 m0, {dstreg}, {dstoff + hd*KT + half*(4*XBLK-128)}",
                            f"buffer_load_dwordx4 v{vOK}, s[{28+4*hd}:{31+4*hd}], {soff} offen offset:{half*128} nt lds"])
        return out
    def v_dma(dstreg, dstoff, soff):
        out = []
        for hd in range(2):
            for half in range(2):
                out.append([f"s_add_u32 m0, {dstreg}, {dstoff + hd*8192 + half*(4096-128)}",
                            f"buffer_load_dwordx4 v{vOV}, s[{36+4*hd}:{39+4*hd}], {soff} offen offset:{half*128} nt lds"])
        return out
    def emit_groups(gs):
        for g in gs:
            for x in g: I(x)
    emit_groups(stage_dma())
    emit_groups(stage_dma())
    I("s_mov_b32 s59, 0")
    emit_groups(k_dma("s61", 0, "s59") + v_dma("s62", 0, "s59"))
    I(f"""
s_lshr_b32 s66, s3, 1
s_and_b32 s67, s3, 1
v_and_b32 {t0}, 31, {L}
v_lshrrev_b32 {t1}, 3, {t0}
v_mul_u32_u24 {t1}, {XBLK}, {t1}
v_and_b32 {t2}, 7, {t0}
v_lshl_add_u32 {t1}, {t2}, 7, {t1}
v_lshrrev_b32 {t2}, 5, {L}
v_bfe_u32 {t3}, {L}, 1, 1
v_xor_b32 {t3}, {t2}, {t3}
v_lshl_add_u32 {t1}, {t3}, 4, {t1}
s_mul_i32 s68, s67, {12*XBLK}
s_add_u32 s68, s68, {BUFA}
v_add_u32 v{vX}, s68, {t1}
s_mul_i32 s68, s66, {KT}
v_add_u32 v{vK}, s68, {t1}
v_bfe_u32 {t0}, {L}, 2, 2
v_lshlrev_b32 {t0}, 7, {t0}
v_bfe_u32 {t1}, {L}, 3, 1
v_lshl_add_u32 {t0}, {t1}, 6, {t0}
v_bfe_u32 {t1}, {L}, 4, 1
v_lshl_add_u32 {t0}, {t1}, 5, {t0}
v_and_b32 {t1}, 3, {L}
v_lshl_add_u32 {t3}, {t1}, 3, {t0}
v_lshl_add_u32 {t3}, {t2}, 9, {t3}
s_lshl_b32 s68, s66, 13
s_add_u32 s68, s68, {KSL}
v_add_u32 v{vV0}, s68, {t3}
v_xor_b32 v{vV1}, 64, v{vV0}
v_and_b32 {t1}, 1, {L}
v_lshl_add_u32 {t0}, {t1}, 4, {t0}
v_bfe_u32 {t1}, {L}, 1, 1
v_lshl_add_u32 {t0}, {t1}, 3, {t0}
v_lshl_add_u32 {t0}, {t2}, 12, {t0}
s_lshl_b32 s68, s66, 11
s_add_u32 s68, s68, {BUFA + XSZ}
v_add_u32 v{vW0}, s68, {t0}
v_xor_b32 v{vW1}, 64, v{vW0}
s_mov_b32 s63, {BUFSZ}
""")
    for r in range(192): I(f"v_mov_b32 v{r}, 0")
    for r in range(192): I(f"v_accvgpr_write_b32 a{r}, 0")
    for r in vL: I(f"v_mov_b32 v{r}, 0")
    def qp_reads(ks):
        par = ks & 1
        out = []
        for t in range(3):
            b = QV + 12 * par + 4 * t
            out.append(f"ds_read_b128 v[{b}:{b+3}], v{vX} offset:{t*4*XBLK + ks*32}")
        for dt in range(4):
            for sec in range(2):
                b = 192 + 16 * par + 4 * dt + 2 * sec
                out.append(f"ds_read_b64_tr_b16 a[{b}:{b+1}], v{vW1 if dt & 1 else vW0} offset:{ks*8192 + (dt>>1)*1024 + sec*512}")
        return [out[3], out[4], out[0], out[1], out[2], out[5], out[6], out[7], out[8], out[9], out[10]]
    def qp_mfmas():
        ms = []
        for ks in range(4):
            par = ks & 1
            for dt in range(4):
                for t in range(3):
                    acc = (dt * 3 + t) * 16
                    ms.append(f"v_mfma_f32_32x32x16_bf16 v[{acc}:{acc+15}], a[{192+16*par+4*dt}:{195+16*par+4*dt}], v[{QV+12*par+4*t}:{QV+12*par+4*t+3}], v[{acc}:{acc+15}]")
        return ms
    def qp_stage(carry, post_groups, vmwait, next_reads):
        slots = {}
        def put(g, x): slots.setdefault(g, []).extend(x if isinstance(x, list) else [x])
        for ks in range(3):
            for i, r in enumerate(qp_reads(ks + 1)): put(ks * 12 + i, r)
        for i, g in enumerate(carry): put(1 + 2 * i, g)
        w = "s_waitcnt lgkmcnt(0)" + (f" vmcnt({vmwait})" if vmwait is not None else "")
        put(35, [w, "s_barrier"])
        if next_reads:
            put(35, [f"v_add_u32 v{vX}, s63, v{vX}", f"v_add_u32 v{vW0}, s63, v{vW0}", f"v_add_u32 v{vW1}, s63, v{vW1}", "s_sub_u32 s63, 0, s63"])
            for i, r in enumerate(qp_reads(0)): put(36 + i, r)
        n_now = 6
        for i, g in enumerate(post_groups[:n_now]): put(36 + 2 * i, g)
        interleave(p, qp_mfmas(), slots)
        return post_groups[n_now:]
    I("s_waitcnt vmcnt(22)\ns_barrier")
    stamp(p, 1)
    for r in qp_reads(0): I(r)
    carry = qp_stage([], stage_dma(), 0, True)
    I("s_mov_b32 s53, 0")
    I("L1_qp:")
    p.loop_begin(5)
    c2 = qp_stage(carry, stage_dma(), 0, True)
    I("s_add_u32 s53, s53, 1\ns_cmp_lt_u32 s53, 5\ns_cbranch_scc1 L1_qp")
    p.loop_end()
    kv12 = [["s_mov_b32 s59, 8192", "s_mov_b32 s60, 16384"]] + k_dma("s61", SLOT, "s59") + v_dma("s62", SLOT, "s59") + k_dma("s61", 2*SLOT, "s60") + v_dma("s62", 2*SLOT, "s60")
    c3 = qp_stage(carry, kv12, 0, True)
    kv3 = [["s_mov_b32 s59, 24576"]] + k_dma("s61", 3*SLOT, "s59")
    c4 = qp_stage(c3, kv3, None, False)
    emit_groups(c4)
    stamp(p, 2)
    for dt in range(4):
        for t in range(3):
            acc = (dt * 3 + t) * 16
            for pr in range(8):
                I(f"v_pk_mul_f32 v[{acc+2*pr}:{acc+2*pr+1}], v[{acc+2*pr}:{acc+2*pr+1}], s[64:65]")
            for pr in range(8):
                ksd = 2 * dt + (pr >> 2); qi = ksd * 3 + t
                if qi < 16:
                    I(f"v_cvt_pk_bf16_f32 v{acc+2*pr}, v{acc+2*pr}, v{acc+2*pr+1}")
                else:
                    I(f"v_cvt_pk_bf16_f32 v{QV+(qi-16)*4+(pr&3)}, v{acc+2*pr}, v{acc+2*pr+1}")
            for pr in range(8):
                ksd = 2 * dt + (pr >> 2); qi = ksd * 3 + t
                if qi < 16:
                    I(f"v_accvgpr_write_b32 a{192+qi*4+(pr&3)}, v{acc+2*pr}")
    stamp(p, 3)
    def fr(n): b = FR + (n % 8) * 4; return b
    def k_read(ks, slotoff): b = fr(ks); return f"ds_read_b128 v[{b}:{b+3}], v{vK} offset:{slotoff + (ks>>2)*4*XBLK + (ks&3)*32}"
    def v_read(j, sec, slotoff):
        ks, dt = j >> 2, j & 3
        b = fr(8 + j) + 2 * sec
        return f"ds_read_b64_tr_b16 v[{b}:{b+1}], v{vV1 if dt & 1 else vV0} offset:{slotoff + ((dt>>1)*4 + 2*ks + sec)*1024}"
    def s_mfmas(buf, czero=False):
        ms = []
        for ks in range(8):
            for t in range(3):
                d = f"v[{buf+t*16}:{buf+t*16+15}]"
                c = d if ks else ("0" if czero else f"v[{NEGM+t*16}:{NEGM+t*16+15}]")
                ms.append(f"v_mfma_f32_32x32x16_bf16 {d}, v[{fr(ks)}:{fr(ks)+3}], {qfrag(t, ks)}, {c}")
        return ms
    def pv_mfmas(buf):
        ms = []
        for j in range(8):
            ks, dt = j >> 2, j & 3
            for t in range(3):
                o = (dt * 3 + t) * 16
                b = buf + t * 16 + 8 * ks
                ms.append(f"v_mfma_f32_32x32x16_bf16 a[{o}:{o+15}], v[{fr(8+j)}:{fr(8+j)+3}], v[{b}:{b+3}], a[{o}:{o+15}]")
        return ms
    def ereg(buf, e):
        h, t, j = e // 24, (e % 24) // 8, e % 8
        return buf + t * 16 + 8 * h + j, t
    def sm_ops(buf, e):
        out = []
        if e < 48:
            r, t = ereg(buf, e); out.append(f"v_exp_f32 v{r}, v{r}")
        if 1 <= e <= 48:
            r, t = ereg(buf, e - 1); out.append(f"v_add_f32 v{vL[t]}, v{vL[t]}, v{r}")
        if e >= 2 and e % 2 == 0 and e <= 48:
            r, t = ereg(buf, e - 2); base = r - ((e - 2) % 8)
            out.append(f"v_cvt_pk_bf16_f32 v{base + ((e-2) % 8)//2}, v{r}, v{r+1}")
        return out
    for ks in range(8): I(k_read(ks, 0))
    for m in s_mfmas(S[0], czero=True): I(m)
    I("s_waitcnt vmcnt(16) lgkmcnt(0)\ns_barrier")
    for ks in range(3): I(k_read(ks, SLOT))
    for t in range(3):
        b = S[0] + t * 16
        I(f"v_max3_f32 v{vM[t]}, v{b}, v{b+1}, v{b+2}")
        for r in range(3, 15, 2): I(f"v_max3_f32 v{vM[t]}, v{vM[t]}, v{b+r}, v{b+r+1}")
        I(f"v_max_f32 v{vM[t]}, v{vM[t]}, v{b+15}")
        I(f"v_mov_b32 v{vT[t]}, v{vM[t]}")
    for t in range(3):
        I(f"v_permlane32_swap_b32 v{vT[t]}, v{vM[t]}")
    for t in range(3):
        I(f"v_max_f32 v{vM[t]}, v{vM[t]}, v{vT[t]}")
    for t in range(3):
        for r in range(16): I(f"v_sub_f32 v{NEGM+t*16+r}, 0, v{vM[t]}")
        for r in range(16): I(f"v_sub_f32 v{S[0]+t*16+r}, v{S[0]+t*16+r}, v{vM[t]}")
    for e in range(21):
        for x in sm_ops(S[0], e): I(x)
    I(f"""
s_mov_b32 s59, {4*8192}
s_mov_b32 s60, {3*8192}
s_add_u32 s67, s62, {PAIR}
s_xor_b32 s69, s67, s62
s_add_u32 s66, s61, {PAIR}
s_xor_b32 s68, s66, s61
s_mov_b32 s63, {PAIR}
s_mov_b32 s70, {PAIR}
s_mov_b32 s53, 0
""")
    stamp(p, 4)
    def attn_iter(par, first=False, dma=True, vmwait=16, last=False):
        cur, prev = S[par ^ 1], S[par]
        slots = {}
        def put(g, x): slots.setdefault(g, []).extend(x if isinstance(x, list) else [x])
        kslot = SLOT if par == 0 else 0
        for ks in range(3, 8): put(1 + 3 * (ks - 3), k_read(ks, kslot))
        vslot = par * SLOT
        for j in range(8):
            put(15 + 3 * j, v_read(j, 0, vslot)); put(16 + 3 * j, v_read(j, 1, vslot))
        for g in range(48):
            if g <= 27: put(g, sm_ops(prev, g + 21) if g < 27 else sm_ops(prev, 48))
            if g >= 27: put(g, sm_ops(cur, g - 27))
        if dma:
            if par == 0:
                gs = k_dma("s61", 0, "s59") + ([] if first else v_dma("s67", SLOT, "s60"))
            else:
                gs = k_dma("s61", SLOT, "s59") + v_dma("s62", 0, "s60")
            gaps = [0, 2, 6, 8, 12, 14, 20, 26]
            for g, x in zip(gaps, gs): put(g, x)
            put(32, ["s_add_u32 s59, s59, 8192", "s_add_u32 s60, s60, 8192"])
        put(41, [f"s_waitcnt vmcnt({vmwait}) lgkmcnt(0)", "s_barrier"])
        if par == 0:
            put(40, [f"v_add_u32 v{vK}, s63, v{vK}", "s_sub_u32 s63, 0, s63"])
        else:
            put(38, [f"v_add_u32 v{vV0}, s70, v{vV0}"]); put(40, [f"v_add_u32 v{vV1}, s70, v{vV1}", "s_sub_u32 s70, 0, s70"])
            put(44, ["s_xor_b32 s61, s61, s68", "s_xor_b32 s62, s62, s69"]); put(46, ["s_xor_b32 s67, s67, s69"])
        if not last:
            nk = 0 if par == 0 else SLOT
            put(42, k_read(0, nk)); put(44, k_read(1, nk)); put(46, k_read(2, nk))
        interleave(p, s_mfmas(cur) + pv_mfmas(prev), slots)
    I("L1_at:")
    p.loop_begin(7)
    attn_iter(0)
    attn_iter(1)
    I("s_add_u32 s53, s53, 1\ns_cmp_lt_u32 s53, 7\ns_cbranch_scc1 L1_at")
    p.loop_end()
    attn_iter(0, dma=False, vmwait=8, last=True)
    buf = S[1]
    for j in range(3):
        I(v_read(j, 0, SLOT)); I(v_read(j, 1, SLOT))
    for e in range(21, 25):
        for x in sm_ops(buf, e): I(x)
    slots = {}
    def put(g, x): slots.setdefault(g, []).extend(x if isinstance(x, list) else [x])
    for j in range(3, 8):
        put(3 * (j - 3), v_read(j, 0, SLOT)); put(3 * (j - 3) + 1, v_read(j, 1, SLOT))
    for g in range(12):
        put(g, sm_ops(buf, 25 + 2 * g) + sm_ops(buf, 26 + 2 * g))
    interleave(p, pv_mfmas(buf), slots)
    stamp(p, 5)
    for t in range(3): I(f"v_mov_b32 v{vT[t]}, v{vL[t]}")
    for t in range(3): I(f"v_permlane32_swap_b32 v{vT[t]}, v{vL[t]}")
    for t in range(3): I(f"v_add_f32 v{vL[t]}, v{vL[t]}, v{vT[t]}")
    for t in range(3): I(f"v_rcp_f32 v{vT[2*t]}, v{vL[t]}") if False else None
    RC = [240, 242, 244]
    for t in range(3): I(f"v_rcp_f32 v{RC[t]}, v{vL[t]}")
    for t in range(3): I(f"v_mov_b32 v{RC[t]+1}, v{RC[t]}")
    I(f"""
s_lshl_b32 s66, s48, 1
s_and_b32 s67, s3, 1
s_add_u32 s66, s66, s67
s_lshl_b32 s66, s66, 5
s_lshl_b32 s67, s49, 1
s_add_u32 s66, s66, s67
s_lshr_b32 s67, s3, 1
s_add_u32 s66, s66, s67
s_mul_i32 s66, s66, 24576
v_lshlrev_b32 v{vOX}, 4, {L}
""")
    for dt in range(4):
        for t in range(3):
            o = (dt * 3 + t) * 16
            tb = ((dt * 3 + t) % 4) * 16
            for r in range(16): I(f"v_accvgpr_read_b32 v{tb+r}, a{o+r}")
            for pr in range(8): I(f"v_pk_mul_f32 v[{tb+2*pr}:{tb+2*pr+1}], v[{tb+2*pr}:{tb+2*pr+1}], v[{RC[t]}:{RC[t]+1}]")
            ob = 64 + ((dt * 3 + t) % 4) * 8
            for pr in range(8): I(f"v_cvt_pk_bf16_f32 v{ob+pr}, v{tb+2*pr}, v{tb+2*pr+1}")
            for k2 in range(2):
                kk = 2 * dt + k2
                I(f"s_add_u32 s67, s66, {kk*3072}")
                I(f"buffer_store_dwordx4 v[{ob+4*k2}:{ob+4*k2+3}], v{vOX}, s[44:47], s67 offen offset:{t*1024}")
    if OPT['stamp']:
        I("s_waitcnt vmcnt(0)")
        stamp(p, 6)
        stamp_out(p, 7, 0, L)
    I("L1_end:\ns_endpgm")
    return p

def gen_k2():
    p = Prog(); I = p.I
    PD = 8
    WR = 96 * 272
    ACC = 0
    OB = 96
    AF = 192
    vLane, vOO, vOW, vOW2, vA0, vA1, vR, vT0, vT1, vT2 = range(208, 218)
    L = f"v{vLane}"
    I("s_cmp_ge_u32 s2, 256\ns_cbranch_scc1 L2_end")
    I("s_load_dwordx16 s[4:19], s[0:1], 0")
    stamp(p, 0)
    I(f"""
v_mov_b32 v218, v0
v_lshrrev_b32 v1, 6, v0
v_and_b32 {L}, 63, v0
v_readfirstlane_b32 s3, v1
s_and_b32 s48, s2, 7
s_lshl_b32 s48, s48, 2
s_lshr_b32 s49, s2, 6
s_add_u32 s48, s48, s49
s_bfe_u32 s49, s2, 0x30003
v_lshlrev_b32 v{vOO}, 4, {L}
v_lshrrev_b32 v{vT0}, 3, {L}
v_and_b32 v{vT1}, 7, {L}
v_bfe_u32 v{vT2}, {L}, 4, 1
v_lshlrev_b32 v{vT2}, 2, v{vT2}
v_xor_b32 v{vT1}, v{vT1}, v{vT2}
v_lshlrev_b32 v{vT1}, 4, v{vT1}
v_lshl_add_u32 v{vOW}, v{vT0}, 10, v{vT1}
v_add_u32 v{vOW2}, 0x2000, v{vOW}
s_waitcnt lgkmcnt(0)
s_add_u32 s20, s18, {O_WS_OFF}
s_addc_u32 s21, s19, 0
s_and_b32 s21, s21, 0xffff
s_mov_b32 s22, {O_BYTES}
s_mov_b32 s23, 0x00020000
""")
    srd(p, 24, 12, 13, 4096 * 1024)
    srd(p, 28, 14, 15, 16 * 192 * 1024)
    I(f"""
s_mul_i32 s50, s48, 786432
s_mul_i32 s66, s3, 196608
s_add_u32 s50, s50, s66
s_lshl_b32 s51, s49, 7
s_lshl_b32 s66, s3, 20
s_add_u32 s51, s51, s66
s_mul_i32 s52, s3, {WR}
""")
    def loads(slot):
        out = []
        out.append([f"s_add_u32 m0, s52, {slot*2048}"])
        out.append([Ins(f"buffer_load_dwordx4 v{vOW}, s[24:27], s51 offen lds", lw=[f"L{slot}"])])
        out.append([f"s_add_u32 m0, s52, {slot*2048+1024}"])
        out.append([Ins(f"buffer_load_dwordx4 v{vOW2}, s[24:27], s51 offen lds", lw=[f"L{slot}"]), "s_add_u32 s51, s51, 16384"])
        for t in range(3):
            b = OB + slot * 12 + 4 * t
            out.append([f"buffer_load_dwordx4 v[{b}:{b+3}], v{vOO}, s[20:23], s50 offen offset:{t*1024}"])
        out[-1].append("s_add_u32 s50, s50, 3072")
        return out
    def em(x):
        if isinstance(x, Ins): p.add(x)
        else: I(x)
    for s in range(PD):
        for g in loads(s):
            for x in g: em(x)
    I(f"""
v_bfe_u32 v{vT0}, {L}, 2, 2
v_lshlrev_b32 v{vT0}, 7, v{vT0}
v_lshrrev_b32 v{vT1}, 5, {L}
v_lshl_add_u32 v{vT0}, v{vT1}, 9, v{vT0}
v_bfe_u32 v{vT2}, {L}, 3, 1
v_lshl_add_u32 v{vT0}, v{vT2}, 6, v{vT0}
v_bfe_u32 v{vT2}, {L}, 4, 1
v_lshl_add_u32 v{vT0}, v{vT2}, 5, v{vT0}
v_and_b32 v{vT2}, 3, {L}
v_lshl_add_u32 v{vT0}, v{vT2}, 3, v{vT0}
v_add_u32 v{vA0}, s52, v{vT0}
v_xor_b32 v{vA1}, 64, v{vA0}
v_and_b32 v{vT0}, 31, {L}
v_mul_u32_u24 v{vT0}, 272, v{vT0}
v_lshl_add_u32 v{vT0}, v{vT1}, 4, v{vT0}
v_add_u32 v{vR}, s52, v{vT0}
""")
    for r in range(96): I(f"v_mov_b32 v{r}, 0")
    def a_reads(slot):
        par = slot & 1
        out = []
        for ntl in range(2):
            for sec in range(2):
                b = AF + par * 8 + ntl * 4 + sec * 2
                out.append(Ins(f"ds_read_b64_tr_b16 v[{b}:{b+1}], v{vA1 if ntl else vA0} offset:{slot*2048 + sec*1024}", lr=[f"L{slot}"]))
        return out
    for x in a_reads(0): p.add(x)
    def kstep(slot, reload, nxt):
        par = slot & 1
        ms = []
        for ntl in range(2):
            for t in range(3):
                acc = ACC + (ntl * 3 + t) * 16
                a = AF + par * 8 + ntl * 4; b = OB + slot * 12 + 4 * t
                ms.append(f"v_mfma_f32_32x32x16_bf16 v[{acc}:{acc+15}], v[{a}:{a+3}], v[{b}:{b+3}], v[{acc}:{acc+15}]")
        slots = {}
        if nxt:
            rs = a_reads((slot + 1) % PD)
            slots[0] = rs[:2]; slots[1] = rs[2:]
        if reload:
            gs = loads(slot)
            slots.setdefault(3, []).extend(gs[0] + gs[1] + gs[2])
            slots.setdefault(4, []).extend(gs[3])
            slots.setdefault(5, []).extend(gs[4] + gs[5] + gs[6])
        interleave(p, ms, slots)
    I("s_mov_b32 s53, 0\nL2_loop:")
    p.loop_begin(7)
    for s in range(PD): kstep(s, True, True)
    I("s_add_u32 s53, s53, 1\ns_cmp_lt_u32 s53, 7\ns_cbranch_scc1 L2_loop")
    p.loop_end()
    for s in range(PD): kstep(s, False, s < PD - 1)
    stamp(p, 1)
    for ntl in range(2):
        for t in range(3):
            for rq in range(4):
                acc = ACC + (ntl * 3 + t) * 16 + rq * 4
                I(f"ds_write_b128 v{vR}, v[{acc}:{acc+3}] offset:{t*32*272 + ntl*128 + rq*32}")
    I(f"""
v_lshrrev_b32 v{vT0}, 3, v218
v_and_b32 v{vT1}, 7, v218
v_mul_u32_u24 v{vA0}, 272, v{vT0}
v_lshl_add_u32 v{vA0}, v{vT1}, 5, v{vA0}
v_add_u32 v{vA1}, {2*WR}, v{vA0}
v_lshlrev_b32 v{vOO}, 10, v{vT0}
v_lshl_add_u32 v{vOO}, v{vT1}, 4, v{vOO}
s_mul_i32 s50, s48, {96*1024}
s_lshl_b32 s66, s49, 7
s_add_u32 s50, s50, s66
s_waitcnt lgkmcnt(0)
s_barrier
""")
    for it in range(3):
        for wv in range(4):
            for hf in range(2):
                b = 96 + it * 32 + wv * 8 + hf * 4
                I(f"ds_read_b128 v[{b}:{b+3}], v{vA1 if wv >= 2 else vA0} offset:{(wv & 1)*WR + it*32*272 + hf*16}")
    for it in range(3):
        b = 96 + it * 32
        for k in range(0, 8, 2):
            I(f"v_pk_add_f32 v[{b+k}:{b+k+1}], v[{b+k}:{b+k+1}], v[{b+8+k}:{b+9+k}]")
            I(f"v_pk_add_f32 v[{b+16+k}:{b+17+k}], v[{b+16+k}:{b+17+k}], v[{b+24+k}:{b+25+k}]")
        for k in range(0, 8, 2):
            I(f"v_pk_add_f32 v[{b+k}:{b+k+1}], v[{b+k}:{b+k+1}], v[{b+16+k}:{b+17+k}]")
        for k in range(4):
            I(f"v_cvt_pk_bf16_f32 v{it*4+k}, v{b+2*k}, v{b+2*k+1}")
        I(f"s_add_u32 s51, s50, {it*32*1024}")
        I(f"buffer_store_dwordx4 v[{it*4}:{it*4+3}], v{vOO}, s[28:31], s51 offen")
    if OPT['stamp']:
        I("s_waitcnt vmcnt(0)")
        stamp(p, 2)
        stamp_out(p, 3, 0x10000, L)
    I("L2_end:\ns_endpgm")
    return p

def kd(name, vg, acc, sg=102):
    return f""".p2align 6
.amdhsa_kernel {name}
  .amdhsa_next_free_vgpr {vg}
  .amdhsa_next_free_sgpr {sg}
  .amdhsa_accum_offset {acc}
  .amdhsa_group_segment_fixed_size 0
  .amdhsa_kernarg_size 64
  .amdhsa_user_sgpr_count 2
  .amdhsa_user_sgpr_kernarg_segment_ptr 1
  .amdhsa_system_sgpr_workgroup_id_x 1
  .amdhsa_float_denorm_mode_32 3
.end_amdhsa_kernel
"""

def main():
    k1 = gen_k1(); k1.resolve(); t1, s1 = k1.emit()
    k2 = gen_k2(); k2.resolve(); t2, s2 = k2.emit()
    sys.stderr.write(f"k1 {s1}  k2 {s2}\n")
    hdr = open('cdna_kernels/' + NAME + '.s.ref').read().split('\n')
    top = [l for l in hdr if l.startswith(';') and '@launch' not in l and 'Override' not in l and 'grid=ceil' not in l]
    out = '\n'.join(top) + f"""
; @launch kernel=attn_kernel grid=(256,1,1) block=(256,1,1) lds=163840
; @launch kernel=oproj_kernel grid=(256,1,1) block=(256,1,1) lds=104448
.amdgcn_target "amdgcn-amd-amdhsa--gfx950"
.text
.globl attn_kernel
.p2align 8
.type attn_kernel,@function
attn_kernel:
{t1}
.globl oproj_kernel
.p2align 8
.type oproj_kernel,@function
oproj_kernel:
{t2}
.section .rodata,"a"
{kd('attn_kernel', 512, 256)}{kd('oproj_kernel', 224, 224)}"""
    open(sys.argv[1], 'w').write(out)
main()
```

```python
import sys, math, struct
from asmlib import *
NAME = "standalone__mha_block_cached__near_ridge"
OPT = dict(stamp=0, k2x='', r2b=16, r2n=2, r2m=4, ost='', old='', wold='', xld='', wqld='')
for a in sys.argv[2:]:
    k, v = a.split('='); OPT[k] = int(v) if v.lstrip('-').isdigit() else v.replace('+', ' ')

def f2u(x): return struct.unpack('<I', struct.pack('<f', x))[0]
SCALE = math.log2(math.e) / math.sqrt(128.0)

XBLK = 1056; XSZ = 24 * XBLK
WQSZ = 32768
BUFSZ = XSZ + WQSZ
BUFA = 163840 - 2 * BUFSZ
KT = 8 * XBLK
KSL = 2 * KT
VSL = 16384
SLOT = KSL + VSL
PAIR = 2 * SLOT
O_WS_OFF = 0x1000000
O_BYTES = 16 * 192 * 4096 * 2

def srd(p, d, lo, hi, size):
    p.I(f"s_mov_b32 s{d}, s{lo}\ns_and_b32 s{d+1}, s{hi}, 0xffff\ns_mov_b32 s{d+2}, {size}\ns_mov_b32 s{d+3}, 0x00020000")

def stamp(p, idx):
    if OPT['stamp']:
        p.I(f"s_memrealtime s[78:79]\ns_waitcnt lgkmcnt(0)\ns_mov_b32 s{80+idx}, s78")

def stamp_out(p, nst, base_off, lane):
    if not OPT['stamp']: return
    p.I(f"""
s_mov_b32 s72, s18
s_and_b32 s73, s19, 0xffff
s_mov_b32 s74, 0x1000000
s_mov_b32 s75, 0x00020000
s_lshl_b32 s76, s2, 2
s_add_u32 s76, s76, s3
s_lshl_b32 s76, s76, 6
s_add_u32 s76, s76, {base_off}
v_mov_b32 v1, 0
""")
    for i in range(nst):
        p.I(f"v_mov_b32 v2, s{80+i}\nbuffer_store_dword v2, v1, s[72:75], s76 offen offset:{4*i}")

def interleave(p, mfmas, slots):
    for g, m in enumerate(mfmas):
        p.I(m)
        for f in slots.get(g, []):
            if isinstance(f, Ins): p.add(f)
            else: p.I(f)

def gen_k1():
    p = Prog()
    I = p.I
    vX, vW0, vW1, vOX, vOW, vOK, vOV, vK, vV0, vV1 = range(224, 234)
    vL = [234, 235, 236]; vM = [237, 238, 239]
    vT = list(range(240, 250)); vLane = 250
    S = [0, 48]; NEGM = 96; FR = 144; QV = 192
    def qfrag(t, ksd):
        qi = ksd * 3 + t
        return f"a[{192+qi*4}:{195+qi*4}]" if qi < 16 else f"v[{QV+(qi-16)*4}:{QV+(qi-16)*4+3}]"
    I("s_cmp_ge_u32 s2, 256\ns_cbranch_scc1 L1_end")
    stamp(p, 0)
    I("s_load_dwordx16 s[4:19], s[0:1], 0")
    stamp(p, 1)
    I(f"""
v_lshrrev_b32 v1, 6, v0
v_and_b32 v{vLane}, 63, v0
v_readfirstlane_b32 s3, v1
s_and_b32 s66, s2, 7
s_lshr_b32 s67, s2, 3
s_and_b32 s48, s66, 1
s_lshl_b32 s48, s48, 3
s_and_b32 s68, s67, 7
s_add_u32 s48, s48, s68
s_lshr_b32 s49, s66, 1
s_lshl_b32 s49, s49, 2
s_lshr_b32 s69, s67, 3
s_add_u32 s49, s49, s69
s_lshl_b32 s52, s69, 1
s_add_u32 s52, s52, s68
s_and_b32 s52, s52, 7
""")
    L = f"v{vLane}"
    t0, t1, t2, t3, t4 = [f"v{x}" for x in vT[:5]]
    I(f"""
v_lshrrev_b32 {t0}, 3, {L}
v_and_b32 {t1}, 7, {L}
v_bfe_u32 {t2}, {L}, 4, 1
v_xor_b32 {t3}, {t1}, {t2}
v_lshlrev_b32 {t3}, 4, {t3}
v_lshlrev_b32 {t4}, 2, {t2}
v_xor_b32 {t4}, {t1}, {t4}
v_lshlrev_b32 {t4}, 4, {t4}
v_lshl_add_u32 v{vOX}, {t0}, 10, {t3}
v_lshl_add_u32 v{vOW}, {t0}, 13, {t4}
v_lshl_add_u32 v{vOK}, {t0}, 8, {t3}
v_lshl_add_u32 v{vOV}, {t0}, 8, {t4}
s_lshl_b32 s66, s3, 11
v_add_u32 v{vOK}, s66, v{vOK}
v_add_u32 v{vOV}, s66, v{vOV}
s_waitcnt lgkmcnt(0)
""")
    srd(p, 20, 4, 5, 16 * 192 * 1024)
    srd(p, 24, 10, 11, 512 * 8192)
    I(f"""
s_lshl_b32 s66, s48, 5
s_lshl_b32 s67, s49, 1
s_add_u32 s66, s66, s67
s_lshl_b32 s66, s66, 17
s_add_u32 s28, s6, s66
s_addc_u32 s29, s7, 0
s_and_b32 s29, s29, 0xffff
s_add_u32 s32, s28, 0x20000
s_addc_u32 s33, s29, 0
s_add_u32 s36, s8, s66
s_addc_u32 s37, s9, 0
s_and_b32 s37, s37, 0xffff
s_add_u32 s40, s36, 0x20000
s_addc_u32 s41, s37, 0
s_mov_b32 s30, 0x20000
s_mov_b32 s34, 0x20000
s_mov_b32 s38, 0x20000
s_mov_b32 s42, 0x20000
s_mov_b32 s31, 0x00020000
s_mov_b32 s35, 0x00020000
s_mov_b32 s39, 0x00020000
s_mov_b32 s43, 0x00020000
s_add_u32 s44, s18, {O_WS_OFF}
s_addc_u32 s45, s19, 0
s_and_b32 s45, s45, 0xffff
s_mov_b32 s46, {O_BYTES}
s_mov_b32 s47, 0x00020000
s_mul_i32 s50, s48, {192*1024}
s_mul_i32 s66, s3, {48*1024}
s_add_u32 s50, s50, s66
s_lshl_b32 s51, s49, 9
s_lshl_b32 s66, s3, 7
s_add_u32 s51, s51, s66
s_mul_i32 s57, s3, {6*XBLK}
s_add_u32 s57, s57, {BUFA}
s_lshl_b32 s58, s3, 10
s_add_u32 s58, s58, {BUFA + XSZ}
s_mul_i32 s61, s3, {XBLK}
s_lshl_b32 s62, s3, 10
s_add_u32 s62, s62, {KSL}
s_mov_b32 s64, {f2u(SCALE):#x}
s_mov_b32 s65, {f2u(SCALE):#x}
""")
    I(f"""
s_add_u32 s70, s57, {BUFSZ}
s_xor_b32 s70, s70, s57
s_add_u32 s71, s58, {BUFSZ}
s_xor_b32 s71, s71, s58
""")
    def stage_dma():
        out = []
        out.append([f"s_lshl_b32 s54, s52, 7", "s_add_u32 s54, s54, s50", f"s_lshl_b32 s55, s52, 19", "s_add_u32 s55, s55, s51"])
        for j in range(6):
            out.append([f"s_add_u32 m0, s57, {j*XBLK}", f"s_add_u32 s56, s54, {j*8192}",
                        f"buffer_load_dwordx4 v{vOX}, s[20:23], s56 offen {OPT['xld']} lds"])
        for rg in range(8):
            out.append([f"s_add_u32 m0, s58, {rg*4096}", f"s_add_u32 s56, s55, {rg*65536}",
                        f"buffer_load_dwordx4 v{vOW}, s[24:27], s56 offen {OPT['wqld']} lds"])
        out.append(["s_add_u32 s52, s52, 1", "s_and_b32 s52, s52, 7", "s_xor_b32 s57, s57, s70", "s_xor_b32 s58, s58, s71"])
        return out
    def k_dma(dstreg, dstoff, soff):
        out = []
        for hd in range(2):
            for half in range(2):
                out.append([f"s_add_u32 m0, {dstreg}, {dstoff + hd*KT + half*(4*XBLK-128)}",
                            f"buffer_load_dwordx4 v{vOK}, s[{28+4*hd}:{31+4*hd}], {soff} offen offset:{half*128} nt lds"])
        return out
    def v_dma(dstreg, dstoff, soff):
        out = []
        for hd in range(2):
            for half in range(2):
                out.append([f"s_add_u32 m0, {dstreg}, {dstoff + hd*8192 + half*(4096-128)}",
                            f"buffer_load_dwordx4 v{vOV}, s[{36+4*hd}:{39+4*hd}], {soff} offen offset:{half*128} nt lds"])
        return out
    def emit_groups(gs):
        for g in gs:
            for x in g: I(x)
    emit_groups(stage_dma())
    emit_groups(stage_dma())
    I("s_mov_b32 s59, 0")
    emit_groups(k_dma("s61", 0, "s59") + v_dma("s62", 0, "s59"))
    stamp(p, 2)
    I(f"""
s_lshr_b32 s66, s3, 1
s_and_b32 s67, s3, 1
v_and_b32 {t0}, 31, {L}
v_lshrrev_b32 {t1}, 3, {t0}
v_mul_u32_u24 {t1}, {XBLK}, {t1}
v_and_b32 {t2}, 7, {t0}
v_lshl_add_u32 {t1}, {t2}, 7, {t1}
v_lshrrev_b32 {t2}, 5, {L}
v_bfe_u32 {t3}, {L}, 1, 1
v_xor_b32 {t3}, {t2}, {t3}
v_lshl_add_u32 {t1}, {t3}, 4, {t1}
s_mul_i32 s68, s67, {12*XBLK}
s_add_u32 s68, s68, {BUFA}
v_add_u32 v{vX}, s68, {t1}
s_mul_i32 s68, s66, {KT}
v_add_u32 v{vK}, s68, {t1}
v_bfe_u32 {t0}, {L}, 2, 2
v_lshlrev_b32 {t0}, 7, {t0}
v_bfe_u32 {t1}, {L}, 3, 1
v_lshl_add_u32 {t0}, {t1}, 6, {t0}
v_bfe_u32 {t1}, {L}, 4, 1
v_lshl_add_u32 {t0}, {t1}, 5, {t0}
v_and_b32 {t1}, 3, {L}
v_lshl_add_u32 {t3}, {t1}, 3, {t0}
v_lshl_add_u32 {t3}, {t2}, 9, {t3}
s_lshl_b32 s68, s66, 13
s_add_u32 s68, s68, {KSL}
v_add_u32 v{vV0}, s68, {t3}
v_xor_b32 v{vV1}, 64, v{vV0}
v_and_b32 {t1}, 1, {L}
v_lshl_add_u32 {t0}, {t1}, 4, {t0}
v_bfe_u32 {t1}, {L}, 1, 1
v_lshl_add_u32 {t0}, {t1}, 3, {t0}
v_lshl_add_u32 {t0}, {t2}, 12, {t0}
s_lshl_b32 s68, s66, 11
s_add_u32 s68, s68, {BUFA + XSZ}
v_add_u32 v{vW0}, s68, {t0}
v_xor_b32 v{vW1}, 64, v{vW0}
s_mov_b32 s63, {BUFSZ}
""")
    for r in range(192): I(f"v_mov_b32 v{r}, 0")
    for r in range(192): I(f"v_accvgpr_write_b32 a{r}, 0")
    for r in vL: I(f"v_mov_b32 v{r}, 0")
    def qp_reads(ks):
        par = ks & 1
        out = []
        for t in range(3):
            b = QV + 12 * par + 4 * t
            out.append(f"ds_read_b128 v[{b}:{b+3}], v{vX} offset:{t*4*XBLK + ks*32}")
        for dt in range(4):
            for sec in range(2):
                b = 192 + 16 * par + 4 * dt + 2 * sec
                out.append(f"ds_read_b64_tr_b16 a[{b}:{b+1}], v{vW1 if dt & 1 else vW0} offset:{ks*8192 + (dt>>1)*1024 + sec*512}")
        return [out[3], out[4], out[0], out[1], out[2], out[5], out[6], out[7], out[8], out[9], out[10]]
    def qp_mfmas():
        ms = []
        for ks in range(4):
            par = ks & 1
            for dt in range(4):
                for t in range(3):
                    acc = (dt * 3 + t) * 16
                    ms.append(f"v_mfma_f32_32x32x16_bf16 v[{acc}:{acc+15}], a[{192+16*par+4*dt}:{195+16*par+4*dt}], v[{QV+12*par+4*t}:{QV+12*par+4*t+3}], v[{acc}:{acc+15}]")
        return ms
    def qp_stage(carry, post_groups, vmwait, next_reads):
        slots = {}
        def put(g, x): slots.setdefault(g, []).extend(x if isinstance(x, list) else [x])
        for ks in range(3):
            for i, r in enumerate(qp_reads(ks + 1)): put(ks * 12 + i, r)
        for i, g in enumerate(carry): put(1 + 2 * i, g)
        w = "s_waitcnt lgkmcnt(0)" + (f" vmcnt({vmwait})" if vmwait is not None else "")
        put(35, [w, "s_barrier"])
        if next_reads:
            put(35, [f"v_add_u32 v{vX}, s63, v{vX}", f"v_add_u32 v{vW0}, s63, v{vW0}", f"v_add_u32 v{vW1}, s63, v{vW1}", "s_sub_u32 s63, 0, s63"])
            for i, r in enumerate(qp_reads(0)): put(36 + i, r)
        n_now = 6
        for i, g in enumerate(post_groups[:n_now]): put(36 + 2 * i, g)
        interleave(p, qp_mfmas(), slots)
        return post_groups[n_now:]
    stamp(p, 3)
    I("s_waitcnt vmcnt(22)\ns_barrier")
    stamp(p, 4)
    for r in qp_reads(0): I(r)
    carry = qp_stage([], stage_dma(), 0, True)
    I("s_mov_b32 s53, 0")
    I("L1_qp:")
    p.loop_begin(5)
    c2 = qp_stage(carry, stage_dma(), 0, True)
    I("s_add_u32 s53, s53, 1\ns_cmp_lt_u32 s53, 5\ns_cbranch_scc1 L1_qp")
    p.loop_end()
    kv12 = [["s_mov_b32 s59, 8192", "s_mov_b32 s60, 16384"]] + k_dma("s61", SLOT, "s59") + v_dma("s62", SLOT, "s59") + k_dma("s61", 2*SLOT, "s60") + v_dma("s62", 2*SLOT, "s60")
    c3 = qp_stage(carry, kv12, 0, True)
    kv3 = [["s_mov_b32 s59, 24576"]] + k_dma("s61", 3*SLOT, "s59")
    c4 = qp_stage(c3, kv3, None, False)
    emit_groups(c4)
    stamp(p, 5)
    for dt in range(4):
        for t in range(3):
            acc = (dt * 3 + t) * 16
            for pr in range(8):
                I(f"v_pk_mul_f32 v[{acc+2*pr}:{acc+2*pr+1}], v[{acc+2*pr}:{acc+2*pr+1}], s[64:65]")
            for pr in range(8):
                ksd = 2 * dt + (pr >> 2); qi = ksd * 3 + t
                if qi < 16:
                    I(f"v_cvt_pk_bf16_f32 v{acc+2*pr}, v{acc+2*pr}, v{acc+2*pr+1}")
                else:
                    I(f"v_cvt_pk_bf16_f32 v{QV+(qi-16)*4+(pr&3)}, v{acc+2*pr}, v{acc+2*pr+1}")
            for pr in range(8):
                ksd = 2 * dt + (pr >> 2); qi = ksd * 3 + t
                if qi < 16:
                    I(f"v_accvgpr_write_b32 a{192+qi*4+(pr&3)}, v{acc+2*pr}")
    stamp(p, 6)
    def fr(n): b = FR + (n % 8) * 4; return b
    def k_read(ks, slotoff): b = fr(ks); return f"ds_read_b128 v[{b}:{b+3}], v{vK} offset:{slotoff + (ks>>2)*4*XBLK + (ks&3)*32}"
    def v_read(j, sec, slotoff):
        ks, dt = j >> 2, j & 3
        b = fr(8 + j) + 2 * sec
        return f"ds_read_b64_tr_b16 v[{b}:{b+1}], v{vV1 if dt & 1 else vV0} offset:{slotoff + ((dt>>1)*4 + 2*ks + sec)*1024}"
    def s_mfmas(buf, czero=False):
        ms = []
        for ks in range(8):
            for t in range(3):
                d = f"v[{buf+t*16}:{buf+t*16+15}]"
                c = d if ks else ("0" if czero else f"v[{NEGM+t*16}:{NEGM+t*16+15}]")
                ms.append(f"v_mfma_f32_32x32x16_bf16 {d}, v[{fr(ks)}:{fr(ks)+3}], {qfrag(t, ks)}, {c}")
        return ms
    def pv_mfmas(buf):
        ms = []
        for j in range(8):
            ks, dt = j >> 2, j & 3
            for t in range(3):
                o = (dt * 3 + t) * 16
                b = buf + t * 16 + 8 * ks
                ms.append(f"v_mfma_f32_32x32x16_bf16 a[{o}:{o+15}], v[{fr(8+j)}:{fr(8+j)+3}], v[{b}:{b+3}], a[{o}:{o+15}]")
        return ms
    def ereg(buf, e):
        h, t, j = e // 24, (e % 24) // 8, e % 8
        return buf + t * 16 + 8 * h + j, t
    def sm_ops(buf, e):
        out = []
        if e < 48:
            r, t = ereg(buf, e); out.append(f"v_exp_f32 v{r}, v{r}")
        if 1 <= e <= 48:
            r, t = ereg(buf, e - 1); out.append(f"v_add_f32 v{vL[t]}, v{vL[t]}, v{r}")
        if e >= 2 and e % 2 == 0 and e <= 48:
            r, t = ereg(buf, e - 2); base = r - ((e - 2) % 8)
            out.append(f"v_cvt_pk_bf16_f32 v{base + ((e-2) % 8)//2}, v{r}, v{r+1}")
        return out
    for ks in range(8): I(k_read(ks, 0))
    for m in s_mfmas(S[0], czero=True): I(m)
    I("s_waitcnt vmcnt(16) lgkmcnt(0)\ns_barrier")
    for ks in range(3): I(k_read(ks, SLOT))
    for t in range(3):
        b = S[0] + t * 16
        I(f"v_max3_f32 v{vM[t]}, v{b}, v{b+1}, v{b+2}")
        for r in range(3, 15, 2): I(f"v_max3_f32 v{vM[t]}, v{vM[t]}, v{b+r}, v{b+r+1}")
        I(f"v_max_f32 v{vM[t]}, v{vM[t]}, v{b+15}")
        I(f"v_mov_b32 v{vT[t]}, v{vM[t]}")
    for t in range(3):
        I(f"v_permlane32_swap_b32 v{vT[t]}, v{vM[t]}")
    for t in range(3):
        I(f"v_max_f32 v{vM[t]}, v{vM[t]}, v{vT[t]}")
    for t in range(3):
        for r in range(16): I(f"v_sub_f32 v{NEGM+t*16+r}, 0, v{vM[t]}")
        for r in range(16): I(f"v_sub_f32 v{S[0]+t*16+r}, v{S[0]+t*16+r}, v{vM[t]}")
    for e in range(21):
        for x in sm_ops(S[0], e): I(x)
    I(f"""
s_mov_b32 s59, {4*8192}
s_mov_b32 s60, {3*8192}
s_add_u32 s67, s62, {PAIR}
s_xor_b32 s69, s67, s62
s_add_u32 s66, s61, {PAIR}
s_xor_b32 s68, s66, s61
s_mov_b32 s63, {PAIR}
s_mov_b32 s70, {PAIR}
s_mov_b32 s53, 0
""")
    stamp(p, 7)
    def attn_iter(par, first=False, dma=True, vmwait=16, last=False):
        cur, prev = S[par ^ 1], S[par]
        slots = {}
        def put(g, x): slots.setdefault(g, []).extend(x if isinstance(x, list) else [x])
        kslot = SLOT if par == 0 else 0
        for ks in range(3, 8): put(1 + 3 * (ks - 3), k_read(ks, kslot))
        vslot = par * SLOT
        for j in range(8):
            put(15 + 3 * j, v_read(j, 0, vslot)); put(16 + 3 * j, v_read(j, 1, vslot))
        for g in range(48):
            if g <= 27: put(g, sm_ops(prev, g + 21) if g < 27 else sm_ops(prev, 48))
            if g >= 27: put(g, sm_ops(cur, g - 27))
        if dma:
            if par == 0:
                gs = k_dma("s61", 0, "s59") + ([] if first else v_dma("s67", SLOT, "s60"))
            else:
                gs = k_dma("s61", SLOT, "s59") + v_dma("s62", 0, "s60")
            gaps = [0, 2, 6, 8, 12, 14, 20, 26]
            for g, x in zip(gaps, gs): put(g, x)
            put(32, ["s_add_u32 s59, s59, 8192", "s_add_u32 s60, s60, 8192"])
        put(41, [f"s_waitcnt vmcnt({vmwait}) lgkmcnt(0)", "s_barrier"])
        if par == 0:
            put(40, [f"v_add_u32 v{vK}, s63, v{vK}", "s_sub_u32 s63, 0, s63"])
        else:
            put(38, [f"v_add_u32 v{vV0}, s70, v{vV0}"]); put(40, [f"v_add_u32 v{vV1}, s70, v{vV1}", "s_sub_u32 s70, 0, s70"])
            put(44, ["s_xor_b32 s61, s61, s68", "s_xor_b32 s62, s62, s69"]); put(46, ["s_xor_b32 s67, s67, s69"])
        if not last:
            nk = 0 if par == 0 else SLOT
            put(42, k_read(0, nk)); put(44, k_read(1, nk)); put(46, k_read(2, nk))
        interleave(p, s_mfmas(cur) + pv_mfmas(prev), slots)
    I("L1_at:")
    p.loop_begin(7)
    attn_iter(0)
    attn_iter(1)
    I("s_add_u32 s53, s53, 1\ns_cmp_lt_u32 s53, 7\ns_cbranch_scc1 L1_at")
    p.loop_end()
    attn_iter(0, dma=False, vmwait=8, last=True)
    buf = S[1]
    for j in range(3):
        I(v_read(j, 0, SLOT)); I(v_read(j, 1, SLOT))
    for e in range(21, 25):
        for x in sm_ops(buf, e): I(x)
    slots = {}
    def put(g, x): slots.setdefault(g, []).extend(x if isinstance(x, list) else [x])
    for j in range(3, 8):
        put(3 * (j - 3), v_read(j, 0, SLOT)); put(3 * (j - 3) + 1, v_read(j, 1, SLOT))
    for g in range(12):
        put(g, sm_ops(buf, 25 + 2 * g) + sm_ops(buf, 26 + 2 * g))
    interleave(p, pv_mfmas(buf), slots)
    stamp(p, 8)
    for t in range(3): I(f"v_mov_b32 v{vT[t]}, v{vL[t]}")
    for t in range(3): I(f"v_permlane32_swap_b32 v{vT[t]}, v{vL[t]}")
    for t in range(3): I(f"v_add_f32 v{vL[t]}, v{vL[t]}, v{vT[t]}")
    for t in range(3): I(f"v_rcp_f32 v{vT[2*t]}, v{vL[t]}") if False else None
    RC = [240, 242, 244]
    for t in range(3): I(f"v_rcp_f32 v{RC[t]}, v{vL[t]}")
    for t in range(3): I(f"v_mov_b32 v{RC[t]+1}, v{RC[t]}")
    I(f"""
s_lshl_b32 s66, s48, 1
s_and_b32 s67, s3, 1
s_add_u32 s66, s66, s67
s_lshl_b32 s66, s66, 5
s_lshl_b32 s67, s49, 1
s_add_u32 s66, s66, s67
s_lshr_b32 s67, s3, 1
s_add_u32 s66, s66, s67
s_mul_i32 s66, s66, 24576
v_lshlrev_b32 v{vOX}, 4, {L}
""")
    for dt in range(4):
        for t in range(3):
            o = (dt * 3 + t) * 16
            tb = ((dt * 3 + t) % 4) * 16
            for r in range(16): I(f"v_accvgpr_read_b32 v{tb+r}, a{o+r}")
            for pr in range(8): I(f"v_pk_mul_f32 v[{tb+2*pr}:{tb+2*pr+1}], v[{tb+2*pr}:{tb+2*pr+1}], v[{RC[t]}:{RC[t]+1}]")
            ob = 64 + ((dt * 3 + t) % 4) * 8
            for pr in range(8): I(f"v_cvt_pk_bf16_f32 v{ob+pr}, v{tb+2*pr}, v{tb+2*pr+1}")
            for k2 in range(2):
                kk = 2 * dt + k2
                I(f"s_add_u32 s67, s66, {kk*3072}")
                I(f"buffer_store_dwordx4 v[{ob+4*k2}:{ob+4*k2+3}], v{vOX}, s[44:47], s67 offen offset:{t*1024} {OPT['ost']}")
    if OPT['stamp']:
        I("s_waitcnt vmcnt(0)")
        stamp(p, 9)
        stamp_out(p, 10, 0, L)
    I("L1_end:\ns_endpgm")
    return p

def gen_k2():
    p = Prog(); I = p.I
    PD = 8
    WR = 96 * 272
    ACC = 0
    OB = 96
    AF = 192
    vLane, vOO, vOW, vOW2, vA0, vA1, vR, vT0, vT1, vT2 = range(208, 218)
    L = f"v{vLane}"
    I("s_cmp_ge_u32 s2, 256\ns_cbranch_scc1 L2_end")
    I("s_load_dwordx16 s[4:19], s[0:1], 0")
    stamp(p, 0)
    I(f"""
v_mov_b32 v218, v0
v_lshrrev_b32 v1, 6, v0
v_and_b32 {L}, 63, v0
v_readfirstlane_b32 s3, v1
s_and_b32 s48, s2, 7
s_lshl_b32 s48, s48, 2
s_lshr_b32 s49, s2, 6
s_add_u32 s48, s48, s49
s_bfe_u32 s49, s2, 0x30003
v_lshlrev_b32 v{vOO}, 4, {L}
v_lshrrev_b32 v{vT0}, 3, {L}
v_and_b32 v{vT1}, 7, {L}
v_bfe_u32 v{vT2}, {L}, 4, 1
v_lshlrev_b32 v{vT2}, 2, v{vT2}
v_xor_b32 v{vT1}, v{vT1}, v{vT2}
v_lshlrev_b32 v{vT1}, 4, v{vT1}
v_lshl_add_u32 v{vOW}, v{vT0}, 10, v{vT1}
v_add_u32 v{vOW2}, 0x2000, v{vOW}
s_waitcnt lgkmcnt(0)
s_add_u32 s20, s18, {O_WS_OFF}
s_addc_u32 s21, s19, 0
s_and_b32 s21, s21, 0xffff
s_mov_b32 s22, {O_BYTES}
s_mov_b32 s23, 0x00020000
""")
    srd(p, 24, 12, 13, 4096 * 1024)
    srd(p, 28, 14, 15, 16 * 192 * 1024)
    I(f"""
s_mul_i32 s50, s48, 786432
s_mul_i32 s66, s3, 196608
s_add_u32 s50, s50, s66
s_lshl_b32 s51, s49, 7
s_lshl_b32 s66, s3, 20
s_add_u32 s51, s51, s66
s_mul_i32 s52, s3, {WR}
s_mov_b32 s54, s50
s_mov_b32 s55, s51
s_lshr_b32 s57, s2, 6
s_mul_i32 s57, s57, {OPT['r2m']}
s_mul_i32 s56, s49, {OPT['r2n']}
s_add_u32 s56, s56, s57
s_mov_b32 s57, 0
""")
    def loads(slot):
        out = []
        out.append([f"s_add_u32 s58, s57, s56", f"s_and_b32 s58, s58, {OPT['r2b']-1}", f"s_andn2_b32 s59, s57, {OPT['r2b']-1}", "s_or_b32 s58, s58, s59",
                    "s_lshl_b32 s51, s58, 14", "s_add_u32 s51, s51, s55", f"s_add_u32 m0, s52, {slot*2048}", "s_mul_i32 s50, s58, 3072"])
        out.append([Ins(f"buffer_load_dwordx4 v{vOW}, s[24:27], s51 offen {OPT['wold']} lds", lw=[f"L{slot}"])])
        out.append([f"s_add_u32 m0, s52, {slot*2048+1024}"])
        out.append([Ins(f"buffer_load_dwordx4 v{vOW2}, s[24:27], s51 offen {OPT['wold']} lds", lw=[f"L{slot}"]), "s_add_u32 s50, s50, s54"])
        for t in range(3):
            b = OB + slot * 12 + 4 * t
            out.append([f"buffer_load_dwordx4 v[{b}:{b+3}], v{vOO}, s[20:23], s50 offen offset:{t*1024} {OPT['old']}"])
        out[-1].append("s_add_u32 s57, s57, 1")
        def keepit(x):
            t = x.text if isinstance(x, Ins) else x
            if 'O' in OPT['k2x'] and 's[20:23]' in t: return False
            if 'W' in OPT['k2x'] and 's[24:27]' in t: return False
            return True
        out = [[x for x in g if keepit(x)] for g in out]
        return out
    def em(x):
        if isinstance(x, Ins): p.add(x)
        else: I(x)
    for s in range(PD):
        for g in loads(s):
            for x in g: em(x)
    I(f"""
v_bfe_u32 v{vT0}, {L}, 2, 2
v_lshlrev_b32 v{vT0}, 7, v{vT0}
v_lshrrev_b32 v{vT1}, 5, {L}
v_lshl_add_u32 v{vT0}, v{vT1}, 9, v{vT0}
v_bfe_u32 v{vT2}, {L}, 3, 1
v_lshl_add_u32 v{vT0}, v{vT2}, 6, v{vT0}
v_bfe_u32 v{vT2}, {L}, 4, 1
v_lshl_add_u32 v{vT0}, v{vT2}, 5, v{vT0}
v_and_b32 v{vT2}, 3, {L}
v_lshl_add_u32 v{vT0}, v{vT2}, 3, v{vT0}
v_add_u32 v{vA0}, s52, v{vT0}
v_xor_b32 v{vA1}, 64, v{vA0}
v_and_b32 v{vT0}, 31, {L}
v_mul_u32_u24 v{vT0}, 272, v{vT0}
v_lshl_add_u32 v{vT0}, v{vT1}, 4, v{vT0}
v_add_u32 v{vR}, s52, v{vT0}
""")
    for r in range(96): I(f"v_mov_b32 v{r}, 0")
    def a_reads(slot):
        par = slot & 1
        out = []
        for ntl in range(2):
            for sec in range(2):
                b = AF + par * 8 + ntl * 4 + sec * 2
                out.append(Ins(f"ds_read_b64_tr_b16 v[{b}:{b+1}], v{vA1 if ntl else vA0} offset:{slot*2048 + sec*1024}", lr=[f"L{slot}"]))
        return out
    for x in a_reads(0): p.add(x)
    def kstep(slot, reload, nxt):
        par = slot & 1
        ms = []
        for ntl in range(2):
            for t in range(3):
                acc = ACC + (ntl * 3 + t) * 16
                a = AF + par * 8 + ntl * 4; b = OB + slot * 12 + 4 * t
                ms.append(f"v_mfma_f32_32x32x16_bf16 v[{acc}:{acc+15}], v[{a}:{a+3}], v[{b}:{b+3}], v[{acc}:{acc+15}]")
        slots = {}
        if nxt:
            rs = a_reads((slot + 1) % PD)
            slots[0] = rs[:2]; slots[1] = rs[2:]
        if reload:
            gs = loads(slot)
            slots.setdefault(2, []).extend(gs[0][:4])
            slots.setdefault(3, []).extend(gs[0][4:] + gs[1] + gs[2])
            slots.setdefault(4, []).extend(gs[3])
            slots.setdefault(5, []).extend(gs[4] + gs[5] + gs[6])
        if 'M' in OPT['k2x']:
            ms = [m.replace('v_mfma_f32_32x32x16_bf16', 'v_mfma_f32_4x4x4_16b_bf16XX') for m in ms]
            ms = [f"v_add_u32 v{ACC+i}, v{AF+par*8+(i//3)*4}, v{OB+slot*12+4*(i%3)}" for i in range(6)]
        interleave(p, ms, slots)
    I("s_mov_b32 s53, 0\nL2_loop:")
    p.loop_begin(7)
    for s in range(PD): kstep(s, True, True)
    I("s_add_u32 s53, s53, 1\ns_cmp_lt_u32 s53, 7\ns_cbranch_scc1 L2_loop")
    p.loop_end()
    for s in range(PD): kstep(s, False, s < PD - 1)
    stamp(p, 1)
    for ntl in range(2):
        for t in range(3):
            for rq in range(4):
                acc = ACC + (ntl * 3 + t) * 16 + rq * 4
                I(f"ds_write_b128 v{vR}, v[{acc}:{acc+3}] offset:{t*32*272 + ntl*128 + rq*32}")
    I(f"""
v_lshrrev_b32 v{vT0}, 3, v218
v_and_b32 v{vT1}, 7, v218
v_mul_u32_u24 v{vA0}, 272, v{vT0}
v_lshl_add_u32 v{vA0}, v{vT1}, 5, v{vA0}
v_add_u32 v{vA1}, {2*WR}, v{vA0}
v_lshlrev_b32 v{vOO}, 10, v{vT0}
v_lshl_add_u32 v{vOO}, v{vT1}, 4, v{vOO}
s_mul_i32 s50, s48, {96*1024}
s_lshl_b32 s66, s49, 7
s_add_u32 s50, s50, s66
s_waitcnt lgkmcnt(0)
s_barrier
""")
    for it in range(3):
        for wv in range(4):
            for hf in range(2):
                b = 96 + it * 32 + wv * 8 + hf * 4
                I(f"ds_read_b128 v[{b}:{b+3}], v{vA1 if wv >= 2 else vA0} offset:{(wv & 1)*WR + it*32*272 + hf*16}")
    for it in range(3):
        b = 96 + it * 32
        for k in range(0, 8, 2):
            I(f"v_pk_add_f32 v[{b+k}:{b+k+1}], v[{b+k}:{b+k+1}], v[{b+8+k}:{b+9+k}]")
            I(f"v_pk_add_f32 v[{b+16+k}:{b+17+k}], v[{b+16+k}:{b+17+k}], v[{b+24+k}:{b+25+k}]")
        for k in range(0, 8, 2):
            I(f"v_pk_add_f32 v[{b+k}:{b+k+1}], v[{b+k}:{b+k+1}], v[{b+16+k}:{b+17+k}]")
        for k in range(4):
            I(f"v_cvt_pk_bf16_f32 v{it*4+k}, v{b+2*k}, v{b+2*k+1}")
        I(f"s_add_u32 s51, s50, {it*32*1024}")
        I(f"buffer_store_dwordx4 v[{it*4}:{it*4+3}], v{vOO}, s[28:31], s51 offen")
    if OPT['stamp']:
        I("s_waitcnt vmcnt(0)")
        stamp(p, 2)
        stamp_out(p, 3, 0x10000, L)
    I("L2_end:\ns_endpgm")
    return p

def kd(name, vg, acc, sg=102):
    return f""".p2align 6
.amdhsa_kernel {name}
  .amdhsa_next_free_vgpr {vg}
  .amdhsa_next_free_sgpr {sg}
  .amdhsa_accum_offset {acc}
  .amdhsa_group_segment_fixed_size 0
  .amdhsa_kernarg_size 64
  .amdhsa_user_sgpr_count 2
  .amdhsa_user_sgpr_kernarg_segment_ptr 1
  .amdhsa_system_sgpr_workgroup_id_x 1
  .amdhsa_float_denorm_mode_32 3
.end_amdhsa_kernel
"""

def main():
    k1 = gen_k1(); k1.resolve(); t1, s1 = k1.emit()
    k2 = gen_k2(); k2.resolve(); t2, s2 = k2.emit()
    sys.stderr.write(f"k1 {s1}  k2 {s2}\n")
    hdr = open('cdna_kernels/' + NAME + '.s.ref').read().split('\n')
    top = [l for l in hdr if l.startswith(';') and '@launch' not in l and 'Override' not in l and 'grid=ceil' not in l]
    out = '\n'.join(top) + f"""
; @launch kernel=attn_kernel grid=(256,1,1) block=(256,1,1) lds=163840
; @launch kernel=oproj_kernel grid=(256,1,1) block=(256,1,1) lds=104448
.amdgcn_target "amdgcn-amd-amdhsa--gfx950"
.text
.globl attn_kernel
.p2align 8
.type attn_kernel,@function
attn_kernel:
{t1}
.globl oproj_kernel
.p2align 8
.type oproj_kernel,@function
oproj_kernel:
{t2}
.section .rodata,"a"
{kd('attn_kernel', 512, 256)}{kd('oproj_kernel', 224, 224)}"""
    open(sys.argv[1], 'w').write(out)
main()
```

```python
import sys, math, struct
from asmlib import *
NAME = "standalone__mha_block_cached__near_ridge"
OPT = dict(stamp=0, ax='', kvsz=0x20000, xw=1, kmask=63, lead=0, lag=4, map=0, rh=2, rb=1, rmask=7, k2x='', r2b=16, r2n=2, r2m=4,
           ost='sc1', old='', wold='', xld='', wqld='', pre1=8, bud=24, tbud=28)
for a in sys.argv[2:]:
    k, v = a.split('='); OPT[k] = int(v, 0) if v.lstrip('-').replace('x', '').isdigit() else v.replace('+', ' ')

def f2u(x): return struct.unpack('<I', struct.pack('<f', x))[0]
SCALE = math.log2(math.e) / math.sqrt(128.0)

XBLK = 1056; XSZ = 24 * XBLK
WQSZ = 32768
BUFSZ = XSZ + WQSZ
BUFA = 163840 - 2 * BUFSZ
KT = 8 * XBLK
KSL = 2 * KT
VSL = 16384
SLOT = KSL + VSL
PAIR = 2 * SLOT
O_WS_OFF = 0x1000000
O_BYTES = 16 * 192 * 4096 * 2

def srd(p, d, lo, hi, size):
    p.I(f"s_mov_b32 s{d}, s{lo}\ns_and_b32 s{d+1}, s{hi}, 0xffff\ns_mov_b32 s{d+2}, {size}\ns_mov_b32 s{d+3}, 0x00020000")

def stamp(p, idx):
    if OPT['stamp']:
        p.I(f"s_memrealtime s[78:79]\ns_memtime s[76:77]\ns_waitcnt lgkmcnt(0)\ns_mov_b32 s{80+idx}, s78\ns_mov_b32 s{90+idx}, s76")

def stamp_out(p, nst, base_off):
    if not OPT['stamp']: return
    p.I(f"""
s_mov_b32 s72, s18
s_and_b32 s73, s19, 0xffff
s_mov_b32 s74, 0x1000000
s_mov_b32 s75, 0x00020000
s_lshl_b32 s76, s2, 2
s_add_u32 s76, s76, s3
s_lshl_b32 s76, s76, 7
s_add_u32 s76, s76, {base_off}
v_mov_b32 v1, 0
""")
    for i in range(nst):
        p.I(f"v_mov_b32 v2, s{80+i}\nbuffer_store_dword v2, v1, s[72:75], s76 offen offset:{4*i}")
        p.I(f"v_mov_b32 v2, s{90+i}\nbuffer_store_dword v2, v1, s[72:75], s76 offen offset:{64+4*i}")

def stamp_dbg(p, nst, wg):
    if OPT['stamp'] != 2: return
    p.I(f"""
s_mov_b32 s72, s16
s_and_b32 s73, s17, 0xffff
s_mov_b32 s74, 256
s_mov_b32 s75, 0x00020000
s_lshl_b32 s76, s2, 2
s_add_u32 s76, s76, s3
s_sub_u32 s76, s76, {wg*4}
s_lshl_b32 s76, s76, 12
v_mov_b32 v1, 0
""")
    for i in range(1, nst):
        p.I(f"s_sub_u32 s77, s{80+i}, s80\nv_mov_b32 v2, s77\nbuffer_store_dword v2, v1, s[72:75], s76 offen offset:{4*i}")

def cost(x):
    t = x.text if isinstance(x, Ins) else x
    mn = t.split()[0]
    if mn.startswith('v_exp') or mn.startswith('v_rcp'): return 8
    if mn.startswith('ds_write'): return 8
    return 4

class Slots(dict):
    def put(self, g, x):
        self.setdefault(g, []).extend(x if isinstance(x, list) else [x])

def schedule(p, mfmas, fixed, streams=(), budget=None):
    streams = [list(s) for s in streams]
    def em(x):
        if isinstance(x, Ins): p.add(x)
        else: p.I(x)
    for g, m in enumerate(mfmas):
        p.I(m)
        used = 0
        for f in fixed.get(g, []):
            em(f); used += cost(f)
        b = budget(g) if budget else OPT['bud']
        while True:
            c = [s for s in streams if s and s[0][1] <= g]
            if not c: break
            fs = [s for s in c if any(x[2] <= g for x in s)]
            forced = bool(fs)
            s = fs[0] if fs else min(c, key=lambda s: min(x[2] for x in s[:8]))
            if used + cost(s[0][0]) <= b or forced:
                op = s.pop(0)[0]; em(op); used += cost(op)
            else:
                break
    for s in streams:
        for op, _, _ in s: em(op)

def gen_k1():
    p = Prog(); I = p.I
    vK, vV0, vV1, vOK, vOV = range(240, 245)
    vL = [245, 246, 247]
    vX, vW0, vW1, vOX, vOW = range(248, 253)
    vWK, vWV = 253, 254
    vM = [vX, vW0, vW1]
    vT = [vOX, vOW, 255]
    S = [64, 112]; NEGM = [224, 160, 176]
    QB = [192, 0, 32]
    FR = 224
    def qfrag(t, ksd): b = QB[t] + 4 * ksd; return f"v[{b}:{b+3}]"
    def acc(t, dt): return (t * 4 + dt) * 16
    I("s_cmp_ge_u32 s2, 256\ns_cbranch_scc1 L1_end")
    stamp(p, 0)
    I("s_load_dwordx16 s[4:19], s[0:1], 0")
    I(f"""
v_lshrrev_b32 v1, 6, v0
v_and_b32 v0, 63, v0
v_readfirstlane_b32 s3, v1
s_and_b32 s66, s2, 7
s_lshr_b32 s67, s2, 3
s_and_b32 s48, s66, 1
s_lshl_b32 s48, s48, 3
s_and_b32 s68, s67, 7
s_add_u32 s48, s48, s68
s_lshr_b32 s49, s66, 1
s_lshl_b32 s49, s49, 2
s_lshr_b32 s69, s67, 3
s_add_u32 s49, s49, s69
s_mul_i32 s52, s69, {OPT['rh']}
s_mul_i32 s68, s68, {OPT['rb']}
s_add_u32 s52, s52, s68
s_and_b32 s52, s52, {OPT['rmask']}
v_lshrrev_b32 v2, 3, v0
v_and_b32 v3, 7, v0
v_bfe_u32 v4, v0, 4, 1
v_xor_b32 v5, v3, v4
v_lshlrev_b32 v5, 4, v5
v_lshlrev_b32 v6, 2, v4
v_xor_b32 v6, v3, v6
v_lshlrev_b32 v6, 4, v6
v_lshl_add_u32 v{vOX}, v2, 10, v5
v_lshl_add_u32 v{vOW}, v2, 13, v6
s_mul_i32 s50, s48, {192*1024}
s_mul_i32 s66, s3, {48*1024}
s_add_u32 s50, s50, s66
s_lshl_b32 s51, s49, 9
s_lshl_b32 s66, s3, 7
s_add_u32 s51, s51, s66
s_mul_i32 s57, s3, {6*XBLK}
s_lshl_b32 s58, s3, 10
s_waitcnt lgkmcnt(0)
""")
    srd(p, 20, 4, 5, 16 * 192 * 1024 * OPT['xw'])
    srd(p, 24, 10, 11, 512 * 8192 * OPT['xw'])
    def stage_dma(par):
        buf = BUFA + par * BUFSZ
        out = []
        out.append(["s_lshl_b32 s54, s52, 7", "s_add_u32 s54, s54, s50", "s_lshl_b32 s55, s52, 19", "s_add_u32 s55, s55, s51",
                    "s_add_u32 s52, s52, 1", "s_and_b32 s52, s52, 7"])
        for j in range(6):
            out.append([f"s_add_u32 m0, s57, {buf + j*XBLK}", f"s_add_u32 s56, s54, {j*8192}",
                        f"buffer_load_dwordx4 v{vOX}, s[20:23], s56 offen {OPT['xld']} lds"])
        for rg in range(8):
            out.append([f"s_add_u32 m0, s58, {buf + XSZ + rg*4096}", f"s_add_u32 s56, s55, {rg*65536}",
                        f"buffer_load_dwordx4 v{vOW}, s[24:27], s56 offen {OPT['wqld']} lds"])
        return out
    def emit_groups(gs):
        for g in gs:
            for x in g: I(x)
    emit_groups(stage_dma(0))
    stamp(p, 1)
    I(f"""
v_lshl_add_u32 v{vOK}, v2, 8, v5
v_lshl_add_u32 v{vOV}, v2, 8, v6
s_lshl_b32 s66, s3, 11
v_add_u32 v{vOK}, s66, v{vOK}
v_add_u32 v{vOV}, s66, v{vOV}
s_lshl_b32 s66, s48, 5
s_lshl_b32 s67, s49, 1
s_add_u32 s66, s66, s67
s_lshl_b32 s66, s66, 17
s_add_u32 s28, s6, s66
s_addc_u32 s29, s7, 0
s_and_b32 s29, s29, 0xffff
s_add_u32 s32, s28, 0x20000
s_addc_u32 s33, s29, 0
s_add_u32 s36, s8, s66
s_addc_u32 s37, s9, 0
s_and_b32 s37, s37, 0xffff
s_add_u32 s40, s36, 0x20000
s_addc_u32 s41, s37, 0
s_mov_b32 s30, {OPT['kvsz']}
s_mov_b32 s34, {OPT['kvsz']}
s_mov_b32 s38, {OPT['kvsz']}
s_mov_b32 s42, {OPT['kvsz']}
s_mov_b32 s31, 0x00020000
s_mov_b32 s35, 0x00020000
s_mov_b32 s39, 0x00020000
s_mov_b32 s43, 0x00020000
s_add_u32 s44, s18, {O_WS_OFF}
s_addc_u32 s45, s19, 0
s_and_b32 s45, s45, 0xffff
s_mov_b32 s46, {O_BYTES}
s_mov_b32 s47, 0x00020000
s_mul_i32 s61, s3, {XBLK}
s_lshl_b32 s62, s3, 10
s_add_u32 s62, s62, {KSL}
s_mov_b32 s64, {f2u(SCALE):#x}
v_lshlrev_b32 v7, 4, v0
v_add_u32 v{vWK}, s61, v7
v_add_u32 v{vWV}, s62, v7
s_lshr_b32 s66, s3, 1
s_and_b32 s67, s3, 1
v_and_b32 v2, 31, v0
v_lshrrev_b32 v3, 3, v2
v_mul_u32_u24 v3, {XBLK}, v3
v_and_b32 v4, 7, v2
v_lshl_add_u32 v3, v4, 7, v3
v_lshrrev_b32 v4, 5, v0
v_bfe_u32 v5, v0, 1, 1
v_xor_b32 v5, v4, v5
v_lshl_add_u32 v3, v5, 4, v3
s_mul_i32 s68, s67, {12*XBLK}
s_add_u32 s68, s68, {BUFA}
v_add_u32 v{vX}, s68, v3
s_mul_i32 s68, s66, {KT}
v_add_u32 v{vK}, s68, v3
v_bfe_u32 v2, v0, 2, 2
v_lshlrev_b32 v2, 7, v2
v_bfe_u32 v3, v0, 3, 1
v_lshl_add_u32 v2, v3, 6, v2
v_bfe_u32 v3, v0, 4, 1
v_lshl_add_u32 v2, v3, 5, v2
v_and_b32 v3, 3, v0
v_lshl_add_u32 v5, v3, 3, v2
v_lshl_add_u32 v5, v4, 9, v5
s_lshl_b32 s68, s66, 13
s_add_u32 s68, s68, {KSL}
v_add_u32 v{vV0}, s68, v5
v_xor_b32 v{vV1}, 64, v{vV0}
v_and_b32 v3, 1, v0
v_lshl_add_u32 v2, v3, 4, v2
v_bfe_u32 v3, v0, 1, 1
v_lshl_add_u32 v2, v3, 3, v2
v_lshl_add_u32 v2, v4, 12, v2
s_lshl_b32 s68, s66, 11
s_add_u32 s68, s68, {BUFA + XSZ}
v_add_u32 v{vW0}, s68, v2
v_xor_b32 v{vW1}, 64, v{vW0}
s_mov_b32 s63, {BUFSZ}
s_mov_b32 s59, 0
""")
    for r in vL: I(f"v_mov_b32 v{r}, 0")
    st1 = stage_dma(1)
    emit_groups(st1[:1 + OPT['pre1']])
    def k_dma(dstreg, dstoff, soff):
        return [(f"s_add_u32 m0, {dstreg}, {dstoff + hd*KT + half*(4*XBLK-128)}",
                 f"buffer_load_dwordx4 v{vOK}, s[{28+4*hd}:{31+4*hd}], {soff} offen offset:{half*128} nt lds") for hd in range(2) for half in range(2)]
    def v_dma(dstreg, dstoff, soff):
        return [(f"s_add_u32 m0, {dstreg}, {dstoff + hd*8192 + half*(4096-128)}",
                 f"buffer_load_dwordx4 v{vOV}, s[{36+4*hd}:{39+4*hd}], {soff} offen offset:{half*128} nt lds") for hd in range(2) for half in range(2)]
    PFT = [('K', 1), ('V', 1), ('K', 2), ('V', 2), ('K', 3), ('V', 3), ('K', 4)]
    def pf_load(n):
        kind, st = PFT[n]
        out = [[f"s_mov_b32 s60, {st*8192}"]]
        for hd in range(2):
            for half in range(2):
                r = 16 * n + 4 * (hd * 2 + half)
                sr = (28 if kind == 'K' else 36) + 4 * hd
                out.append([f"buffer_load_dwordx4 a[{r}:{r+3}], v{vOK if kind == 'K' else vOV}, s[{sr}:{sr+3}], s60 offen offset:{half*128} nt"])
        return out
    def pf_write(n):
        kind, st = PFT[n]
        out = []
        for hd in range(2):
            for half in range(2):
                r = 16 * n + 4 * (hd * 2 + half)
                off = (st & 1) * SLOT + (hd * KT + half * 4 * XBLK if kind == 'K' else hd * 8192 + half * 4096)
                out.append(f"ds_write_b128 v{vWK if kind == 'K' else vWV}, a[{r}:{r+3}] offset:{off}")
        return out
    NA, NB = 112, 144
    def a_read(ks, dt, sec, dst): return f"ds_read_b64_tr_b16 a[{dst+2*sec}:{dst+2*sec+1}], v{vW1 if dt & 1 else vW0} offset:{ks*8192 + (dt>>1)*1024 + sec*512}"
    def b_read(ks, t, dst): return f"ds_read_b128 a[{dst}:{dst+3}], v{vX} offset:{t*4*XBLK + ks*32}"
    def qp_reads(ks):
        par = ks & 1
        A = [a_read(ks, dt, sec, NA + 16 * par + 4 * dt) for dt in range(4) for sec in range(2)]
        B = [b_read(ks, t, NB + 12 * par + 4 * t) for t in range(3)]
        return A[:2] + B + A[2:]
    def qp_mfmas(first):
        ms = []
        for ks in range(4):
            par = ks & 1
            for dt in range(4):
                for t in range(3):
                    d = f"v[{acc(t,dt)}:{acc(t,dt)+15}]"
                    a = NA + 16 * par + 4 * dt; b = NB + 12 * par + 4 * t
                    ms.append(f"v_mfma_f32_32x32x16_bf16 {d}, a[{a}:{a+3}], a[{b}:{b+3}], {'0' if first and ks == 0 else d}")
        return ms
    A7 = [112, 168, 128, 144]; B7 = [192, 208, 192]
    toggle = [f"v_add_u32 v{vX}, s63, v{vX}", f"v_add_u32 v{vW0}, s63, v{vW0}", f"v_add_u32 v{vW1}, s63, v{vW1}", "s_sub_u32 s63, 0, s63"]
    def qp_stage(s, carry, extra, nvm):
        sl = Slots()
        for ks in range(3):
            for i, r in enumerate(qp_reads(ks + 1)): sl.put(ks * 12 + i, r)
        allg = list(carry) + list(extra)
        step = 2 if len(allg) <= 17 else 1
        for i, g in enumerate(allg): sl.put(min(1 + step * i, 34), list(g))
        sl.put(35, [f"s_waitcnt vmcnt({nvm}) lgkmcnt(0)", "s_barrier"] + toggle)
        if s < 6:
            for i, r in enumerate(qp_reads(0)): sl.put(36 + i, r)
            post = stage_dma(s & 1)
            for i, g in enumerate(post[:6]): sl.put(36 + 2 * i, g)
            left = post[6:]
        else:
            rs = [a_read(0, dt, sec, A7[0] + 4 * dt) for dt in range(4) for sec in range(2)]
            rs = rs[:2] + [b_read(0, 0, B7[0])] + rs[2:] + [a_read(1, dt, sec, A7[1] + 4 * dt) for dt in range(4) for sec in range(2)] + [b_read(ks, 0, B7[0] + 4 * ks) for ks in (1, 2, 3)]
            for i, r in enumerate(rs): sl.put(36 + (i * 12) // len(rs), r)
            left = []
        schedule(p, qp_mfmas(s == 0), sl)
        return left
    I(f"s_waitcnt vmcnt({OPT['pre1']})\ns_barrier")
    stamp(p, 2)
    for r in qp_reads(0): I(r)
    kv0 = [list(x) for x in (k_dma("s61", 0, "s59") + v_dma("s62", 0, "s59"))]
    kv0 = [[g[0], "s_nop 0", g[1]] for g in kv0]
    carry = qp_stage(0, st1[1 + OPT['pre1']:], kv0, 8)
    stamp(p, 3)
    for s in range(1, 7):
        carry = qp_stage(s, carry, pf_load(s - 1), 4)
    stamp(p, 4)
    def fr(n): return FR + (n % 8) * 4
    def k_read(ks, slotoff): b = fr(ks); return f"ds_read_b128 a[{b}:{b+3}], v{vK} offset:{slotoff + (ks>>2)*4*XBLK + (ks&3)*32}"
    def v_read(j, sec, slotoff):
        ks, dt = j >> 2, j & 3
        b = fr(8 + j) + 2 * sec
        return f"ds_read_b64_tr_b16 a[{b}:{b+1}], v{vV1 if dt & 1 else vV0} offset:{slotoff + ((dt>>1)*4 + 2*ks + sec)*1024}"
    def s_mfma(buf, t, ks, czero=False):
        d = f"v[{buf+t*16}:{buf+t*16+15}]"
        c = d if ks else ("0" if czero else f"v[{NEGM[t]}:{NEGM[t]+15}]")
        return f"v_mfma_f32_32x32x16_bf16 {d}, a[{fr(ks)}:{fr(ks)+3}], {qfrag(t, ks)}, {c}"
    def pv_mfma(buf, j, t, czero=False):
        ks, dt = j >> 2, j & 3
        o = (dt * 3 + t) * 16
        b = buf + t * 16 + 8 * ks
        c = "0" if (czero and ks == 0) else f"a[{o}:{o+15}]"
        return f"v_mfma_f32_32x32x16_bf16 a[{o}:{o+15}], a[{fr(8+j)}:{fr(8+j)+3}], v[{b}:{b+3}], {c}"
    def ereg(buf, e):
        h, t, j = e // 24, (e % 24) // 8, e % 8
        return buf + t * 16 + 8 * h + j, t
    def sm_ops(buf, e):
        out = []
        if e < 48:
            r, t = ereg(buf, e); out.append(f"v_exp_f32 v{r}, v{r}")
        if 1 <= e <= 48:
            r, t = ereg(buf, e - 1); out.append(f"v_add_f32 v{vL[t]}, v{vL[t]}, v{r}")
        if e >= 2 and e % 2 == 0 and e <= 48:
            r, t = ereg(buf, e - 2); base = r - ((e - 2) % 8)
            out.append(f"v_cvt_pk_bf16_f32 v{base + ((e-2) % 8)//2}, v{r}, v{r+1}")
        return out
    ms = []
    for t in range(3):
        for ks in range(4):
            for dt in range(4):
                d = f"v[{acc(t,dt)}:{acc(t,dt)+15}]"
                a = A7[ks] + 4 * dt; b = B7[t] + 4 * ks
                ms.append(f"v_mfma_f32_32x32x16_bf16 {d}, a[{a}:{a+3}], a[{b}:{b+3}], {d}")
    ms += [s_mfma(S[0], t, ks, True) for t in range(3) for ks in range(8)]
    ms += [s_mfma(S[1], t, ks) for t in range(3) for ks in range(8)]
    ms += [pv_mfma(S[0], j, t, True) for j in range(8) for t in range(3)]
    sl = Slots()
    rs = [a_read(ks, dt, sec, A7[ks] + 4 * dt) for ks in (2, 3) for dt in range(4) for sec in range(2)]
    for i, r in enumerate(rs): sl.put(i // 2, r)
    for ks in range(4): sl.put(8 + ks, b_read(ks, 1, B7[1] + 4 * ks))
    for ks in range(4): sl.put(17 + ks, b_read(ks, 2, B7[2] + 4 * ks))
    for i, g in enumerate(pf_load(6)): sl.put(1 + 2 * i, g)
    w1 = pf_write(0) + pf_write(1)
    for i, x in enumerate(w1): sl.put(9 + i, x)
    sl.put(17, [f"v_add_u32 v{vWK}, {PAIR}, v{vWK}", f"v_add_u32 v{vWV}, {PAIR}, v{vWV}"])
    w2 = pf_write(2) + pf_write(3)
    for i, x in enumerate(w2): sl.put(21 + i, x)
    sl.put(30, ["s_waitcnt lgkmcnt(0)", "s_barrier"])
    w3 = pf_write(4) + pf_write(5)
    for i, x in enumerate(w3): sl.put(31 + 2 * i, x)
    for ks in range(8): sl.put(32 + 2 * ks, k_read(ks, 0))
    sl.put(58, [f"v_subrev_u32 v{vWK}, {PAIR}, v{vWK}"])
    sl.put(60, ["s_waitcnt lgkmcnt(0)", "s_barrier"])
    for i, x in enumerate(pf_write(6)): sl.put(61 + i, x)
    for ks in range(8): sl.put(65 + ks, k_read(ks, SLOT))
    for j in range(8):
        g0 = max(89 + j, 72 + 15 + 3 * j)
        sl.put(g0, v_read(j, 0, 0)); sl.put(g0 + (0 if j < 2 else 1), v_read(j, 1, 0))
    sl.put(72 + 38, [f"v_add_u32 v{vK}, {PAIR}, v{vK}"])
    sl.put(72 + 40, ["s_waitcnt lgkmcnt(0)", "s_barrier"])
    sl.put(72 + 42, k_read(0, 0)); sl.put(72 + 44, k_read(1, 0)); sl.put(72 + 46, k_read(2, 0))
    sl.put(72 + 43, [f"s_mov_b32 s59, {5*8192}", f"s_mov_b32 s60, {4*8192}"])
    sl.put(72 + 45, [f"s_add_u32 s67, s62, {PAIR}", "s_xor_b32 s69, s67, s62"])
    sl.put(72 + 47, [f"s_add_u32 s66, s61, {PAIR}", "s_xor_b32 s68, s66, s61"])
    sl.put(72 + 41, [f"s_mov_b32 s63, {-PAIR & 0xffffffff:#x}", f"s_mov_b32 s70, {PAIR}"])
    sl.put(72 + 39, ["s_mov_b32 s53, 0"])
    conv = []
    for t in range(3):
        for dt in range(4):
            a = acc(t, dt)
            ear = 16 * t + 12 + dt + 3
            for k2 in range(2):
                dl = 48 + 8 * t + 2 * dt + k2 - 2
                if t == 1 and dt < 3: dl = min(dl, 48 + 8 * dt - 2)
                for pr in range(4):
                    r = a + 8 * k2 + 2 * pr
                    conv.append((f"v_mul_f32 v{r}, s64, v{r}", ear, dl))
                    conv.append((f"v_mul_f32 v{r+1}, s64, v{r+1}", ear, dl))
                for pr in range(4):
                    r = a + 8 * k2 + 2 * pr
                    conv.append((f"v_cvt_pk_bf16_f32 v{QB[t] + 4*(2*dt+k2) + pr}, v{r}, v{r+1}", ear, dl))
    mx = []
    for t in range(3):
        b = S[0] + t * 16
        ear = 48 + 8 * t + 7 + 3
        if t > 0: ear = max(ear, 71)
        dl = 72 + 8 * t - 2
        ear0 = 48 + 8 * t + 7 + 3
        ops = [f"v_max3_f32 v{vM[t]}, v{b}, v{b+1}, v{b+2}"]
        ops += [f"v_max3_f32 v{vM[t]}, v{vM[t]}, v{b+r}, v{b+r+1}" for r in range(3, 15, 2)]
        ops += [f"v_max_f32 v{vM[t]}, v{vM[t]}, v{b+15}", f"v_mov_b32 v{vT[t]}, v{vM[t]}", "s_nop 1", f"v_permlane32_swap_b32 v{vT[t]}, v{vM[t]}",
                f"v_max_f32 v{vM[t]}, v{vM[t]}, v{vT[t]}"]
        mx += [(o, ear0, dl) for o in ops]
        mx += [(f"v_sub_f32 v{NEGM[t]+r}, 0, v{vM[t]}", ear, dl) for r in range(16)]
    sm0 = []
    for e in range(49):
        if e < 48:
            r, t = ereg(S[0], e)
            ear = 72 + 8 * t - 1
            dl = (96 + t - 3) if e < 24 else (108 + t - 3)
            sm0.append((f"v_sub_f32 v{r}, v{r}, v{vM[t]}", ear, dl))
        else:
            dl = 108 + 2 - 3
        dprev = dl if e == 0 else ((96 + ((e-1) % 24)//8 - 2) if e - 1 < 24 else (108 + ((e-1) % 24)//8 - 2))
        for o in sm_ops(S[0], e): sm0.append((o, ear, min(dl, dprev) if not o.startswith('v_exp') else dl))
    sm1 = []
    for e in range(21):
        for o in sm_ops(S[1], e): sm1.append((o, 72 + 27, 119))
    schedule(p, ms, sl, [conv, mx, sm0 + sm1], budget=lambda g: OPT['tbud'])
    stamp(p, 5)
    def attn_iter(par):
        cur, prev = S[par ^ 1], S[par]
        sl = Slots()
        if par == 0: gs = k_dma("s61", 0, "s59") + v_dma("s67", SLOT, "s60")
        else: gs = k_dma("s61", SLOT, "s59") + v_dma("s62", 0, "s60")
        dg = [0, 4, 6, 10, 12, 16, 22, 28]
        sl.put(0, gs[0][0])
        kslot = SLOT if par == 0 else 0
        for ks, g in zip(range(3, 8), [1, 3, 7, 9, 13]): sl.put(g, k_read(ks, kslot))
        vslot = par * SLOT
        for j in range(8):
            sl.put(15 + 3 * j, v_read(j, 0, vslot)); sl.put(16 + 3 * j, v_read(j, 1, vslot))
        for g in range(48):
            if g <= 27: sl.put(g, sm_ops(prev, g + 21) if g < 27 else sm_ops(prev, 48))
            if g >= 27: sl.put(g, sm_ops(cur, g - 27))
        for k, g in enumerate(dg):
            sl.put(g, gs[k][1])
            if k < 7: sl.put(g if g < 16 else g + 2, gs[k + 1][0])
        sl.put(32, "s_add_u32 s59, s59, 8192"); sl.put(34, "s_add_u32 s60, s60, 8192")
        sl.put(40, ["s_waitcnt vmcnt(16) lgkmcnt(0)", "s_barrier"])
        if par == 0:
            sl.put(38, f"v_add_u32 v{vK}, s63, v{vK}"); sl.put(39, "s_sub_u32 s63, 0, s63")
            sl.put(43, "s_add_u32 s53, s53, 1")
        else:
            sl.put(38, f"v_add_u32 v{vV0}, s70, v{vV0}"); sl.put(39, f"v_add_u32 v{vV1}, s70, v{vV1}"); sl.put(41, "s_sub_u32 s70, 0, s70")
            sl.put(43, "s_xor_b32 s61, s61, s68"); sl.put(42, "s_xor_b32 s62, s62, s69"); sl.put(45, "s_xor_b32 s67, s67, s69")
        nk = 0 if par == 0 else SLOT
        sl.put(42, k_read(0, nk)); sl.put(44, k_read(1, nk)); sl.put(46, k_read(2, nk))
        if par == 0: sl.put(46, "s_cmp_lt_u32 s53, 7")
        ms = [s_mfma(cur, t, ks) for ks in range(8) for t in range(3)] + [pv_mfma(prev, j, t) for j in range(8) for t in range(3)]
        ax = OPT['ax']
        for g in list(sl):
            keep_ = []
            for x in sl[g]:
                if 'B' in ax and x == 's_barrier': continue
                if 'D' in ax and x.startswith('buffer_load'): continue
                if 'V' in ax and (x.startswith('v_exp') or x.startswith('v_add_f32') or x.startswith('v_cvt')): continue
                if 'L' in ax and x.startswith('ds_read'): continue
                keep_.append(x)
            sl[g] = keep_
        schedule(p, ms, sl)
    I("L1_at:")
    p.loop_begin(7)
    attn_iter(1)
    attn_iter(0)
    I("s_cbranch_scc1 L1_at")
    p.loop_end()
    stamp(p, 6)
    buf = S[1]
    for j in range(3):
        I(v_read(j, 0, SLOT)); I(v_read(j, 1, SLOT))
    for e in range(21, 25):
        for x in sm_ops(buf, e): I(x)
    sl = Slots()
    for j in range(3, 8):
        sl.put(3 * (j - 3), v_read(j, 0, SLOT)); sl.put(3 * (j - 3) + 1, v_read(j, 1, SLOT))
    for g in range(12):
        sl.put(g, sm_ops(buf, 25 + 2 * g) + sm_ops(buf, 26 + 2 * g))
    RC = [160, 162, 164]
    fin = []
    for t in range(3): fin.append(f"v_mov_b32 v{vT[t]}, v{vL[t]}")
    for t in range(3): fin.append(f"v_permlane32_swap_b32 v{vT[t]}, v{vL[t]}")
    for t in range(3): fin.append(f"v_add_f32 v{vL[t]}, v{vL[t]}, v{vT[t]}")
    for t in range(3): fin.append(f"v_rcp_f32 v{RC[t]}, v{vL[t]}")
    for t in range(3): fin.append(f"v_mov_b32 v{RC[t]+1}, v{RC[t]}")
    fin += f"""s_lshl_b32 s66, s48, 1
s_and_b32 s67, s3, 1
s_add_u32 s66, s66, s67
s_lshl_b32 s66, s66, 5
s_lshl_b32 s67, s49, 1
s_add_u32 s66, s66, s67
s_lshr_b32 s67, s3, 1
s_add_u32 s66, s66, s67
s_mul_i32 s66, s66, 24576
v_mbcnt_lo_u32_b32 v{vK}, -1, 0
v_mbcnt_hi_u32_b32 v{vK}, -1, v{vK}
v_lshlrev_b32 v{vK}, 4, v{vK}""".split('\n')
    for i, x in enumerate(fin): sl.put(13 + i // 3, x)
    schedule(p, [pv_mfma(buf, j, t) for j in range(8) for t in range(3)], sl)
    stamp(p, 7)
    for dt in range(4):
        for t in range(3):
            o = (dt * 3 + t) * 16
            tb = ((dt * 3 + t) % 4) * 16
            for r in range(16): I(f"v_accvgpr_read_b32 v{tb+r}, a{o+r}")
            for pr in range(8): I(f"v_pk_mul_f32 v[{tb+2*pr}:{tb+2*pr+1}], v[{tb+2*pr}:{tb+2*pr+1}], v[{RC[t]}:{RC[t]+1}]")
            ob = 64 + ((dt * 3 + t) % 4) * 8
            for pr in range(8): I(f"v_cvt_pk_bf16_f32 v{ob+pr}, v{tb+2*pr}, v{tb+2*pr+1}")
            for k2 in range(2):
                kk = 2 * dt + k2
                I(f"s_add_u32 s67, s66, {kk*3072}")
                I(f"buffer_store_dwordx4 v[{ob+4*k2}:{ob+4*k2+3}], v{vK}, s[44:47], s67 offen offset:{t*1024} {OPT['ost']}")
    if OPT['stamp']:
        stamp(p, 8)
        I("s_waitcnt vmcnt(0)")
        stamp(p, 9)
        stamp_out(p, 10, 0)
        stamp_dbg(p, 10, 37)
    I("L1_end:\ns_endpgm")
    return p

def gen_k2():
    p = Prog(); I = p.I
    PD = 8
    WR = 96 * 272
    ACC = 0
    OB = 96
    AF = 192
    vLane, vOO, vOW, vOW2, vA0, vA1, vR, vT0, vT1, vT2 = range(208, 218)
    L = f"v{vLane}"
    I("s_cmp_ge_u32 s2, 256\ns_cbranch_scc1 L2_end")
    I("s_load_dwordx16 s[4:19], s[0:1], 0")
    stamp(p, 0)
    I(f"""
v_mov_b32 v218, v0
v_lshrrev_b32 v1, 6, v0
v_and_b32 {L}, 63, v0
v_readfirstlane_b32 s3, v1
s_and_b32 s48, s2, 7
s_lshl_b32 s48, s48, 2
s_lshr_b32 s49, s2, 6
s_add_u32 s48, s48, s49
s_bfe_u32 s49, s2, 0x30003
v_lshlrev_b32 v{vOO}, 4, {L}
v_lshrrev_b32 v{vT0}, 3, {L}
v_and_b32 v{vT1}, 7, {L}
v_bfe_u32 v{vT2}, {L}, 4, 1
v_lshlrev_b32 v{vT2}, 2, v{vT2}
v_xor_b32 v{vT1}, v{vT1}, v{vT2}
v_lshlrev_b32 v{vT1}, 4, v{vT1}
v_lshl_add_u32 v{vOW}, v{vT0}, 10, v{vT1}
v_add_u32 v{vOW2}, 0x2000, v{vOW}
s_waitcnt lgkmcnt(0)
s_add_u32 s20, s18, {O_WS_OFF}
s_addc_u32 s21, s19, 0
s_and_b32 s21, s21, 0xffff
s_mov_b32 s22, {O_BYTES}
s_mov_b32 s23, 0x00020000
""")
    srd(p, 24, 12, 13, 4096 * 1024)
    srd(p, 28, 14, 15, 16 * 192 * 1024)
    I(f"""
s_mul_i32 s50, s48, 786432
s_mul_i32 s66, s3, 196608
s_add_u32 s50, s50, s66
s_lshl_b32 s51, s49, 7
s_lshl_b32 s66, s3, 20
s_add_u32 s51, s51, s66
s_mul_i32 s52, s3, {WR}
s_mov_b32 s54, s50
s_mov_b32 s55, s51
s_lshr_b32 s57, s2, 6
s_mul_i32 s57, s57, {OPT['r2m']}
s_mul_i32 s56, s49, {OPT['r2n']}
s_add_u32 s56, s56, s57
s_mov_b32 s57, 0
""")
    def loads(slot):
        out = []
        if OPT['lead'] == 0:
            pre = [f"s_add_u32 s58, s57, s56", f"s_and_b32 s58, s58, {OPT['r2b']-1}", f"s_andn2_b32 s59, s57, {OPT['r2b']-1}", "s_or_b32 s58, s58, s59"]
        else:
            lg = OPT['lead'].bit_length() - 1
            pre = [f"s_lshr_b32 s58, s57, {lg}", "s_xor_b32 s58, s58, s56", "s_and_b32 s58, s58, 3", f"s_cselect_b32 s58, {OPT['lag']*OPT['lead']}, 0",
                   "s_sub_u32 s58, s57, s58", "s_and_b32 s58, s58, 63"]
        if OPT['kmask'] != 63: pre.append(f"s_and_b32 s58, s58, {OPT['kmask']}")
        out.append(pre + ["s_lshl_b32 s51, s58, 14", "s_add_u32 s51, s51, s55", f"s_add_u32 m0, s52, {slot*2048}", "s_mul_i32 s50, s58, 3072"])
        out.append([Ins(f"buffer_load_dwordx4 v{vOW}, s[24:27], s51 offen {OPT['wold']} lds", lw=[f"L{slot}"])])
        out.append([f"s_add_u32 m0, s52, {slot*2048+1024}"])
        out.append([Ins(f"buffer_load_dwordx4 v{vOW2}, s[24:27], s51 offen {OPT['wold']} lds", lw=[f"L{slot}"]), "s_add_u32 s50, s50, s54"])
        for t in range(3):
            b = OB + slot * 12 + 4 * t
            out.append([f"buffer_load_dwordx4 v[{b}:{b+3}], v{vOO}, s[20:23], s50 offen offset:{t*1024} {OPT['old']}"])
        out[-1].append("s_add_u32 s57, s57, 1")
        def keepit(x):
            t = x.text if isinstance(x, Ins) else x
            if 'O' in OPT['k2x'] and 's[20:23]' in t: return False
            if 'W' in OPT['k2x'] and 's[24:27]' in t: return False
            return True
        out = [[x for x in g if keepit(x)] for g in out]
        return out
    def em(x):
        if isinstance(x, Ins): p.add(x)
        else: I(x)
    for s in range(PD):
        for g in loads(s):
            for x in g: em(x)
    I(f"""
v_bfe_u32 v{vT0}, {L}, 2, 2
v_lshlrev_b32 v{vT0}, 7, v{vT0}
v_lshrrev_b32 v{vT1}, 5, {L}
v_lshl_add_u32 v{vT0}, v{vT1}, 9, v{vT0}
v_bfe_u32 v{vT2}, {L}, 3, 1
v_lshl_add_u32 v{vT0}, v{vT2}, 6, v{vT0}
v_bfe_u32 v{vT2}, {L}, 4, 1
v_lshl_add_u32 v{vT0}, v{vT2}, 5, v{vT0}
v_and_b32 v{vT2}, 3, {L}
v_lshl_add_u32 v{vT0}, v{vT2}, 3, v{vT0}
v_add_u32 v{vA0}, s52, v{vT0}
v_xor_b32 v{vA1}, 64, v{vA0}
v_and_b32 v{vT0}, 31, {L}
v_mul_u32_u24 v{vT0}, 272, v{vT0}
v_lshl_add_u32 v{vT0}, v{vT1}, 4, v{vT0}
v_add_u32 v{vR}, s52, v{vT0}
""")
    for r in range(96): I(f"v_mov_b32 v{r}, 0")
    def a_reads(slot):
        par = slot & 1
        out = []
        for ntl in range(2):
            for sec in range(2):
                b = AF + par * 8 + ntl * 4 + sec * 2
                out.append(Ins(f"ds_read_b64_tr_b16 v[{b}:{b+1}], v{vA1 if ntl else vA0} offset:{slot*2048 + sec*1024}", lr=[f"L{slot}"]))
        return out
    for x in a_reads(0): p.add(x)
    def kstep(slot, reload, nxt):
        par = slot & 1
        ms = []
        for ntl in range(2):
            for t in range(3):
                acc = ACC + (ntl * 3 + t) * 16
                a = AF + par * 8 + ntl * 4; b = OB + slot * 12 + 4 * t
                ms.append(f"v_mfma_f32_32x32x16_bf16 v[{acc}:{acc+15}], v[{a}:{a+3}], v[{b}:{b+3}], v[{acc}:{acc+15}]")
        slots = {}
        if nxt:
            rs = a_reads((slot + 1) % PD)
            slots[0] = rs[:2]; slots[1] = rs[2:]
        if reload:
            gs = loads(slot)
            slots.setdefault(2, []).extend(gs[0][:-4])
            slots.setdefault(3, []).extend(gs[0][-4:] + gs[1] + gs[2])
            slots.setdefault(4, []).extend(gs[3])
            slots.setdefault(5, []).extend(gs[4] + gs[5] + gs[6])
        if 'M' in OPT['k2x']:
            ms = [m.replace('v_mfma_f32_32x32x16_bf16', 'v_mfma_f32_4x4x4_16b_bf16XX') for m in ms]
            ms = [f"v_add_u32 v{ACC+i}, v{AF+par*8+(i//3)*4}, v{OB+slot*12+4*(i%3)}" for i in range(6)]
        schedule(p, ms, slots)
    I("s_mov_b32 s53, 0\nL2_loop:")
    p.loop_begin(7)
    for s in range(PD): kstep(s, True, True)
    I("s_add_u32 s53, s53, 1\ns_cmp_lt_u32 s53, 7\ns_cbranch_scc1 L2_loop")
    p.loop_end()
    for s in range(PD): kstep(s, False, s < PD - 1)
    stamp(p, 1)
    for ntl in range(2):
        for t in range(3):
            for rq in range(4):
                acc = ACC + (ntl * 3 + t) * 16 + rq * 4
                I(f"ds_write_b128 v{vR}, v[{acc}:{acc+3}] offset:{t*32*272 + ntl*128 + rq*32}")
    I(f"""
v_lshrrev_b32 v{vT0}, 3, v218
v_and_b32 v{vT1}, 7, v218
v_mul_u32_u24 v{vA0}, 272, v{vT0}
v_lshl_add_u32 v{vA0}, v{vT1}, 5, v{vA0}
v_add_u32 v{vA1}, {2*WR}, v{vA0}
v_lshlrev_b32 v{vOO}, 10, v{vT0}
v_lshl_add_u32 v{vOO}, v{vT1}, 4, v{vOO}
s_mul_i32 s50, s48, {96*1024}
s_lshl_b32 s66, s49, 7
s_add_u32 s50, s50, s66
s_waitcnt lgkmcnt(0)
s_barrier
""")
    for it in range(3):
        for wv in range(4):
            for hf in range(2):
                b = 96 + it * 32 + wv * 8 + hf * 4
                I(f"ds_read_b128 v[{b}:{b+3}], v{vA1 if wv >= 2 else vA0} offset:{(wv & 1)*WR + it*32*272 + hf*16}")
    for it in range(3):
        b = 96 + it * 32
        for k in range(0, 8, 2):
            I(f"v_pk_add_f32 v[{b+k}:{b+k+1}], v[{b+k}:{b+k+1}], v[{b+8+k}:{b+9+k}]")
            I(f"v_pk_add_f32 v[{b+16+k}:{b+17+k}], v[{b+16+k}:{b+17+k}], v[{b+24+k}:{b+25+k}]")
        for k in range(0, 8, 2):
            I(f"v_pk_add_f32 v[{b+k}:{b+k+1}], v[{b+k}:{b+k+1}], v[{b+16+k}:{b+17+k}]")
        for k in range(4):
            I(f"v_cvt_pk_bf16_f32 v{it*4+k}, v{b+2*k}, v{b+2*k+1}")
        I(f"s_add_u32 s51, s50, {it*32*1024}")
        I(f"buffer_store_dwordx4 v[{it*4}:{it*4+3}], v{vOO}, s[28:31], s51 offen")
    if OPT['stamp']:
        I("s_waitcnt vmcnt(0)")
        stamp(p, 2)
        stamp_out(p, 3, 0x20000)
    I("L2_end:\ns_endpgm")
    return p

def kd(name, vg, acc, sg=102):
    return f""".p2align 6
.amdhsa_kernel {name}
  .amdhsa_next_free_vgpr {vg}
  .amdhsa_next_free_sgpr {sg}
  .amdhsa_accum_offset {acc}
  .amdhsa_group_segment_fixed_size 0
  .amdhsa_kernarg_size 64
  .amdhsa_user_sgpr_count 2
  .amdhsa_user_sgpr_kernarg_segment_ptr 1
  .amdhsa_system_sgpr_workgroup_id_x 1
  .amdhsa_float_denorm_mode_32 3
.end_amdhsa_kernel
"""

def main():
    k1 = gen_k1(); k1.resolve(); t1, s1 = k1.emit()
    k2 = gen_k2(); k2.resolve(); t2, s2 = k2.emit()
    sys.stderr.write(f"k1 {s1}  k2 {s2}\n")
    hdr = open('cdna_kernels/' + NAME + '.s.ref').read().split('\n')
    top = [l for l in hdr if l.startswith(';') and '@launch' not in l and 'Override' not in l and 'grid=ceil' not in l]
    out = '\n'.join(top) + f"""
; @launch kernel=attn_kernel grid=(256,1,1) block=(256,1,1) lds=163840
; @launch kernel=oproj_kernel grid=(256,1,1) block=(256,1,1) lds=104448
.amdgcn_target "amdgcn-amd-amdhsa--gfx950"
.text
.globl attn_kernel
.p2align 8
.type attn_kernel,@function
attn_kernel:
{t1}
.globl oproj_kernel
.p2align 8
.type oproj_kernel,@function
oproj_kernel:
{t2}
.section .rodata,"a"
{kd('attn_kernel', 512, 256)}{kd('oproj_kernel', 224, 224)}"""
    open(sys.argv[1], 'w').write(out)
main()
```

```python
import sys, math, struct
from asmlib import *
NAME = "standalone__mha_block_cached__near_ridge"
OPT = dict(stamp=0, ax='', kvsz=0x20000, xw=1, kmask=63, lead=0, lag=4, map=0, rh=2, rb=1, rmask=7, k2x='', r2b=16, r2n=2, r2m=4,
           ost='sc1', old='', wold='', xld='', wqld='', pre1=8, bud=24, tbud=28)
for a in sys.argv[2:]:
    k, v = a.split('='); OPT[k] = int(v, 0) if v.lstrip('-').replace('x', '').isdigit() else v.replace('+', ' ')

def f2u(x): return struct.unpack('<I', struct.pack('<f', x))[0]
SCALE = math.log2(math.e) / math.sqrt(128.0)

XBLK = 1056; XSZ = 24 * XBLK
WQSZ = 32768
BUFSZ = XSZ + WQSZ
BUFA = 163840 - 2 * BUFSZ
KT = 8 * XBLK
KSL = 2 * KT
VSL = 16384
SLOT = KSL + VSL
PAIR = 2 * SLOT
O_WS_OFF = 0x1000000
O_BYTES = 16 * 192 * 4096 * 2

def srd(p, d, lo, hi, size):
    p.I(f"s_mov_b32 s{d}, s{lo}\ns_and_b32 s{d+1}, s{hi}, 0xffff\ns_mov_b32 s{d+2}, {size}\ns_mov_b32 s{d+3}, 0x00020000")

def stamp(p, idx):
    if OPT['stamp']:
        p.I(f"s_memrealtime s[78:79]\ns_memtime s[76:77]\ns_waitcnt lgkmcnt(0)\ns_mov_b32 s{80+idx}, s78\ns_mov_b32 s{90+idx}, s76")

def stamp_out(p, nst, base_off):
    if not OPT['stamp']: return
    p.I(f"""
s_mov_b32 s72, s18
s_and_b32 s73, s19, 0xffff
s_mov_b32 s74, 0x1000000
s_mov_b32 s75, 0x00020000
s_lshl_b32 s76, s2, 2
s_add_u32 s76, s76, s3
s_lshl_b32 s76, s76, 7
s_add_u32 s76, s76, {base_off}
v_mov_b32 v1, 0
""")
    for i in range(nst):
        p.I(f"v_mov_b32 v2, s{80+i}\nbuffer_store_dword v2, v1, s[72:75], s76 offen offset:{4*i}")
        p.I(f"v_mov_b32 v2, s{90+i}\nbuffer_store_dword v2, v1, s[72:75], s76 offen offset:{64+4*i}")

def stamp_dbg(p, nst, wg):
    if OPT['stamp'] != 2: return
    p.I(f"""
s_mov_b32 s72, s16
s_and_b32 s73, s17, 0xffff
s_mov_b32 s74, 256
s_mov_b32 s75, 0x00020000
s_lshl_b32 s76, s2, 2
s_add_u32 s76, s76, s3
s_sub_u32 s76, s76, {wg*4}
s_lshl_b32 s76, s76, 12
v_mov_b32 v1, 0
""")
    for i in range(1, nst):
        p.I(f"s_sub_u32 s77, s{80+i}, s80\nv_mov_b32 v2, s77\nbuffer_store_dword v2, v1, s[72:75], s76 offen offset:{4*i}")

def cost(x):
    t = x.text if isinstance(x, Ins) else x
    mn = t.split()[0]
    if mn.startswith('v_exp') or mn.startswith('v_rcp'): return 8
    if mn.startswith('ds_write'): return 8
    return 4

class Slots(dict):
    def put(self, g, x):
        self.setdefault(g, []).extend(x if isinstance(x, list) else [x])

def schedule(p, mfmas, fixed, streams=(), budget=None):
    streams = [list(s) for s in streams]
    def em(x):
        if isinstance(x, Ins): p.add(x)
        else: p.I(x)
    for g, m in enumerate(mfmas):
        p.I(m)
        used = 0
        for f in fixed.get(g, []):
            em(f); used += cost(f)
        b = budget(g) if budget else OPT['bud']
        while True:
            c = [s for s in streams if s and s[0][1] <= g]
            if not c: break
            fs = [s for s in c if any(x[2] <= g for x in s)]
            forced = bool(fs)
            s = fs[0] if fs else min(c, key=lambda s: min(x[2] for x in s[:8]))
            if used + cost(s[0][0]) <= b or forced:
                op = s.pop(0)[0]; em(op); used += cost(op)
            else:
                break
    for s in streams:
        for op, _, _ in s: em(op)

def gen_k1():
    p = Prog(); I = p.I
    vK, vV0, vV1, vOK, vOV = range(240, 245)
    vL = [245, 246, 247]
    vX, vW0, vW1, vOX, vOW = range(248, 253)
    vWK, vWV = 253, 254
    vM = [vX, vW0, vW1]
    vT = [vOX, vOW, 255]
    S = [64, 112]; NEGM = [224, 160, 176]
    QB = [192, 0, 32]
    FR = 224
    def qfrag(t, ksd): b = QB[t] + 4 * ksd; return f"v[{b}:{b+3}]"
    def acc(t, dt): return (t * 4 + dt) * 16
    I("s_cmp_ge_u32 s2, 256\ns_cbranch_scc1 L1_end")
    stamp(p, 0)
    I("s_load_dwordx16 s[4:19], s[0:1], 0")
    I(f"""
v_lshrrev_b32 v1, 6, v0
v_and_b32 v0, 63, v0
v_readfirstlane_b32 s3, v1
s_and_b32 s66, s2, 7
s_lshr_b32 s67, s2, 3
s_and_b32 s48, s66, 1
s_lshl_b32 s48, s48, 3
s_and_b32 s68, s67, 7
s_add_u32 s48, s48, s68
s_lshr_b32 s49, s66, 1
s_lshl_b32 s49, s49, 2
s_lshr_b32 s69, s67, 3
s_add_u32 s49, s49, s69
s_mul_i32 s52, s69, {OPT['rh']}
s_mul_i32 s68, s68, {OPT['rb']}
s_add_u32 s52, s52, s68
s_and_b32 s52, s52, {OPT['rmask']}
v_lshrrev_b32 v2, 3, v0
v_and_b32 v3, 7, v0
v_bfe_u32 v4, v0, 4, 1
v_xor_b32 v5, v3, v4
v_lshlrev_b32 v5, 4, v5
v_lshlrev_b32 v6, 2, v4
v_xor_b32 v6, v3, v6
v_lshlrev_b32 v6, 4, v6
v_lshl_add_u32 v{vOX}, v2, 10, v5
v_lshl_add_u32 v{vOW}, v2, 13, v6
s_mul_i32 s50, s48, {192*1024}
s_mul_i32 s66, s3, {48*1024}
s_add_u32 s50, s50, s66
s_lshl_b32 s51, s49, 9
s_lshl_b32 s66, s3, 7
s_add_u32 s51, s51, s66
s_mul_i32 s57, s3, {6*XBLK}
s_lshl_b32 s58, s3, 10
s_waitcnt lgkmcnt(0)
""")
    srd(p, 20, 4, 5, 16 * 192 * 1024 * OPT['xw'])
    srd(p, 24, 10, 11, 512 * 8192 * OPT['xw'])
    def stage_dma(par):
        buf = BUFA + par * BUFSZ
        out = []
        out.append(["s_lshl_b32 s54, s52, 7", "s_add_u32 s54, s54, s50", "s_lshl_b32 s55, s52, 19", "s_add_u32 s55, s55, s51",
                    "s_add_u32 s52, s52, 1", "s_and_b32 s52, s52, 7"])
        for j in range(6):
            out.append([f"s_add_u32 m0, s57, {buf + j*XBLK}", f"s_add_u32 s56, s54, {j*8192}",
                        f"buffer_load_dwordx4 v{vOX}, s[20:23], s56 offen {OPT['xld']} lds"])
        for rg in range(8):
            out.append([f"s_add_u32 m0, s58, {buf + XSZ + rg*4096}", f"s_add_u32 s56, s55, {rg*65536}",
                        f"buffer_load_dwordx4 v{vOW}, s[24:27], s56 offen {OPT['wqld']} lds"])
        return out
    def emit_groups(gs):
        for g in gs:
            for x in g: I(x)
    emit_groups(stage_dma(0))
    stamp(p, 1)
    I(f"""
v_lshl_add_u32 v{vOK}, v2, 8, v5
v_lshl_add_u32 v{vOV}, v2, 8, v6
s_lshl_b32 s66, s3, 11
v_add_u32 v{vOK}, s66, v{vOK}
v_add_u32 v{vOV}, s66, v{vOV}
s_lshl_b32 s66, s48, 5
s_lshl_b32 s67, s49, 1
s_add_u32 s66, s66, s67
s_lshl_b32 s66, s66, 17
s_add_u32 s28, s6, s66
s_addc_u32 s29, s7, 0
s_and_b32 s29, s29, 0xffff
s_add_u32 s32, s28, 0x20000
s_addc_u32 s33, s29, 0
s_add_u32 s36, s8, s66
s_addc_u32 s37, s9, 0
s_and_b32 s37, s37, 0xffff
s_add_u32 s40, s36, 0x20000
s_addc_u32 s41, s37, 0
s_mov_b32 s30, {OPT['kvsz']}
s_mov_b32 s34, {OPT['kvsz']}
s_mov_b32 s38, {OPT['kvsz']}
s_mov_b32 s42, {OPT['kvsz']}
s_mov_b32 s31, 0x00020000
s_mov_b32 s35, 0x00020000
s_mov_b32 s39, 0x00020000
s_mov_b32 s43, 0x00020000
s_add_u32 s44, s18, {O_WS_OFF}
s_addc_u32 s45, s19, 0
s_and_b32 s45, s45, 0xffff
s_mov_b32 s46, {O_BYTES}
s_mov_b32 s47, 0x00020000
s_mul_i32 s61, s3, {XBLK}
s_lshl_b32 s62, s3, 10
s_add_u32 s62, s62, {KSL}
s_mov_b32 s64, {f2u(SCALE):#x}
v_lshlrev_b32 v7, 4, v0
v_add_u32 v{vWK}, s61, v7
v_add_u32 v{vWV}, s62, v7
s_lshr_b32 s66, s3, 1
s_and_b32 s67, s3, 1
v_and_b32 v2, 31, v0
v_lshrrev_b32 v3, 3, v2
v_mul_u32_u24 v3, {XBLK}, v3
v_and_b32 v4, 7, v2
v_lshl_add_u32 v3, v4, 7, v3
v_lshrrev_b32 v4, 5, v0
v_bfe_u32 v5, v0, 1, 1
v_xor_b32 v5, v4, v5
v_lshl_add_u32 v3, v5, 4, v3
s_mul_i32 s68, s67, {12*XBLK}
s_add_u32 s68, s68, {BUFA}
v_add_u32 v{vX}, s68, v3
s_mul_i32 s68, s66, {KT}
v_add_u32 v{vK}, s68, v3
v_bfe_u32 v2, v0, 2, 2
v_lshlrev_b32 v2, 7, v2
v_bfe_u32 v3, v0, 3, 1
v_lshl_add_u32 v2, v3, 6, v2
v_bfe_u32 v3, v0, 4, 1
v_lshl_add_u32 v2, v3, 5, v2
v_and_b32 v3, 3, v0
v_lshl_add_u32 v5, v3, 3, v2
v_lshl_add_u32 v5, v4, 9, v5
s_lshl_b32 s68, s66, 13
s_add_u32 s68, s68, {KSL}
v_add_u32 v{vV0}, s68, v5
v_xor_b32 v{vV1}, 64, v{vV0}
v_and_b32 v3, 1, v0
v_lshl_add_u32 v2, v3, 4, v2
v_bfe_u32 v3, v0, 1, 1
v_lshl_add_u32 v2, v3, 3, v2
v_lshl_add_u32 v2, v4, 12, v2
s_lshl_b32 s68, s66, 11
s_add_u32 s68, s68, {BUFA + XSZ}
v_add_u32 v{vW0}, s68, v2
v_xor_b32 v{vW1}, 64, v{vW0}
s_mov_b32 s63, {BUFSZ}
s_mov_b32 s59, 0
""")
    for r in vL: I(f"v_mov_b32 v{r}, 0")
    st1 = stage_dma(1)
    emit_groups(st1[:1 + OPT['pre1']])
    def k_dma(dstreg, dstoff, soff):
        return [(f"s_add_u32 m0, {dstreg}, {dstoff + hd*KT + half*(4*XBLK-128)}",
                 f"buffer_load_dwordx4 v{vOK}, s[{28+4*hd}:{31+4*hd}], {soff} offen offset:{half*128} nt lds") for hd in range(2) for half in range(2)]
    def v_dma(dstreg, dstoff, soff):
        return [(f"s_add_u32 m0, {dstreg}, {dstoff + hd*8192 + half*(4096-128)}",
                 f"buffer_load_dwordx4 v{vOV}, s[{36+4*hd}:{39+4*hd}], {soff} offen offset:{half*128} nt lds") for hd in range(2) for half in range(2)]
    PFT = [('K', 1), ('V', 1), ('K', 2), ('V', 2), ('K', 3), ('V', 3), ('K', 4)]
    def pf_load(n):
        kind, st = PFT[n]
        out = [[f"s_mov_b32 s60, {st*8192}"]]
        for hd in range(2):
            for half in range(2):
                r = 16 * n + 4 * (hd * 2 + half)
                sr = (28 if kind == 'K' else 36) + 4 * hd
                out.append([f"buffer_load_dwordx4 a[{r}:{r+3}], v{vOK if kind == 'K' else vOV}, s[{sr}:{sr+3}], s60 offen offset:{half*128} nt"])
        return out
    def pf_write(n):
        kind, st = PFT[n]
        out = []
        for hd in range(2):
            for half in range(2):
                r = 16 * n + 4 * (hd * 2 + half)
                off = (st & 1) * SLOT + (hd * KT + half * 4 * XBLK if kind == 'K' else hd * 8192 + half * 4096)
                out.append(f"ds_write_b128 v{vWK if kind == 'K' else vWV}, a[{r}:{r+3}] offset:{off}")
        return out
    NA, NB = 112, 144
    def a_read(ks, dt, sec, dst): return f"ds_read_b64_tr_b16 a[{dst+2*sec}:{dst+2*sec+1}], v{vW1 if dt & 1 else vW0} offset:{ks*8192 + (dt>>1)*1024 + sec*512}"
    def b_read(ks, t, dst): return f"ds_read_b128 a[{dst}:{dst+3}], v{vX} offset:{t*4*XBLK + ks*32}"
    def qp_reads(ks):
        par = ks & 1
        A = [a_read(ks, dt, sec, NA + 16 * par + 4 * dt) for dt in range(4) for sec in range(2)]
        B = [b_read(ks, t, NB + 12 * par + 4 * t) for t in range(3)]
        return A[:2] + B + A[2:]
    def qp_mfmas(first):
        ms = []
        for ks in range(4):
            par = ks & 1
            for dt in range(4):
                for t in range(3):
                    d = f"v[{acc(t,dt)}:{acc(t,dt)+15}]"
                    a = NA + 16 * par + 4 * dt; b = NB + 12 * par + 4 * t
                    ms.append(f"v_mfma_f32_32x32x16_bf16 {d}, a[{a}:{a+3}], a[{b}:{b+3}], {'0' if first and ks == 0 else d}")
        return ms
    A7 = [112, 168, 128, 144]; B7 = [192, 208, 192]
    toggle = [f"v_add_u32 v{vX}, s63, v{vX}", f"v_add_u32 v{vW0}, s63, v{vW0}", f"v_add_u32 v{vW1}, s63, v{vW1}", "s_sub_u32 s63, 0, s63"]
    def qp_stage(s, carry, extra, nvm):
        sl = Slots()
        for ks in range(3):
            for i, r in enumerate(qp_reads(ks + 1)): sl.put(ks * 12 + i, r)
        allg = list(carry) + list(extra)
        step = 2 if len(allg) <= 17 else 1
        for i, g in enumerate(allg): sl.put(min(1 + step * i, 34), list(g))
        sl.put(35, [f"s_waitcnt vmcnt({nvm}) lgkmcnt(0)", "s_barrier"] + toggle)
        if s < 6:
            for i, r in enumerate(qp_reads(0)): sl.put(36 + i, r)
            post = stage_dma(s & 1)
            for i, g in enumerate(post[:6]): sl.put(36 + 2 * i, g)
            left = post[6:]
        else:
            rs = [a_read(0, dt, sec, A7[0] + 4 * dt) for dt in range(4) for sec in range(2)]
            rs = rs[:2] + [b_read(0, 0, B7[0])] + rs[2:] + [a_read(1, dt, sec, A7[1] + 4 * dt) for dt in range(4) for sec in range(2)] + [b_read(ks, 0, B7[0] + 4 * ks) for ks in (1, 2, 3)]
            for i, r in enumerate(rs): sl.put(36 + (i * 12) // len(rs), r)
            left = []
        schedule(p, qp_mfmas(s == 0), sl)
        return left
    I(f"s_waitcnt vmcnt({OPT['pre1']})\ns_barrier")
    stamp(p, 2)
    for r in qp_reads(0): I(r)
    kv0 = [list(x) for x in (k_dma("s61", 0, "s59") + v_dma("s62", 0, "s59"))]
    kv0 = [[g[0], "s_nop 0", g[1]] for g in kv0]
    carry = qp_stage(0, st1[1 + OPT['pre1']:], kv0, 8)
    stamp(p, 3)
    for s in range(1, 7):
        carry = qp_stage(s, carry, pf_load(s - 1), 4)
    stamp(p, 4)
    def fr(n): return FR + (n % 8) * 4
    def k_read(ks, slotoff): b = fr(ks); return f"ds_read_b128 a[{b}:{b+3}], v{vK} offset:{slotoff + (ks>>2)*4*XBLK + (ks&3)*32}"
    def v_read(j, sec, slotoff):
        ks, dt = j >> 2, j & 3
        b = fr(8 + j) + 2 * sec
        return f"ds_read_b64_tr_b16 a[{b}:{b+1}], v{vV1 if dt & 1 else vV0} offset:{slotoff + ((dt>>1)*4 + 2*ks + sec)*1024}"
    def s_mfma(buf, t, ks, czero=False):
        d = f"v[{buf+t*16}:{buf+t*16+15}]"
        c = d if ks else ("0" if czero else f"v[{NEGM[t]}:{NEGM[t]+15}]")
        return f"v_mfma_f32_32x32x16_bf16 {d}, a[{fr(ks)}:{fr(ks)+3}], {qfrag(t, ks)}, {c}"
    def pv_mfma(buf, j, t, czero=False):
        ks, dt = j >> 2, j & 3
        o = (dt * 3 + t) * 16
        b = buf + t * 16 + 8 * ks
        c = "0" if (czero and ks == 0) else f"a[{o}:{o+15}]"
        return f"v_mfma_f32_32x32x16_bf16 a[{o}:{o+15}], a[{fr(8+j)}:{fr(8+j)+3}], v[{b}:{b+3}], {c}"
    def ereg(buf, e):
        h, t, j = e // 24, (e % 24) // 8, e % 8
        return buf + t * 16 + 8 * h + j, t
    def sm_ops(buf, e):
        out = []
        if e < 48:
            r, t = ereg(buf, e); out.append(f"v_exp_f32 v{r}, v{r}")
        if 1 <= e <= 48:
            r, t = ereg(buf, e - 1); out.append(f"v_add_f32 v{vL[t]}, v{vL[t]}, v{r}")
        if e >= 2 and e % 2 == 0 and e <= 48:
            r, t = ereg(buf, e - 2); base = r - ((e - 2) % 8)
            out.append(f"v_cvt_pk_bf16_f32 v{base + ((e-2) % 8)//2}, v{r}, v{r+1}")
        return out
    ms = []
    for t in range(3):
        for ks in range(4):
            for dt in range(4):
                d = f"v[{acc(t,dt)}:{acc(t,dt)+15}]"
                a = A7[ks] + 4 * dt; b = B7[t] + 4 * ks
                ms.append(f"v_mfma_f32_32x32x16_bf16 {d}, a[{a}:{a+3}], a[{b}:{b+3}], {d}")
    ms += [s_mfma(S[0], t, ks, True) for t in range(3) for ks in range(8)]
    ms += [s_mfma(S[1], t, ks) for t in range(3) for ks in range(8)]
    ms += [pv_mfma(S[0], j, t, True) for j in range(8) for t in range(3)]
    sl = Slots()
    rs = [a_read(ks, dt, sec, A7[ks] + 4 * dt) for ks in (2, 3) for dt in range(4) for sec in range(2)]
    for i, r in enumerate(rs): sl.put(i // 2, r)
    for ks in range(4): sl.put(8 + ks, b_read(ks, 1, B7[1] + 4 * ks))
    for ks in range(4): sl.put(17 + ks, b_read(ks, 2, B7[2] + 4 * ks))
    for i, g in enumerate(pf_load(6)): sl.put(1 + 2 * i, g)
    w1 = pf_write(0) + pf_write(1)
    for i, x in enumerate(w1): sl.put(9 + i, x)
    sl.put(17, [f"v_add_u32 v{vWK}, {PAIR}, v{vWK}", f"v_add_u32 v{vWV}, {PAIR}, v{vWV}"])
    w2 = pf_write(2) + pf_write(3)
    for i, x in enumerate(w2): sl.put(21 + i, x)
    sl.put(30, ["s_waitcnt lgkmcnt(0)", "s_barrier"])
    w3 = pf_write(4) + pf_write(5)
    for i, x in enumerate(w3): sl.put(31 + 2 * i, x)
    for ks in range(8): sl.put(32 + 2 * ks, k_read(ks, 0))
    sl.put(58, [f"v_subrev_u32 v{vWK}, {PAIR}, v{vWK}"])
    sl.put(60, ["s_waitcnt lgkmcnt(0)", "s_barrier"])
    for i, x in enumerate(pf_write(6)): sl.put(61 + i, x)
    for ks in range(8): sl.put(65 + ks, k_read(ks, SLOT))
    for j in range(8):
        g0 = max(89 + j, 72 + 15 + 3 * j)
        sl.put(g0, v_read(j, 0, 0)); sl.put(g0 + (0 if j < 2 else 1), v_read(j, 1, 0))
    sl.put(72 + 38, [f"v_add_u32 v{vK}, {PAIR}, v{vK}"])
    sl.put(72 + 40, ["s_waitcnt lgkmcnt(0)", "s_barrier"])
    sl.put(72 + 42, k_read(0, 0)); sl.put(72 + 44, k_read(1, 0)); sl.put(72 + 46, k_read(2, 0))
    sl.put(72 + 43, [f"s_mov_b32 s59, {5*8192}", f"s_mov_b32 s60, {4*8192}"])
    sl.put(72 + 45, [f"s_add_u32 s67, s62, {PAIR}", "s_xor_b32 s69, s67, s62"])
    sl.put(72 + 47, [f"s_add_u32 s66, s61, {PAIR}", "s_xor_b32 s68, s66, s61"])
    sl.put(72 + 41, [f"s_mov_b32 s63, {-PAIR & 0xffffffff:#x}", f"s_mov_b32 s70, {PAIR}"])
    sl.put(72 + 39, ["s_mov_b32 s53, 0"])
    conv = []
    for t in range(3):
        for dt in range(4):
            a = acc(t, dt)
            ear = 16 * t + 12 + dt + 3
            for k2 in range(2):
                dl = 48 + 8 * t + 2 * dt + k2 - 2
                if t == 1 and dt < 3: dl = min(dl, 48 + 8 * dt - 2)
                for pr in range(4):
                    r = a + 8 * k2 + 2 * pr
                    conv.append((f"v_mul_f32 v{r}, s64, v{r}", ear, dl))
                    conv.append((f"v_mul_f32 v{r+1}, s64, v{r+1}", ear, dl))
                for pr in range(4):
                    r = a + 8 * k2 + 2 * pr
                    conv.append((f"v_cvt_pk_bf16_f32 v{QB[t] + 4*(2*dt+k2) + pr}, v{r}, v{r+1}", ear, dl))
    mx = []
    for t in range(3):
        b = S[0] + t * 16
        ear = 48 + 8 * t + 7 + 3
        if t > 0: ear = max(ear, 71)
        dl = 72 + 8 * t - 2
        ear0 = 48 + 8 * t + 7 + 3
        ops = [f"v_max3_f32 v{vM[t]}, v{b}, v{b+1}, v{b+2}"]
        ops += [f"v_max3_f32 v{vM[t]}, v{vM[t]}, v{b+r}, v{b+r+1}" for r in range(3, 15, 2)]
        ops += [f"v_max_f32 v{vM[t]}, v{vM[t]}, v{b+15}", f"v_mov_b32 v{vT[t]}, v{vM[t]}", "s_nop 1", f"v_permlane32_swap_b32 v{vT[t]}, v{vM[t]}",
                f"v_max_f32 v{vM[t]}, v{vM[t]}, v{vT[t]}"]
        mx += [(o, ear0, dl) for o in ops]
        mx += [(f"v_sub_f32 v{NEGM[t]+r}, 0, v{vM[t]}", ear, dl) for r in range(16)]
    sm0 = []
    for e in range(49):
        if e < 48:
            r, t = ereg(S[0], e)
            ear = 72 + 8 * t - 1
            dl = (96 + t - 3) if e < 24 else (108 + t - 3)
            sm0.append((f"v_sub_f32 v{r}, v{r}, v{vM[t]}", ear, dl))
        else:
            dl = 108 + 2 - 3
        dprev = dl if e == 0 else ((96 + ((e-1) % 24)//8 - 2) if e - 1 < 24 else (108 + ((e-1) % 24)//8 - 2))
        for o in sm_ops(S[0], e): sm0.append((o, ear, min(dl, dprev) if not o.startswith('v_exp') else dl))
    sm1 = []
    for e in range(21):
        for o in sm_ops(S[1], e): sm1.append((o, 72 + 27, 119))
    schedule(p, ms, sl, [conv, mx, sm0 + sm1], budget=lambda g: OPT['tbud'])
    stamp(p, 5)
    def attn_iter(par):
        cur, prev = S[par ^ 1], S[par]
        sl = Slots()
        if par == 0: gs = k_dma("s61", 0, "s59") + v_dma("s67", SLOT, "s60")
        else: gs = k_dma("s61", SLOT, "s59") + v_dma("s62", 0, "s60")
        dg = [0, 4, 6, 10, 12, 16, 22, 28]
        sl.put(0, gs[0][0])
        kslot = SLOT if par == 0 else 0
        for ks, g in zip(range(3, 8), [1, 3, 7, 9, 13]): sl.put(g, k_read(ks, kslot))
        vslot = par * SLOT
        for j in range(8):
            sl.put(15 + 3 * j, v_read(j, 0, vslot)); sl.put(16 + 3 * j, v_read(j, 1, vslot))
        for g in range(48):
            if g <= 27: sl.put(g, sm_ops(prev, g + 21) if g < 27 else sm_ops(prev, 48))
            if g >= 27: sl.put(g, sm_ops(cur, g - 27))
        for k, g in enumerate(dg):
            sl.put(g, gs[k][1])
            if k < 7: sl.put(g if g < 16 else g + 2, gs[k + 1][0])
        sl.put(32, "s_add_u32 s59, s59, 8192"); sl.put(34, "s_add_u32 s60, s60, 8192")
        sl.put(40, ["s_waitcnt vmcnt(16) lgkmcnt(0)", "s_barrier"])
        if par == 0:
            sl.put(38, f"v_add_u32 v{vK}, s63, v{vK}"); sl.put(39, "s_sub_u32 s63, 0, s63")
            sl.put(43, "s_add_u32 s53, s53, 1")
        else:
            sl.put(38, f"v_add_u32 v{vV0}, s70, v{vV0}"); sl.put(39, f"v_add_u32 v{vV1}, s70, v{vV1}"); sl.put(41, "s_sub_u32 s70, 0, s70")
            sl.put(43, "s_xor_b32 s61, s61, s68"); sl.put(42, "s_xor_b32 s62, s62, s69"); sl.put(45, "s_xor_b32 s67, s67, s69")
        nk = 0 if par == 0 else SLOT
        sl.put(42, k_read(0, nk)); sl.put(44, k_read(1, nk)); sl.put(46, k_read(2, nk))
        if par == 0: sl.put(46, "s_cmp_lt_u32 s53, 7")
        ms = [s_mfma(cur, t, ks) for ks in range(8) for t in range(3)] + [pv_mfma(prev, j, t) for j in range(8) for t in range(3)]
        ax = OPT['ax']
        for g in list(sl):
            keep_ = []
            for x in sl[g]:
                if 'B' in ax and x == 's_barrier': continue
                if 'D' in ax and x.startswith('buffer_load'): continue
                if 'V' in ax and (x.startswith('v_exp') or x.startswith('v_add_f32') or x.startswith('v_cvt')): continue
                if 'L' in ax and x.startswith('ds_read'): continue
                keep_.append(x)
            sl[g] = keep_
        schedule(p, ms, sl)
    I("L1_at:")
    p.loop_begin(7)
    attn_iter(1)
    attn_iter(0)
    I("s_cbranch_scc1 L1_at")
    p.loop_end()
    stamp(p, 6)
    buf = S[1]
    for j in range(3):
        I(v_read(j, 0, SLOT)); I(v_read(j, 1, SLOT))
    for e in range(21, 25):
        for x in sm_ops(buf, e): I(x)
    sl = Slots()
    for j in range(3, 8):
        sl.put(3 * (j - 3), v_read(j, 0, SLOT)); sl.put(3 * (j - 3) + 1, v_read(j, 1, SLOT))
    for g in range(12):
        sl.put(g, sm_ops(buf, 25 + 2 * g) + sm_ops(buf, 26 + 2 * g))
    RC = [160, 162, 164]
    fin = []
    for t in range(3): fin.append(f"v_mov_b32 v{vT[t]}, v{vL[t]}")
    for t in range(3): fin.append(f"v_permlane32_swap_b32 v{vT[t]}, v{vL[t]}")
    for t in range(3): fin.append(f"v_add_f32 v{vL[t]}, v{vL[t]}, v{vT[t]}")
    for t in range(3): fin.append(f"v_rcp_f32 v{RC[t]}, v{vL[t]}")
    for t in range(3): fin.append(f"v_mov_b32 v{RC[t]+1}, v{RC[t]}")
    fin += f"""s_lshl_b32 s66, s48, 1
s_and_b32 s67, s3, 1
s_add_u32 s66, s66, s67
s_lshl_b32 s66, s66, 5
s_lshl_b32 s67, s49, 1
s_add_u32 s66, s66, s67
s_lshr_b32 s67, s3, 1
s_add_u32 s66, s66, s67
s_mul_i32 s66, s66, 24576
v_mbcnt_lo_u32_b32 v{vK}, -1, 0
v_mbcnt_hi_u32_b32 v{vK}, -1, v{vK}
v_lshlrev_b32 v{vK}, 4, v{vK}""".split('\n')
    for i, x in enumerate(fin): sl.put(13 + i // 3, x)
    schedule(p, [pv_mfma(buf, j, t) for j in range(8) for t in range(3)], sl)
    stamp(p, 7)
    for dt in range(4):
        for t in range(3):
            o = (dt * 3 + t) * 16
            tb = ((dt * 3 + t) % 4) * 16
            for r in range(16): I(f"v_accvgpr_read_b32 v{tb+r}, a{o+r}")
            for pr in range(8): I(f"v_pk_mul_f32 v[{tb+2*pr}:{tb+2*pr+1}], v[{tb+2*pr}:{tb+2*pr+1}], v[{RC[t]}:{RC[t]+1}]")
            ob = 64 + ((dt * 3 + t) % 4) * 8
            for pr in range(8): I(f"v_cvt_pk_bf16_f32 v{ob+pr}, v{tb+2*pr}, v{tb+2*pr+1}")
            for k2 in range(2):
                kk = 2 * dt + k2
                I(f"s_add_u32 s67, s66, {kk*3072}")
                I(f"buffer_store_dwordx4 v[{ob+4*k2}:{ob+4*k2+3}], v{vK}, s[44:47], s67 offen offset:{t*1024} {OPT['ost']}")
    if OPT['stamp']:
        stamp(p, 8)
        I("s_waitcnt vmcnt(0)")
        stamp(p, 9)
        stamp_out(p, 10, 0)
    I("L1_end:\ns_endpgm")
    return p

def gen_k2():
    p = Prog(); I = p.I
    PD = 8
    WR = 96 * 272
    ACC = 0
    OB = 96
    AF = 192
    vLane, vOO, vOW, vOW2, vA0, vA1, vR, vT0, vT1, vT2 = range(208, 218)
    L = f"v{vLane}"
    I("s_cmp_ge_u32 s2, 256\ns_cbranch_scc1 L2_end")
    I("s_load_dwordx16 s[4:19], s[0:1], 0")
    stamp(p, 0)
    I(f"""
v_mov_b32 v218, v0
v_lshrrev_b32 v1, 6, v0
v_and_b32 {L}, 63, v0
v_readfirstlane_b32 s3, v1
s_and_b32 s48, s2, 7
s_lshl_b32 s48, s48, 2
s_lshr_b32 s49, s2, 6
s_add_u32 s48, s48, s49
s_bfe_u32 s49, s2, 0x30003
v_lshlrev_b32 v{vOO}, 4, {L}
v_lshrrev_b32 v{vT0}, 3, {L}
v_and_b32 v{vT1}, 7, {L}
v_bfe_u32 v{vT2}, {L}, 4, 1
v_lshlrev_b32 v{vT2}, 2, v{vT2}
v_xor_b32 v{vT1}, v{vT1}, v{vT2}
v_lshlrev_b32 v{vT1}, 4, v{vT1}
v_lshl_add_u32 v{vOW}, v{vT0}, 10, v{vT1}
v_add_u32 v{vOW2}, 0x2000, v{vOW}
s_waitcnt lgkmcnt(0)
s_add_u32 s20, s18, {O_WS_OFF}
s_addc_u32 s21, s19, 0
s_and_b32 s21, s21, 0xffff
s_mov_b32 s22, {O_BYTES}
s_mov_b32 s23, 0x00020000
""")
    srd(p, 24, 12, 13, 4096 * 1024)
    srd(p, 28, 14, 15, 16 * 192 * 1024)
    I(f"""
s_mul_i32 s50, s48, 786432
s_mul_i32 s66, s3, 196608
s_add_u32 s50, s50, s66
s_lshl_b32 s51, s49, 7
s_lshl_b32 s66, s3, 20
s_add_u32 s51, s51, s66
s_mul_i32 s52, s3, {WR}
s_mov_b32 s54, s50
s_mov_b32 s55, s51
s_lshr_b32 s57, s2, 6
s_mul_i32 s57, s57, {OPT['r2m']}
s_mul_i32 s56, s49, {OPT['r2n']}
s_add_u32 s56, s56, s57
s_mov_b32 s57, 0
""")
    def loads(slot):
        out = []
        if OPT['lead'] == 0:
            pre = [f"s_add_u32 s58, s57, s56", f"s_and_b32 s58, s58, {OPT['r2b']-1}", f"s_andn2_b32 s59, s57, {OPT['r2b']-1}", "s_or_b32 s58, s58, s59"]
        else:
            lg = OPT['lead'].bit_length() - 1
            pre = [f"s_lshr_b32 s58, s57, {lg}", "s_xor_b32 s58, s58, s56", "s_and_b32 s58, s58, 3", f"s_cselect_b32 s58, {OPT['lag']*OPT['lead']}, 0",
                   "s_sub_u32 s58, s57, s58", "s_and_b32 s58, s58, 63"]
        if OPT['kmask'] != 63: pre.append(f"s_and_b32 s58, s58, {OPT['kmask']}")
        out.append(pre + ["s_lshl_b32 s51, s58, 14", "s_add_u32 s51, s51, s55", f"s_add_u32 m0, s52, {slot*2048}", "s_mul_i32 s50, s58, 3072"])
        out.append([Ins(f"buffer_load_dwordx4 v{vOW}, s[24:27], s51 offen {OPT['wold']} lds", lw=[f"L{slot}"])])
        out.append([f"s_add_u32 m0, s52, {slot*2048+1024}"])
        out.append([Ins(f"buffer_load_dwordx4 v{vOW2}, s[24:27], s51 offen {OPT['wold']} lds", lw=[f"L{slot}"]), "s_add_u32 s50, s50, s54"])
        for t in range(3):
            b = OB + slot * 12 + 4 * t
            out.append([f"buffer_load_dwordx4 v[{b}:{b+3}], v{vOO}, s[20:23], s50 offen offset:{t*1024} {OPT['old']}"])
        out[-1].append("s_add_u32 s57, s57, 1")
        def keepit(x):
            t = x.text if isinstance(x, Ins) else x
            if 'O' in OPT['k2x'] and 's[20:23]' in t: return False
            if 'W' in OPT['k2x'] and 's[24:27]' in t: return False
            return True
        out = [[x for x in g if keepit(x)] for g in out]
        return out
    def em(x):
        if isinstance(x, Ins): p.add(x)
        else: I(x)
    for s in range(PD):
        for g in loads(s):
            for x in g: em(x)
    I(f"""
v_bfe_u32 v{vT0}, {L}, 2, 2
v_lshlrev_b32 v{vT0}, 7, v{vT0}
v_lshrrev_b32 v{vT1}, 5, {L}
v_lshl_add_u32 v{vT0}, v{vT1}, 9, v{vT0}
v_bfe_u32 v{vT2}, {L}, 3, 1
v_lshl_add_u32 v{vT0}, v{vT2}, 6, v{vT0}
v_bfe_u32 v{vT2}, {L}, 4, 1
v_lshl_add_u32 v{vT0}, v{vT2}, 5, v{vT0}
v_and_b32 v{vT2}, 3, {L}
v_lshl_add_u32 v{vT0}, v{vT2}, 3, v{vT0}
v_add_u32 v{vA0}, s52, v{vT0}
v_xor_b32 v{vA1}, 64, v{vA0}
v_and_b32 v{vT0}, 31, {L}
v_mul_u32_u24 v{vT0}, 272, v{vT0}
v_lshl_add_u32 v{vT0}, v{vT1}, 4, v{vT0}
v_add_u32 v{vR}, s52, v{vT0}
""")
    for r in range(96): I(f"v_mov_b32 v{r}, 0")
    def a_reads(slot):
        par = slot & 1
        out = []
        for ntl in range(2):
            for sec in range(2):
                b = AF + par * 8 + ntl * 4 + sec * 2
                out.append(Ins(f"ds_read_b64_tr_b16 v[{b}:{b+1}], v{vA1 if ntl else vA0} offset:{slot*2048 + sec*1024}", lr=[f"L{slot}"]))
        return out
    for x in a_reads(0): p.add(x)
    def kstep(slot, reload, nxt):
        par = slot & 1
        ms = []
        for ntl in range(2):
            for t in range(3):
                acc = ACC + (ntl * 3 + t) * 16
                a = AF + par * 8 + ntl * 4; b = OB + slot * 12 + 4 * t
                ms.append(f"v_mfma_f32_32x32x16_bf16 v[{acc}:{acc+15}], v[{a}:{a+3}], v[{b}:{b+3}], v[{acc}:{acc+15}]")
        slots = {}
        if nxt:
            rs = a_reads((slot + 1) % PD)
            slots[0] = rs[:2]; slots[1] = rs[2:]
        if reload:
            gs = loads(slot)
            slots.setdefault(2, []).extend(gs[0][:-4])
            slots.setdefault(3, []).extend(gs[0][-4:] + gs[1] + gs[2])
            slots.setdefault(4, []).extend(gs[3])
            slots.setdefault(5, []).extend(gs[4] + gs[5] + gs[6])
        if 'M' in OPT['k2x']:
            ms = [m.replace('v_mfma_f32_32x32x16_bf16', 'v_mfma_f32_4x4x4_16b_bf16XX') for m in ms]
            ms = [f"v_add_u32 v{ACC+i}, v{AF+par*8+(i//3)*4}, v{OB+slot*12+4*(i%3)}" for i in range(6)]
        schedule(p, ms, slots)
    I("s_mov_b32 s53, 0\nL2_loop:")
    p.loop_begin(7)
    for s in range(PD): kstep(s, True, True)
    I("s_add_u32 s53, s53, 1\ns_cmp_lt_u32 s53, 7\ns_cbranch_scc1 L2_loop")
    p.loop_end()
    for s in range(PD): kstep(s, False, s < PD - 1)
    stamp(p, 1)
    for ntl in range(2):
        for t in range(3):
            for rq in range(4):
                acc = ACC + (ntl * 3 + t) * 16 + rq * 4
                I(f"ds_write_b128 v{vR}, v[{acc}:{acc+3}] offset:{t*32*272 + ntl*128 + rq*32}")
    I(f"""
v_lshrrev_b32 v{vT0}, 3, v218
v_and_b32 v{vT1}, 7, v218
v_mul_u32_u24 v{vA0}, 272, v{vT0}
v_lshl_add_u32 v{vA0}, v{vT1}, 5, v{vA0}
v_add_u32 v{vA1}, {2*WR}, v{vA0}
v_lshlrev_b32 v{vOO}, 10, v{vT0}
v_lshl_add_u32 v{vOO}, v{vT1}, 4, v{vOO}
s_mul_i32 s50, s48, {96*1024}
s_lshl_b32 s66, s49, 7
s_add_u32 s50, s50, s66
s_waitcnt lgkmcnt(0)
s_barrier
""")
    for it in range(3):
        for wv in range(4):
            for hf in range(2):
                b = 96 + it * 32 + wv * 8 + hf * 4
                I(f"ds_read_b128 v[{b}:{b+3}], v{vA1 if wv >= 2 else vA0} offset:{(wv & 1)*WR + it*32*272 + hf*16}")
    for it in range(3):
        b = 96 + it * 32
        for k in range(0, 8, 2):
            I(f"v_pk_add_f32 v[{b+k}:{b+k+1}], v[{b+k}:{b+k+1}], v[{b+8+k}:{b+9+k}]")
            I(f"v_pk_add_f32 v[{b+16+k}:{b+17+k}], v[{b+16+k}:{b+17+k}], v[{b+24+k}:{b+25+k}]")
        for k in range(0, 8, 2):
            I(f"v_pk_add_f32 v[{b+k}:{b+k+1}], v[{b+k}:{b+k+1}], v[{b+16+k}:{b+17+k}]")
        for k in range(4):
            I(f"v_cvt_pk_bf16_f32 v{it*4+k}, v{b+2*k}, v{b+2*k+1}")
        I(f"s_add_u32 s51, s50, {it*32*1024}")
        I(f"buffer_store_dwordx4 v[{it*4}:{it*4+3}], v{vOO}, s[28:31], s51 offen")
    if OPT['stamp']:
        I("s_waitcnt vmcnt(0)")
        stamp(p, 2)
        stamp_out(p, 3, 0x20000)
        if OPT['stamp'] == 2:
            I(f"""
s_load_dwordx16 s[52:67], s[18:19], {37*4*128}
s_mov_b32 s72, s16
s_and_b32 s73, s17, 0xffff
s_mov_b32 s74, 256
s_mov_b32 s75, 0x00020000
s_lshl_b32 s76, s2, 2
s_add_u32 s76, s76, s3
s_sub_u32 s76, s76, {37*4}
s_lshl_b32 s76, s76, 12
s_waitcnt lgkmcnt(0)
""")
            for i in range(1, 10):
                I(f"s_sub_u32 s77, s{52+i}, s52\nv_mov_b32 v2, s77\nbuffer_store_dword v2, v1, s[72:75], s76 offen offset:{4*i}")
            for i in range(3):
                I(f"s_sub_u32 s77, s{80+i}, s52\nv_mov_b32 v2, s77\nbuffer_store_dword v2, v1, s[72:75], s76 offen offset:{40+4*i}")
    I("L2_end:\ns_endpgm")
    return p

def kd(name, vg, acc, sg=102):
    return f""".p2align 6
.amdhsa_kernel {name}
  .amdhsa_next_free_vgpr {vg}
  .amdhsa_next_free_sgpr {sg}
  .amdhsa_accum_offset {acc}
  .amdhsa_group_segment_fixed_size 0
  .amdhsa_kernarg_size 64
  .amdhsa_user_sgpr_count 2
  .amdhsa_user_sgpr_kernarg_segment_ptr 1
  .amdhsa_system_sgpr_workgroup_id_x 1
  .amdhsa_float_denorm_mode_32 3
.end_amdhsa_kernel
"""

def main():
    k1 = gen_k1(); k1.resolve(); t1, s1 = k1.emit()
    k2 = gen_k2(); k2.resolve(); t2, s2 = k2.emit()
    sys.stderr.write(f"k1 {s1}  k2 {s2}\n")
    hdr = open('cdna_kernels/' + NAME + '.s.ref').read().split('\n')
    top = [l for l in hdr if l.startswith(';') and '@launch' not in l and 'Override' not in l and 'grid=ceil' not in l]
    out = '\n'.join(top) + f"""
; @launch kernel=attn_kernel grid=(256,1,1) block=(256,1,1) lds=163840
; @launch kernel=oproj_kernel grid=(256,1,1) block=(256,1,1) lds=104448
.amdgcn_target "amdgcn-amd-amdhsa--gfx950"
.text
.globl attn_kernel
.p2align 8
.type attn_kernel,@function
attn_kernel:
{t1}
.globl oproj_kernel
.p2align 8
.type oproj_kernel,@function
oproj_kernel:
{t2}
.section .rodata,"a"
{kd('attn_kernel', 512, 256)}{kd('oproj_kernel', 224, 224)}"""
    open(sys.argv[1], 'w').write(out)
main()
```

```python
import re

REG_RE = re.compile(r'^(-?\|?)([vas])(?:(\d+)|\[(\d+):(\d+)\])\|?$')

def regs_of(tok):
    tok = tok.strip()
    if tok in ('vcc', 'exec'):
        return [tok]
    if tok in ('vcc_lo', 'vcc_hi'):
        return ['vcc']
    if tok in ('exec_lo', 'exec_hi'):
        return ['exec']
    if tok == 'm0':
        return ['m0']
    m = REG_RE.match(tok)
    if not m:
        return []
    f = m.group(2)
    if m.group(3) is not None:
        return [f + m.group(3)]
    return [f + str(i) for i in range(int(m.group(4)), int(m.group(5)) + 1)]

def keep(q, n):
    return q[max(0, len(q) - n):] if n else []

TRANS = ('v_exp_f32', 'v_log_f32', 'v_rcp_f32', 'v_rsq_f32', 'v_sqrt_f32', 'v_sin_f32', 'v_cos_f32')

class Ins:
    __slots__ = ('text', 'kind', 'wr', 'rd', 'mn', 'srcc', 'srcab', 'lw', 'lr', 'pre', 'comment', 'data')
    def __init__(self, text, lw=(), lr=(), comment=None):
        self.text = text.strip()
        self.lw = tuple(lw)
        self.lr = tuple(lr)
        self.pre = {}
        self.comment = comment
        self.srcc = []; self.srcab = []; self.data = []
        self.parse()
    def parse(self):
        t = self.text
        self.wr = []; self.rd = []
        if t.endswith(':'):
            self.kind = 'label'; self.mn = ''; return
        if t.startswith('.') or t.startswith(';') or not t:
            self.kind = 'dir'; self.mn = ''; return
        parts = t.split(None, 1)
        mn = parts[0]; self.mn = mn
        rest = parts[1] if len(parts) > 1 else ''
        ops = [o.strip() for o in rest.split(',')] if rest else []
        mods = ''
        if ops:
            sp = ops[-1].split(None, 1)
            if len(sp) > 1:
                ops[-1] = sp[0]; mods = sp[1]
        R = [regs_of(o) for o in ops]
        flat = lambda xs: [r for x in xs for r in x]
        if mn.startswith('v_mfma'):
            self.kind = 'mfma8' if '32x32' in mn else 'mfma4'
            self.wr = R[0]; self.srcab = R[1] + R[2]; self.srcc = R[3]; self.rd = self.srcab + self.srcc
        elif mn.startswith('ds_read'):
            self.kind = 'ds_r'; self.wr = R[0]; self.rd = flat(R[1:])
        elif mn.startswith('ds_write'):
            self.kind = 'ds_w'; self.rd = flat(R)
        elif mn.startswith('ds_'):
            self.kind = 'ds_r'; self.wr = R[0]; self.rd = flat(R[1:])
        elif mn.startswith('buffer_load') or mn.startswith('global_load'):
            if re.search(r'\blds\b', mods) or '_lds_' in mn:
                self.kind = 'dma'; self.rd = flat(R) + ['m0']
            else:
                self.kind = 'vm_ld'; self.wr = R[0]; self.rd = flat(R[1:])
        elif mn.startswith('buffer_store') or mn.startswith('buffer_atomic'):
            self.kind = 'vm_st'; self.rd = flat(R); self.data = R[0] if len(R[0]) >= 3 else []
            if 'atomic' in mn and re.search(r'\bsc0\b', mods):
                self.kind = 'vm_ld'; self.wr = R[0]
        elif mn.startswith('global_store') or mn.startswith('global_atomic'):
            self.kind = 'vm_st'; self.rd = flat(R); self.data = R[1] if len(R[1]) >= 3 else []
        elif mn in ('buffer_wbl2', 'buffer_inv'):
            self.kind = 'vm_st'
        elif mn.startswith('v_'):
            self.kind = 'trans' if any(mn.startswith(x) for x in TRANS) else 'valu'
            if mn.startswith('v_permlane'):
                self.wr = R[0] + R[1]; self.rd = R[0] + R[1]
            elif mn.startswith('v_cmp'):
                self.wr = R[0]; self.rd = flat(R[1:])
            elif mn.startswith('v_fmac') or mn.startswith('v_writelane') or mn.startswith('v_dot2c'):
                self.wr = R[0]; self.rd = flat(R)
            elif mn.startswith('v_add_co') or mn.startswith('v_addc_co') or mn.startswith('v_sub_co'):
                self.wr = R[0] + R[1]; self.rd = flat(R[2:])
            elif mn == 'v_nop':
                pass
            else:
                self.wr = R[0]; self.rd = flat(R[1:])
        elif mn == 's_waitcnt':
            self.kind = 'wait'
        elif mn == 's_nop':
            self.kind = 'nop'
        elif mn == 's_barrier':
            self.kind = 'barrier'
        elif mn.startswith('s_cbranch') or mn == 's_branch' or mn == 's_endpgm':
            self.kind = 'branch'
        elif mn.startswith('s_load') or mn.startswith('s_mem') or mn.startswith('s_buffer_load'):
            self.kind = 'smem'; self.wr = R[0]; self.rd = flat(R[1:])
        elif mn.startswith('s_cmp') or mn.startswith('s_bitcmp'):
            self.kind = 'salu'; self.rd = flat(R); self.wr = ['scc']
        elif mn in ('s_setprio', 's_sleep', 's_sethalt'):
            self.kind = 'salu'
        elif mn.startswith('s_'):
            self.kind = 'salu'; self.wr = R[0]; self.rd = flat(R[1:])
            if 'saveexec' in mn: self.wr = self.wr + ['exec']
        else:
            raise ValueError('unknown instr ' + t)

class Prog:
    def __init__(self):
        self.items = []
        self.stack = [self.items]
    def I(self, text, **kw):
        for line in text.strip('\n').split('\n'):
            line = line.split(';')[0].strip() if not line.strip().startswith(';') else ''
            if not line: continue
            self.stack[-1].append(Ins(line, **kw))
    def raw(self, text):
        for line in text.strip('\n').split('\n'):
            line = line.strip()
            if not line: continue
            ins = Ins('; raw'); ins.text = line
            self.stack[-1].append(ins)
    def add(self, ins):
        self.stack[-1].append(ins)
    def loop_begin(self, trips):
        body = []
        self.stack[-1].append(['loop', trips, body])
        self.stack.append(body)
    def loop_end(self):
        self.stack.pop()
    def reset_point(self):
        self.stack[-1].append(Ins('; reset'))
    def trace(self, items=None, maxtrips=3):
        items = self.items if items is None else items
        for it in items:
            if isinstance(it, list):
                for _ in range(min(it[1], maxtrips)):
                    yield from self.trace(it[2], maxtrips)
            else:
                yield it
    def flat(self, items=None):
        items = self.items if items is None else items
        for it in items:
            if isinstance(it, list):
                yield from self.flat(it[2])
            else:
                yield it
    def resolve(self, verbose=False):
        for it in range(10):
            changed = self._pass()
            if not changed: break
        else:
            raise RuntimeError('resolve did not converge')
    def _pass(self):
        changed = False
        lq = []
        vq = []
        hist = []
        def dist_to(pred):
            d = 0
            for ins, st in reversed(hist):
                if ins is not None and pred(ins): return d
                d += st
                if d > 24: return None
            return None
        for ins in self.trace():
            k = ins.kind
            if k in ('label', 'dir'): continue
            touched = set(ins.rd) | set(ins.wr)
            need_l = None; need_v = None
            for idx, (w, lr, sm) in enumerate(lq):
                if (touched & set(w)) or (set(ins.lw) & set(lr)):
                    n = 0 if any(x[2] for x in lq) else len(lq) - 1 - idx
                    need_l = n if need_l is None else min(need_l, n)
            for idx, (w, lw) in enumerate(vq):
                if (touched & set(w)) or (set(ins.lr) & set(lw)):
                    n = len(vq) - 1 - idx
                    need_v = n if need_v is None else min(need_v, n)
            if need_l is not None:
                need_l = min(need_l, 15)
                if ins.pre.get('lgkm', 99) > need_l: ins.pre['lgkm'] = need_l; changed = True
            if need_v is not None:
                need_v = min(need_v, 63)
                if ins.pre.get('vm', 99) > need_v: ins.pre['vm'] = need_v; changed = True
            if 'lgkm' in ins.pre or 'vm' in ins.pre:
                if 'lgkm' in ins.pre: lq = keep(lq, ins.pre['lgkm'])
                if 'vm' in ins.pre: vq = keep(vq, ins.pre['vm'])
                hist.append((None, 1))
            need = 0
            def req(pred, states):
                nonlocal need
                d = dist_to(pred)
                if d is not None and d < states: need = max(need, states - d)
            rd = set(ins.rd); wr = set(ins.wr)
            isvalu = k in ('valu', 'trans')
            VAL = ('valu', 'trans')
            if k in ('mfma8', 'mfma4'):
                req(lambda p: p.kind in VAL and set(p.wr) & rd, 2)
                ab = set(ins.srcab); c = set(ins.srcc)
                req(lambda p: p.kind == 'mfma8' and set(p.wr) & ab, 12)
                req(lambda p: p.kind == 'mfma4' and set(p.wr) & ab, 8)
                req(lambda p: p.kind == 'mfma8' and set(p.wr) & c and not (p.wr == ins.srcc and k == 'mfma8'), 10)
                req(lambda p: p.kind == 'mfma4' and set(p.wr) & c and not (p.wr == ins.srcc and k == 'mfma4'), 6)
                req(lambda p: p.kind == 'mfma8' and set(p.wr) & wr and not (p.wr == ins.srcc), 10)
                req(lambda p: p.kind in VAL and 'exec' in p.wr, 4)
            if isvalu or k in ('ds_r', 'ds_w', 'vm_ld', 'vm_st', 'dma'):
                req(lambda p: p.kind == 'mfma8' and set(p.wr) & (rd | wr), 12)
                req(lambda p: p.kind == 'mfma4' and set(p.wr) & (rd | wr), 8)
            if isvalu:
                req(lambda p: p.kind == 'mfma8' and set(p.srcc) & wr, 7)
                req(lambda p: p.kind == 'mfma4' and set(p.srcc) & wr, 3)
                if k != 'trans':
                    req(lambda p: p.kind == 'trans' and set(p.wr) & rd, 1)
                if ins.mn.startswith('v_permlane'):
                    req(lambda p: p.kind in VAL and set(p.wr) & rd, 2)
                if ins.mn.startswith('v_readfirstlane') or ins.mn.startswith('v_readlane'):
                    req(lambda p: p.kind in VAL and set(p.wr) & rd, 1)
                srd_ = {r for r in rd if r[0] == 's' or r == 'vcc'}
                if ins.mn.startswith('v_cndmask') and len(ins.text.split(',')) == 3: srd_.add('vcc')
                req(lambda p: p.kind in VAL and set(p.wr) & srd_, 2)
                req(lambda p: p.kind == 'vm_st' and set(p.data) & wr, 2)
                if 'dpp' in ins.text or 'row_' in ins.text or 'quad_perm' in ins.text:
                    req(lambda p: p.kind in VAL and set(p.wr) & rd, 2)
            if k in ('ds_r', 'vm_ld'):
                req(lambda p: p.kind == 'vm_st' and set(p.data) & wr, 1)
            if k in ('vm_ld', 'vm_st', 'dma'):
                sr = {r for r in rd if r[0] == 's'}
                req(lambda p: p.kind in VAL and set(p.wr) & sr, 5)
            if k == 'dma':
                req(lambda p: p.kind == 'salu' and 'm0' in p.wr, 1)
            if k in ('salu', 'branch'):
                sr = {r for r in rd if r[0] == 's' or r == 'vcc'}
                req(lambda p: p.kind in VAL and set(p.wr) & sr, 2)
                if 'vcc' in ins.mn: req(lambda p: p.kind in VAL and 'vcc' in p.wr, 5)
            have = ins.pre.get('nop', 0)
            if need > have:
                ins.pre['nop'] = need; changed = True; have = need
            if have: hist.append((None, have))
            if k == 'wait':
                m = re.search(r'lgkmcnt\((\d+)\)', ins.text)
                if m:
                    lq = keep(lq, int(m.group(1)))
                m = re.search(r'vmcnt\((\d+)\)', ins.text)
                if m:
                    vq = keep(vq, int(m.group(1)))
            elif k == 'ds_r': lq.append((ins.wr, ins.lr, False))
            elif k == 'ds_w': lq.append(((), (), False))
            elif k == 'smem': lq.append((ins.wr, (), True))
            elif k == 'vm_ld': vq.append((ins.wr, ()))
            elif k == 'vm_st': vq.append(((), ins.lw))
            elif k == 'dma': vq.append(((), ins.lw))
            if len(vq) > 63: raise RuntimeError('vmcnt overflow at ' + ins.text)
            st = 1
            if k == 'nop': st = int(ins.text.split()[1], 0) + 1
            hist.append((ins, st))
            if len(hist) > 64: hist = hist[-40:]
        return changed
    def emit(self):
        out = []
        stats = {'nop': 0, 'wait': 0, 'n': 0}
        for ins in self.flat():
            if ins.kind == 'label':
                out.append(ins.text); continue
            w = []
            if 'vm' in ins.pre: w.append('vmcnt(%d)' % ins.pre['vm'])
            if 'lgkm' in ins.pre: w.append('lgkmcnt(%d)' % ins.pre['lgkm'])
            if w: out.append('  s_waitcnt ' + ' '.join(w)); stats['wait'] += 1
            n = ins.pre.get('nop', 0)
            while n > 0:
                c = min(n, 16); out.append('  s_nop %d' % (c - 1)); n -= c; stats['nop'] += c
            out.append('  ' + ins.text); stats['n'] += 1
        return '\n'.join(out) + '\n', stats
```

```python
import sys, math, struct
from asmlib import *
NAME = "standalone__mha_block_cached__near_ridge"
OPT = dict(stamp=0, rot=0, wot=2, wpre=10, oxn=3, wls=6, nse=24, oxs=2, wl0=3*24+16, wosz=1, noox=0, pe=12, st2=0, pub=37, pol=3, pst='sc1', rld='', oxl='sc1', itst=0, pad=0, tn=0, tfl='', tg0=33, tgs=12, tstr=7, ax='', kvsz=0x20000, xw=1, kmask=63, lead=0, lag=4, map=0, rh=2, rb=1, rmask=7, k2x='', r2b=16, r2n=2, r2m=4,
           ost='sc1', old='', wold='', xld='', wqld='', pre1=8, bud=24, tbud=28)
for a in sys.argv[2:]:
    k, v = a.split('='); OPT[k] = int(v, 0) if v.lstrip('-').replace('x', '').isdigit() else v.replace('+', ' ')

def f2u(x): return struct.unpack('<I', struct.pack('<f', x))[0]
SCALE = math.log2(math.e) / math.sqrt(128.0)

XBLK = 1056; XSZ = 24 * XBLK
WQSZ = 32768
BUFSZ = XSZ + WQSZ
BUFA = 163840 - 2 * BUFSZ
KT = 8 * XBLK
KSL = 2 * KT
VSL = 16384
SLOT = KSL + VSL
PAIR = 2 * SLOT
O_WS_OFF = 0x1000000
O_BYTES = 16 * 192 * 4096 * 2
FLAG_OFF = 0x800000
P_WS_OFF = 0x4000000
P_BYTES = 4 * 16 * 192 * 512 * 2

def srd(p, d, lo, hi, size):
    p.I(f"s_mov_b32 s{d}, s{lo}\ns_and_b32 s{d+1}, s{hi}, 0xffff\ns_mov_b32 s{d+2}, {size}\ns_mov_b32 s{d+3}, 0x00020000")

def stamp(p, idx):
    if OPT['stamp']:
        p.I(f"s_memrealtime s[78:79]\ns_memtime s[76:77]\ns_waitcnt lgkmcnt(0)\ns_mov_b32 s{80+idx}, s78\ns_mov_b32 s{90+idx}, s76")

def stamp_out(p, nst, base_off):
    if not OPT['stamp']: return
    p.I(f"""
s_mov_b32 s72, s18
s_and_b32 s73, s19, 0xffff
s_mov_b32 s74, 0x1000000
s_mov_b32 s75, 0x00020000
s_lshl_b32 s76, s2, 2
s_add_u32 s76, s76, s3
s_lshl_b32 s76, s76, 7
s_add_u32 s76, s76, {base_off}
v_mov_b32 v1, 0
""")
    for i in range(nst):
        p.I(f"v_mov_b32 v2, s{80+i}\nbuffer_store_dword v2, v1, s[72:75], s76 offen offset:{4*i}")
        p.I(f"v_mov_b32 v2, s{90+i}\nbuffer_store_dword v2, v1, s[72:75], s76 offen offset:{64+4*i}")

def stamp_dbg(p, nst, wg):
    if OPT['stamp'] != 2: return
    p.I(f"""
s_mov_b32 s72, s16
s_and_b32 s73, s17, 0xffff
s_mov_b32 s74, 256
s_mov_b32 s75, 0x00020000
s_lshl_b32 s76, s2, 2
s_add_u32 s76, s76, s3
s_sub_u32 s76, s76, {wg*4}
s_lshl_b32 s76, s76, 12
v_mov_b32 v1, 0
""")
    for i in range(1, nst):
        p.I(f"s_sub_u32 s77, s{80+i}, s80\nv_mov_b32 v2, s77\nbuffer_store_dword v2, v1, s[72:75], s76 offen offset:{4*i}")

def cost(x):
    t = x.text if isinstance(x, Ins) else x
    mn = t.split()[0]
    if mn.startswith('v_exp') or mn.startswith('v_rcp'): return 8
    if mn.startswith('ds_write'): return 8
    return 4

class Slots(dict):
    def put(self, g, x):
        self.setdefault(g, []).extend(x if isinstance(x, list) else [x])

def schedule(p, mfmas, fixed, streams=(), budget=None):
    streams = [list(s) for s in streams]
    def em(x):
        if isinstance(x, Ins): p.add(x)
        else: p.I(x)
    for g, m in enumerate(mfmas):
        p.I(m)
        used = 0
        for f in fixed.get(g, []):
            em(f); used += cost(f)
        b = budget(g) if budget else OPT['bud']
        while True:
            c = [s for s in streams if s and s[0][1] <= g]
            if not c: break
            fs = [s for s in c if any(x[2] <= g for x in s)]
            forced = bool(fs)
            s = fs[0] if fs else min(c, key=lambda s: min(x[2] for x in s[:8]))
            if used + cost(s[0][0]) <= b or forced:
                op = s.pop(0)[0]; em(op); used += cost(op)
            else:
                break
    for s in streams:
        for op, _, _ in s: em(op)

def gen_k1():
    p = Prog(); I = p.I
    vK, vV0, vV1, vOK, vOV = range(240, 245)
    vL = [245, 246, 247]
    vX, vW0, vW1, vOX, vOW = range(248, 253)
    vWK, vWV = 253, 254
    vM = [vX, vW0, vW1]
    vT = [vOX, vOW, vWV]
    vNC = 252
    S = [64, 112]; NEGM = [224, 160, 176]
    QB = [192, 0, 32]
    FR = 224
    def qfrag(t, ksd): b = QB[t] + 4 * ksd; return f"v[{b}:{b+3}]"
    def acc(t, dt): return (t * 4 + dt) * 16
    I("s_cmp_ge_u32 s2, 256\ns_cbranch_scc1 L1_end")
    stamp(p, 0)
    I("s_load_dwordx16 s[4:19], s[0:1], 0")
    I(f"""
v_lshrrev_b32 v1, 6, v0
v_and_b32 v0, 63, v0
v_readfirstlane_b32 s3, v1
s_and_b32 s66, s2, 7
s_lshr_b32 s67, s2, 3
s_and_b32 s48, s66, 1
s_lshl_b32 s48, s48, 3
s_lshr_b32 s68, s67, 2
s_add_u32 s48, s48, s68
s_lshr_b32 s49, s66, 1
s_lshl_b32 s49, s49, 2
s_and_b32 s69, s67, 3
s_add_u32 s49, s49, s69
s_lshl_b32 s65, s66, 3
s_add_u32 s65, s65, s68
s_mul_i32 s52, s69, {OPT['rh']}
s_mul_i32 s68, s68, {OPT['rb']}
s_add_u32 s52, s52, s68
s_and_b32 s52, s52, {OPT['rmask']}
v_lshrrev_b32 v2, 3, v0
v_and_b32 v3, 7, v0
v_bfe_u32 v4, v0, 4, 1
v_xor_b32 v5, v3, v4
v_lshlrev_b32 v5, 4, v5
v_lshlrev_b32 v6, 2, v4
v_xor_b32 v6, v3, v6
v_lshlrev_b32 v6, 4, v6
v_lshl_add_u32 v{vOX}, v2, 10, v5
v_lshl_add_u32 v{vOW}, v2, 13, v6
s_mul_i32 s50, s48, {192*1024}
s_mul_i32 s66, s3, {48*1024}
s_add_u32 s50, s50, s66
s_lshl_b32 s51, s49, 9
s_lshl_b32 s66, s3, 7
s_add_u32 s51, s51, s66
s_mul_i32 s57, s3, {6*XBLK}
s_lshl_b32 s58, s3, 10
s_waitcnt lgkmcnt(0)
""")
    srd(p, 20, 4, 5, 16 * 192 * 1024 * OPT['xw'])
    srd(p, 24, 10, 11, 512 * 8192 * OPT['xw'])
    def stage_dma(par):
        buf = BUFA + par * BUFSZ
        out = []
        out.append(["s_lshl_b32 s54, s52, 7", "s_add_u32 s54, s54, s50", "s_lshl_b32 s55, s52, 19", "s_add_u32 s55, s55, s51",
                    "s_add_u32 s52, s52, 1", "s_and_b32 s52, s52, 7"])
        for j in range(6):
            out.append([f"s_add_u32 m0, s57, {buf + j*XBLK}", f"s_add_u32 s56, s54, {j*8192}",
                        f"buffer_load_dwordx4 v{vOX}, s[20:23], s56 offen {OPT['xld']} lds"])
        for rg in range(8):
            out.append([f"s_add_u32 m0, s58, {buf + XSZ + rg*4096}", f"s_add_u32 s56, s55, {rg*65536}",
                        f"buffer_load_dwordx4 v{vOW}, s[24:27], s56 offen {OPT['wqld']} lds"])
        return out
    def emit_groups(gs):
        for g in gs:
            for x in g: I(x)
    emit_groups(stage_dma(0))
    stamp(p, 1)
    I(f"""
v_lshl_add_u32 v{vOK}, v2, 8, v5
v_lshl_add_u32 v{vOV}, v2, 8, v6
s_lshl_b32 s66, s3, 11
v_add_u32 v{vOK}, s66, v{vOK}
v_add_u32 v{vOV}, s66, v{vOV}
s_lshl_b32 s66, s48, 5
s_lshl_b32 s67, s49, 1
s_add_u32 s66, s66, s67
s_lshl_b32 s66, s66, 17
s_add_u32 s28, s6, s66
s_addc_u32 s29, s7, 0
s_and_b32 s29, s29, 0xffff
s_add_u32 s32, s28, 0x20000
s_addc_u32 s33, s29, 0
s_add_u32 s36, s8, s66
s_addc_u32 s37, s9, 0
s_and_b32 s37, s37, 0xffff
s_add_u32 s40, s36, 0x20000
s_addc_u32 s41, s37, 0
s_mov_b32 s30, {OPT['kvsz']}
s_mov_b32 s34, {OPT['kvsz']}
s_mov_b32 s38, {OPT['kvsz']}
s_mov_b32 s42, {OPT['kvsz']}
s_mov_b32 s31, 0x00020000
s_mov_b32 s35, 0x00020000
s_mov_b32 s39, 0x00020000
s_mov_b32 s43, 0x00020000
s_add_u32 s44, s18, {O_WS_OFF}
s_addc_u32 s45, s19, 0
s_and_b32 s45, s45, 0xffff
s_mov_b32 s46, {O_BYTES}
s_mov_b32 s47, 0x00020000
s_mul_i32 s61, s3, {XBLK}
s_lshl_b32 s62, s3, 10
s_add_u32 s62, s62, {KSL}
s_mov_b32 s64, {f2u(SCALE):#x}
v_lshlrev_b32 v7, 4, v0
v_add_u32 v{vWK}, s61, v7
v_add_u32 v{vWV}, s62, v7
s_lshr_b32 s66, s3, 1
s_and_b32 s67, s3, 1
v_and_b32 v2, 31, v0
v_lshrrev_b32 v3, 3, v2
v_mul_u32_u24 v3, {XBLK}, v3
v_and_b32 v4, 7, v2
v_lshl_add_u32 v3, v4, 7, v3
v_lshrrev_b32 v4, 5, v0
v_bfe_u32 v5, v0, 1, 1
v_xor_b32 v5, v4, v5
v_lshl_add_u32 v3, v5, 4, v3
s_mul_i32 s68, s67, {12*XBLK}
s_add_u32 s68, s68, {BUFA}
v_add_u32 v{vX}, s68, v3
s_mul_i32 s68, s66, {KT}
v_add_u32 v{vK}, s68, v3
v_bfe_u32 v2, v0, 2, 2
v_lshlrev_b32 v2, 7, v2
v_bfe_u32 v3, v0, 3, 1
v_lshl_add_u32 v2, v3, 6, v2
v_bfe_u32 v3, v0, 4, 1
v_lshl_add_u32 v2, v3, 5, v2
v_and_b32 v3, 3, v0
v_lshl_add_u32 v5, v3, 3, v2
v_lshl_add_u32 v5, v4, 9, v5
s_lshl_b32 s68, s66, 13
s_add_u32 s68, s68, {KSL}
v_add_u32 v{vV0}, s68, v5
v_xor_b32 v{vV1}, 64, v{vV0}
v_and_b32 v3, 1, v0
v_lshl_add_u32 v2, v3, 4, v2
v_bfe_u32 v3, v0, 1, 1
v_lshl_add_u32 v2, v3, 3, v2
v_lshl_add_u32 v2, v4, 12, v2
s_lshl_b32 s68, s66, 11
s_add_u32 s68, s68, {BUFA + XSZ}
v_add_u32 v{vW0}, s68, v2
v_xor_b32 v{vW1}, 64, v{vW0}
s_mov_b32 s63, {BUFSZ}
s_mov_b32 s59, 0
s_mov_b32 s72, s16
s_and_b32 s73, s17, 0xffff
s_mov_b32 s74, 256
s_mov_b32 s75, 0x00020000
s_lshl_b32 s68, s3, 6
v_add_u32 v2, s68, v0
v_lshlrev_b32 v255, 20, v2
""")
    for r in vL: I(f"v_mov_b32 v{r}, 0")
    st1 = stage_dma(1)
    emit_groups(st1[:1 + OPT['pre1']])
    def k_dma(dstreg, dstoff, soff):
        return [(f"s_add_u32 m0, {dstreg}, {dstoff + hd*KT + half*(4*XBLK-128)}",
                 f"buffer_load_dwordx4 v{vOK}, s[{28+4*hd}:{31+4*hd}], {soff} offen offset:{half*128} nt lds") for hd in range(2) for half in range(2)]
    def v_dma(dstreg, dstoff, soff):
        return [(f"s_add_u32 m0, {dstreg}, {dstoff + hd*8192 + half*(4096-128)}",
                 f"buffer_load_dwordx4 v{vOV}, s[{36+4*hd}:{39+4*hd}], {soff} offen offset:{half*128} nt lds") for hd in range(2) for half in range(2)]
    PFT = [('K', 1), ('V', 1), ('K', 2), ('V', 2), ('K', 3), ('V', 3), ('K', 4)]
    def pf_load(n):
        kind, st = PFT[n]
        out = [[f"s_mov_b32 s60, {st*8192}"]]
        for hd in range(2):
            for half in range(2):
                r = 16 * n + 4 * (hd * 2 + half)
                sr = (28 if kind == 'K' else 36) + 4 * hd
                out.append([f"buffer_load_dwordx4 a[{r}:{r+3}], v{vOK if kind == 'K' else vOV}, s[{sr}:{sr+3}], s60 offen offset:{half*128} nt"])
        return out
    def pf_write(n):
        kind, st = PFT[n]
        out = []
        for hd in range(2):
            for half in range(2):
                r = 16 * n + 4 * (hd * 2 + half)
                off = (st & 1) * SLOT + (hd * KT + half * 4 * XBLK if kind == 'K' else hd * 8192 + half * 4096)
                out.append(f"ds_write_b128 v{vWK if kind == 'K' else vWV}, a[{r}:{r+3}] offset:{off}")
        return out
    NA, NB = 112, 144
    def a_read(ks, dt, sec, dst): return f"ds_read_b64_tr_b16 a[{dst+2*sec}:{dst+2*sec+1}], v{vW1 if dt & 1 else vW0} offset:{ks*8192 + (dt>>1)*1024 + sec*512}"
    def b_read(ks, t, dst): return f"ds_read_b128 a[{dst}:{dst+3}], v{vX} offset:{t*4*XBLK + ks*32}"
    def qp_reads(ks):
        par = ks & 1
        A = [a_read(ks, dt, sec, NA + 16 * par + 4 * dt) for dt in range(4) for sec in range(2)]
        B = [b_read(ks, t, NB + 12 * par + 4 * t) for t in range(3)]
        return A[:2] + B + A[2:]
    def qp_mfmas(first):
        ms = []
        for ks in range(4):
            par = ks & 1
            for dt in range(4):
                for t in range(3):
                    d = f"v[{acc(t,dt)}:{acc(t,dt)+15}]"
                    a = NA + 16 * par + 4 * dt; b = NB + 12 * par + 4 * t
                    ms.append(f"v_mfma_f32_32x32x16_bf16 {d}, a[{a}:{a+3}], a[{b}:{b+3}], {'0' if first and ks == 0 else d}")
        return ms
    A7 = [112, 168, 128, 144]; B7 = [192, 208, 192]
    toggle = [f"v_add_u32 v{vX}, s63, v{vX}", f"v_add_u32 v{vW0}, s63, v{vW0}", f"v_add_u32 v{vW1}, s63, v{vW1}", "s_sub_u32 s63, 0, s63"]
    def qp_stage(s, carry, extra, nvm):
        sl = Slots()
        for ks in range(3):
            for i, r in enumerate(qp_reads(ks + 1)): sl.put(ks * 12 + i, r)
        allg = list(carry) + list(extra)
        step = 2 if len(allg) <= 17 else 1
        for i, g in enumerate(allg): sl.put(min(1 + step * i, 34), list(g))
        sl.put(35, [f"s_waitcnt vmcnt({nvm}) lgkmcnt(0)", "s_barrier"] + toggle)
        if s < 6:
            for i, r in enumerate(qp_reads(0)): sl.put(36 + i, r)
            post = stage_dma(s & 1)
            for i, g in enumerate(post[:6]): sl.put(36 + 2 * i, g)
            left = post[6:]
        else:
            rs = [a_read(0, dt, sec, A7[0] + 4 * dt) for dt in range(4) for sec in range(2)]
            rs = rs[:2] + [b_read(0, 0, B7[0])] + rs[2:] + [a_read(1, dt, sec, A7[1] + 4 * dt) for dt in range(4) for sec in range(2)] + [b_read(ks, 0, B7[0] + 4 * ks) for ks in (1, 2, 3)]
            for i, r in enumerate(rs): sl.put(36 + (i * 12) // len(rs), r)
            left = []
        schedule(p, qp_mfmas(s == 0), sl)
        return left
    I(f"s_waitcnt vmcnt({OPT['pre1']})\ns_barrier")
    stamp(p, 2)
    for r in qp_reads(0): I(r)
    kv0 = [list(x) for x in (k_dma("s61", 0, "s59") + v_dma("s62", 0, "s59"))]
    kv0 = [[g[0], "s_nop 0", g[1]] for g in kv0]
    carry = qp_stage(0, st1[1 + OPT['pre1']:], kv0, 8)
    stamp(p, 3)
    for s in range(1, 7):
        carry = qp_stage(s, carry, pf_load(s - 1), 4)
    stamp(p, 4)
    def fr(n): return FR + (n % 8) * 4
    def k_read(ks, slotoff): b = fr(ks); return f"ds_read_b128 a[{b}:{b+3}], v{vK} offset:{slotoff + (ks>>2)*4*XBLK + (ks&3)*32}"
    def v_read(j, sec, slotoff):
        ks, dt = j >> 2, j & 3
        b = fr(8 + j) + 2 * sec
        return f"ds_read_b64_tr_b16 a[{b}:{b+1}], v{vV1 if dt & 1 else vV0} offset:{slotoff + ((dt>>1)*4 + 2*ks + sec)*1024}"
    def s_mfma(buf, t, ks, czero=False):
        d = f"v[{buf+t*16}:{buf+t*16+15}]"
        c = d if ks else ("0" if czero else f"v[{NEGM[t]}:{NEGM[t]+15}]")
        return f"v_mfma_f32_32x32x16_bf16 {d}, a[{fr(ks)}:{fr(ks)+3}], {qfrag(t, ks)}, {c}"
    def pv_mfma(buf, j, t, czero=False):
        ks, dt = j >> 2, j & 3
        o = (dt * 3 + t) * 16
        b = buf + t * 16 + 8 * ks
        c = "0" if (czero and ks == 0) else f"a[{o}:{o+15}]"
        return f"v_mfma_f32_32x32x16_bf16 a[{o}:{o+15}], a[{fr(8+j)}:{fr(8+j)+3}], v[{b}:{b+3}], {c}"
    def ereg(buf, e):
        h, t, j = e // 24, (e % 24) // 8, e % 8
        return buf + t * 16 + 8 * h + j, t
    def sm_ops(buf, e):
        out = []
        if e < 48:
            r, t = ereg(buf, e); out.append(f"v_exp_f32 v{r}, v{r}")
        if 1 <= e <= 48:
            r, t = ereg(buf, e - 1); out.append(f"v_add_f32 v{vL[t]}, v{vL[t]}, v{r}")
        if e >= 2 and e % 2 == 0 and e <= 48:
            r, t = ereg(buf, e - 2); base = r - ((e - 2) % 8)
            out.append(f"v_cvt_pk_bf16_f32 v{base + ((e-2) % 8)//2}, v{r}, v{r+1}")
        return out
    ms = []
    for t in range(3):
        for ks in range(4):
            for dt in range(4):
                d = f"v[{acc(t,dt)}:{acc(t,dt)+15}]"
                a = A7[ks] + 4 * dt; b = B7[t] + 4 * ks
                ms.append(f"v_mfma_f32_32x32x16_bf16 {d}, a[{a}:{a+3}], a[{b}:{b+3}], {d}")
    ms += [s_mfma(S[0], t, ks, True) for t in range(3) for ks in range(8)]
    ms += [s_mfma(S[1], t, ks) for t in range(3) for ks in range(8)]
    ms += [pv_mfma(S[0], j, t, True) for j in range(8) for t in range(3)]
    sl = Slots()
    rs = [a_read(ks, dt, sec, A7[ks] + 4 * dt) for ks in (2, 3) for dt in range(4) for sec in range(2)]
    for i, r in enumerate(rs): sl.put(i // 2, r)
    for ks in range(4): sl.put(8 + ks, b_read(ks, 1, B7[1] + 4 * ks))
    for ks in range(4): sl.put(17 + ks, b_read(ks, 2, B7[2] + 4 * ks))
    for i, g in enumerate(pf_load(6)): sl.put(1 + 2 * i, g)
    w1 = pf_write(0) + pf_write(1)
    for i, x in enumerate(w1): sl.put(9 + i, x)
    sl.put(17, [f"v_add_u32 v{vWK}, {PAIR}, v{vWK}", f"v_add_u32 v{vWV}, {PAIR}, v{vWV}"])
    w2 = pf_write(2) + pf_write(3)
    for i, x in enumerate(w2): sl.put(21 + i, x)
    sl.put(30, ["s_waitcnt lgkmcnt(0)", "s_barrier"])
    w3 = pf_write(4) + pf_write(5)
    for i, x in enumerate(w3): sl.put(31 + 2 * i, x)
    for ks in range(8): sl.put(32 + 2 * ks, k_read(ks, 0))
    sl.put(58, [f"v_subrev_u32 v{vWK}, {PAIR}, v{vWK}"])
    sl.put(60, ["s_waitcnt lgkmcnt(0)", "s_barrier"])
    for i, x in enumerate(pf_write(6)): sl.put(61 + i, x)
    for ks in range(8): sl.put(65 + ks, k_read(ks, SLOT))
    for j in range(8):
        g0 = max(89 + j, 72 + 15 + 3 * j)
        sl.put(g0, v_read(j, 0, 0)); sl.put(g0 + (0 if j < 2 else 1), v_read(j, 1, 0))
    sl.put(72 + 38, [f"v_add_u32 v{vK}, {PAIR}, v{vK}"])
    sl.put(72 + 40, ["s_waitcnt lgkmcnt(0)", "s_barrier"])
    sl.put(72 + 42, k_read(0, 0)); sl.put(72 + 44, k_read(1, 0)); sl.put(72 + 46, k_read(2, 0))
    sl.put(72 + 43, [f"s_mov_b32 s59, {5*8192}", f"s_mov_b32 s60, {4*8192}"])
    sl.put(72 + 45, [f"s_add_u32 s67, s62, {PAIR}", "s_xor_b32 s69, s67, s62"])
    sl.put(72 + 47, [f"s_add_u32 s66, s61, {PAIR}", "s_xor_b32 s68, s66, s61"])
    sl.put(72 + 41, [f"s_mov_b32 s63, {-PAIR & 0xffffffff:#x}", f"s_mov_b32 s70, {PAIR}"])
    sl.put(72 + 39, ["s_mov_b32 s53, 0"])
    sl.put(12, [f"s_add_u32 s24, s18, {FLAG_OFF}", "s_addc_u32 s25, s19, 0", "s_and_b32 s25, s25, 0xffff"])
    sl.put(13, ["s_mov_b32 s26, 8192", "s_lshl_b32 s54, s65, 7", "s_lshl_b32 s55, s65, 2"])
    sl.put(66, "buffer_load_dwordx4 a[208:211], v255, s[24:27], s54 offen sc1")
    sl.put(14, ["s_mov_b32 s20, s12", "s_and_b32 s21, s13, 0xffff", f"s_mov_b32 s22, {4096*1024*OPT['wosz']}"])
    if OPT['wot']:
        sl.put(2, ["s_lshr_b32 s56, s49, 2", "s_lshl_b32 s56, s56, 5", "s_lshr_b32 s57, s2, 3"])
        sl.put(4, ["s_add_u32 s56, s56, s57", "s_lshl_b32 s56, s56, 2", "s_add_u32 s56, s56, s3"])
        sl.put(6, ["s_lshl_b32 s56, s56, 13", f"v_mbcnt_lo_u32_b32 v{vOX}, -1, 0", f"v_mbcnt_hi_u32_b32 v{vOX}, -1, v{vOX}"])
        sl.put(8, [f"v_lshlrev_b32 v{vOX}, 7, v{vOX}"])
        sl.put(47, [f"buffer_load_dword a212, v{vOX}, s[20:23], s56 offen"])
        if OPT['wot'] > 1: sl.put(49, [f"buffer_load_dword a213, v{vOX}, s[20:23], s56 offen offset:64"])
    NG = 72 + 30
    sl.put(NG, [f"v_accvgpr_read_b32 v{vOX}, a208", f"v_accvgpr_read_b32 v{vOW}, a209"])
    sl.put(NG + 1, [f"v_readfirstlane_b32 s56, v{vOX}", f"v_readfirstlane_b32 s57, v{vOW}"])
    sl.put(NG + 2, [f"v_accvgpr_read_b32 v{vOX}, a210", f"v_accvgpr_read_b32 v{vOW}, a211"])
    sl.put(NG + 3, [f"v_readfirstlane_b32 s58, v{vOX}", f"v_readfirstlane_b32 s50, v{vOW}", "s_mov_b32 s51, 1"])
    for i, r in enumerate((56, 57, 58, 50)):
        sl.put(NG + 4 + i, [f"s_min_u32 s{r}, s{r}, 31", f"s_bitset1_b32 s51, s{r}"])
    sl.put(NG + 8, ["s_ff0_i32_b32 s51, s51", f"v_mov_b32 v{vNC+1}, 0"])
    sl.put(NG + 9, [f"v_mov_b32 v{vNC}, s51"])
    sl.put(NG + 11, f"buffer_atomic_cmpswap v[{vNC}:{vNC+1}], v255, s[72:75], s55 offen sc0 sc1")
    conv = []
    for t in range(3):
        for dt in range(4):
            a = acc(t, dt)
            ear = 16 * t + 12 + dt + 3
            for k2 in range(2):
                dl = 48 + 8 * t + 2 * dt + k2 - 2
                if t == 1 and dt < 3: dl = min(dl, 48 + 8 * dt - 2)
                for pr in range(4):
                    r = a + 8 * k2 + 2 * pr
                    conv.append((f"v_mul_f32 v{r}, s64, v{r}", ear, dl))
                    conv.append((f"v_mul_f32 v{r+1}, s64, v{r+1}", ear, dl))
                for pr in range(4):
                    r = a + 8 * k2 + 2 * pr
                    conv.append((f"v_cvt_pk_bf16_f32 v{QB[t] + 4*(2*dt+k2) + pr}, v{r}, v{r+1}", ear, dl))
    mx = []
    for t in range(3):
        b = S[0] + t * 16
        ear = 48 + 8 * t + 7 + 3
        if t > 0: ear = max(ear, 71)
        dl = 72 + 8 * t - 2
        ear0 = 48 + 8 * t + 7 + 3
        ops = [f"v_max3_f32 v{vM[t]}, v{b}, v{b+1}, v{b+2}"]
        ops += [f"v_max3_f32 v{vM[t]}, v{vM[t]}, v{b+r}, v{b+r+1}" for r in range(3, 15, 2)]
        ops += [f"v_max_f32 v{vM[t]}, v{vM[t]}, v{b+15}", f"v_mov_b32 v{vT[t]}, v{vM[t]}", "s_nop 1", f"v_permlane32_swap_b32 v{vT[t]}, v{vM[t]}",
                f"v_max_f32 v{vM[t]}, v{vM[t]}, v{vT[t]}"]
        mx += [(o, ear0, dl) for o in ops]
        mx += [(f"v_sub_f32 v{NEGM[t]+r}, 0, v{vM[t]}", ear, dl) for r in range(16)]
    sm0 = []
    for e in range(49):
        if e < 48:
            r, t = ereg(S[0], e)
            ear = 72 + 8 * t - 1
            dl = (96 + t - 3) if e < 24 else (108 + t - 3)
            sm0.append((f"v_sub_f32 v{r}, v{r}, v{vM[t]}", ear, dl))
        else:
            dl = 108 + 2 - 3
        dprev = dl if e == 0 else ((96 + ((e-1) % 24)//8 - 2) if e - 1 < 24 else (108 + ((e-1) % 24)//8 - 2))
        for o in sm_ops(S[0], e): sm0.append((o, ear, min(dl, dprev) if not o.startswith('v_exp') else dl))
    sm1 = []
    for e in range(21):
        for o in sm_ops(S[1], e): sm1.append((o, 72 + 27, 119))
    schedule(p, ms, sl, [conv, mx, sm0 + sm1], budget=lambda g: OPT['tbud'])
    stamp(p, 5)
    def attn_iter(par):
        cur, prev = S[par ^ 1], S[par]
        sl = Slots()
        if par == 0: gs = k_dma("s61", 0, "s59") + v_dma("s67", SLOT, "s60")
        else: gs = k_dma("s61", SLOT, "s59") + v_dma("s62", 0, "s60")
        dg = [0, 4, 6, 10, 12, 16, 22, 28]
        sl.put(0, gs[0][0])
        kslot = SLOT if par == 0 else 0
        for ks, g in zip(range(3, 8), [1, 3, 7, 9, 13]): sl.put(g, k_read(ks, kslot))
        vslot = par * SLOT
        for j in range(8):
            sl.put(15 + 3 * j, v_read(j, 0, vslot)); sl.put(16 + 3 * j, v_read(j, 1, vslot))
        for g in range(48):
            if g <= 27: sl.put(g, sm_ops(prev, g + 21) if g < 27 else sm_ops(prev, 48))
            if g >= 27: sl.put(g, sm_ops(cur, g - 27))
        for k, g in enumerate(dg):
            sl.put(g, gs[k][1])
            if k < 7: sl.put(g if g < 16 else g + 2, gs[k + 1][0])
        sl.put(32, "s_add_u32 s59, s59, 8192"); sl.put(34, "s_add_u32 s60, s60, 8192")
        sl.put(40, ["s_waitcnt vmcnt(16) lgkmcnt(0)", "s_barrier"])
        if par == 0:
            sl.put(38, f"v_add_u32 v{vK}, s63, v{vK}"); sl.put(39, "s_sub_u32 s63, 0, s63")
            sl.put(43, "s_add_u32 s53, s53, 1")
        else:
            sl.put(38, f"v_add_u32 v{vV0}, s70, v{vV0}"); sl.put(39, f"v_add_u32 v{vV1}, s70, v{vV1}"); sl.put(41, "s_sub_u32 s70, 0, s70")
            sl.put(43, "s_xor_b32 s61, s61, s68"); sl.put(42, "s_xor_b32 s62, s62, s69"); sl.put(45, "s_xor_b32 s67, s67, s69")
        nk = 0 if par == 0 else SLOT
        sl.put(42, k_read(0, nk)); sl.put(44, k_read(1, nk)); sl.put(46, k_read(2, nk))
        if par == 0: sl.put(46, "s_cmp_lt_u32 s53, 7")
        ms = [s_mfma(cur, t, ks) for ks in range(8) for t in range(3)] + [pv_mfma(prev, j, t) for j in range(8) for t in range(3)]
        for i in range(OPT['pad']): sl.put(2 + 3 * i, 's_nop 7')
        if OPT['itst']:
            sl.put(39, "s_memrealtime s[78:79]")
            sl.put(41, ["v_mov_b32 v255, s78", "buffer_store_dword v255, off, s[72:75], s71", "s_add_u32 s71, s71, 4"])
        ax = OPT['ax']
        for g in list(sl):
            keep_ = []
            for x in sl[g]:
                if 'B' in ax and x == 's_barrier': continue
                if 'D' in ax and x.startswith('buffer_load'): continue
                if 'V' in ax and (x.startswith('v_exp') or x.startswith('v_add_f32') or x.startswith('v_cvt')): continue
                if 'L' in ax and x.startswith('ds_read'): continue
                keep_.append(x)
            sl[g] = keep_
        schedule(p, ms, sl)
    if OPT['itst']:
        I(f"""
s_mov_b32 s72, s18
s_and_b32 s73, s19, 0xffff
s_mov_b32 s74, 0x1000000
s_mov_b32 s75, 0x00020000
s_lshl_b32 s71, s2, 2
s_add_u32 s71, s71, s3
s_lshl_b32 s71, s71, 6
s_add_u32 s71, s71, 0x40000
""")
    I("L1_at:")
    p.loop_begin(7)
    attn_iter(1)
    attn_iter(0)
    I("s_cbranch_scc1 L1_at")
    p.loop_end()
    stamp(p, 6)
    buf = S[1]
    vOWo, vA0, vA1, vA2, vA3, vLn = 64, 65, 66, 67, 68, 69
    rOW0, rOW1, rA0, rA1, rA2, rA3, rLn = vOK, vOV, vK, vX, vW0, vW1, 253
    rA4, rA5 = 251, 252
    RC = [224, 226, 228]
    NSL = 10
    def step_of(sig):
        if OPT['rot']: return (sig >> 2, sig & 3)
        return (0, sig) if sig < 4 else (1 + (sig - 4) % 3, (sig - 4) // 3)
    def wo_dma(sig):
        rho, dq = step_of(sig)
        out = [[f"s_add_u32 s56, s{58+rho}, {dq*32768}"]]
        for hd in range(2):
            for half in range(2):
                dst = (sig % NSL) * 16384 + hd * 8192 + (half ^ hd) * 4096 - half * 128
                out.append([f"s_add_u32 m0, s57, {dst}",
                            Ins(f"buffer_load_dwordx4 v{rOW1 if hd else rOW0}, s[20:23], s56 offen offset:{half*128} {OPT['wold']} lds", lw=[f"W{sig}"])])
        return out
    for j in range(3):
        I(v_read(j, 0, SLOT)); I(v_read(j, 1, SLOT))
    setup = f"""v_readfirstlane_b32 s53, v{vNC}
s_cmp_eq_u32 s53, 0
s_cselect_b32 s53, s51, s53
s_and_b32 s71, s49, 3
s_andn2_b32 s66, s49, 3
s_lshl_b32 s67, s71, 8
v_mbcnt_lo_u32_b32 v{rLn}, -1, 0
v_mbcnt_hi_u32_b32 v{rLn}, -1, v{rLn}
s_lshl_b32 s57, s3, 10
s_lshl_b32 s68, s3, 13
v_lshrrev_b32 v64, 3, v{rLn}
v_and_b32 v65, 7, v{rLn}
v_bfe_u32 v66, v{rLn}, 4, 1
v_lshlrev_b32 v67, 2, v66
v_xor_b32 v65, v65, v67
v_lshlrev_b32 v65, 4, v65
v_lshl_add_u32 v65, v64, 10, v65
v_add_u32 v{rOW0}, s68, v65
v_add_u32 v{rOW1}, 0x20000, v{rOW0}""".split('\n')
    for rho in range(4):
        setup += [f"s_add_u32 s69, s71, {rho}", "s_and_b32 s69, s69, 3", "s_add_u32 s69, s69, s66", f"s_lshl_b32 s{58+rho}, s69, 18", f"s_add_u32 s{58+rho}, s{58+rho}, s67"]
    for x in setup: I(x)
    for e in range(21, 25):
        for x in sm_ops(buf, e): I(x)
    sl = Slots()
    for j in range(3, 8):
        sl.put(3 * (j - 3), v_read(j, 0, SLOT)); sl.put(3 * (j - 3) + 1, v_read(j, 1, SLOT))
    for g in range(12):
        sl.put(g, sm_ops(buf, 25 + 2 * g) + sm_ops(buf, 26 + 2 * g))
    fin = []
    for t in range(3): fin.append(f"v_mov_b32 v{vT[t]}, v{vL[t]}")
    for t in range(3): fin.append(f"v_permlane32_swap_b32 v{vT[t]}, v{vL[t]}")
    for t in range(3): fin.append(f"v_add_f32 v{vL[t]}, v{vL[t]}, v{vT[t]}")
    for t in range(3): fin.append(f"v_rcp_f32 v{RC[t]}, v{vL[t]}")
    for t in range(3): fin.append(f"v_mov_b32 v{RC[t]+1}, v{RC[t]}")
    for i, x in enumerate(fin): sl.put(12 + i, x) if i < 12 else sl.put(23, x)
    sl.put(10, ["s_waitcnt vmcnt(0)", "s_barrier"])
    wd = wo_dma(0) + wo_dma(1) + wo_dma(2) + wo_dma(3)
    wd_tail, wd_rest = wd[:15], wd[15:]
    k = 0
    for g in wd_tail:
        if len(g) == 1: sl.put(11 + k, g)
        else:
            sl.put(11 + k, g[0]); sl.put(12 + k, g[1]); k += 1
    for g in range(12, 24):
        items = sl.get(g, [])
        dm = [x for x in items if isinstance(x, Ins)]
        sl[g] = dm + [x for x in items if not isinstance(x, Ins)]
    schedule(p, [pv_mfma(buf, j, t) for j in range(8) for t in range(3)], sl)
    stamp(p, 7)
    def em(x):
        if isinstance(x, Ins): p.add(x)
        else: I(x)
    for g in wd_rest:
        for x in g: em(x)
    I(f"""
s_lshl_b32 s68, s48, 1
s_and_b32 s69, s3, 1
s_add_u32 s68, s68, s69
s_lshl_b32 s68, s68, 5
s_lshr_b32 s69, s3, 1
s_add_u32 s68, s68, s69
s_lshl_b32 s69, s66, 1
s_add_u32 s68, s68, s69
""")
    OXS = [62, 63, 64, 70]
    for rho in range(4):
        I(f"s_add_u32 s69, s71, {rho}\ns_and_b32 s69, s69, 3\ns_lshl_b32 s69, s69, 1\ns_add_u32 s69, s69, s68\ns_mul_i32 s{OXS[rho]}, s69, 24576")
    I(f"""
v_bfe_u32 v232, v{rLn}, 2, 2
v_lshlrev_b32 v232, 7, v232
v_lshrrev_b32 v233, 5, v{rLn}
v_lshl_add_u32 v232, v233, 9, v232
v_bfe_u32 v233, v{rLn}, 3, 1
v_lshl_add_u32 v232, v233, 6, v232
v_bfe_u32 v233, v{rLn}, 4, 1
v_lshl_add_u32 v232, v233, 5, v232
v_and_b32 v233, 1, v{rLn}
v_lshl_add_u32 v232, v233, 4, v232
v_bfe_u32 v233, v{rLn}, 1, 1
v_lshl_add_u32 v232, v233, 3, v232
s_lshr_b32 s69, s3, 1
s_lshl_b32 s69, s69, 13
v_add_u32 v{rA0}, s69, v232
v_xor_b32 v{rA1}, 64, v{rA0}
v_add_u32 v{rA2}, 0x10000, v{rA0}
v_add_u32 v{rA3}, 0x10000, v{rA1}
v_add_u32 v{rA4}, 0x20000, v{rA0}
v_add_u32 v{rA5}, 0x20000, v{rA1}
v_lshlrev_b32 v{rLn}, 4, v{rLn}
""")
    def bfr(sig, ks, t): return (sig % 8) * 24 + (ks * 3 + t) * 4
    stores = []
    for dt in range(4):
        for t in range(3):
            o = (dt * 3 + t) * 16
            tb = 192 + ((dt * 3 + t) % 2) * 16
            for r in range(16): I(f"v_accvgpr_read_b32 v{tb+r}, a{o+r}")
            for pr in range(8): I(f"v_pk_mul_f32 v[{tb+2*pr}:{tb+2*pr+1}], v[{tb+2*pr}:{tb+2*pr+1}], v[{RC[t]}:{RC[t]+1}]")
            for pr in range(8): I(f"v_cvt_pk_bf16_f32 v{bfr(dt, pr >> 2, t) + (pr&3)}, v{tb+2*pr}, v{tb+2*pr+1}")
            for k2 in range(2):
                kk = 2 * dt + k2; b = bfr(dt, k2, t)
                st = [f"s_add_u32 s67, s62, {kk*3072}",
                      Ins(f"buffer_store_dwordx4 v[{b}:{b+3}], v{rLn}, s[44:47], s67 offen offset:{t*1024} {OPT['ost']}", lw=["OST"])]
                if len(stores) + OPT['nse'] * 0 < 0 or dt * 6 + t * 2 + k2 < OPT['nse']:
                    for x in st: em(x)
                else:
                    stores.append(st)
    I(f"s_lshl_b32 s69, s71, 2\ns_add_u32 s52, s54, s69")
    stamp(p, 8)
    p.add(Ins("s_barrier", lr=["W0", "W1", "W2", "W3"]))
    RD = 4
    def a_rd(sig, j, sec):
        ks, n = j >> 2, j & 3
        b = fr(j) + 2 * sec
        sl_ = sig % NSL
        reg = [[rA0, rA1], [rA2, rA3], [rA4, rA5]][sl_ >> 2][n & 1]
        return f"ds_read_b64_tr_b16 a[{b}:{b+1}], v{reg} offset:{(sl_ & 3)*16384 + ((n>>1)*4 + 2*ks + sec)*1024}"
    def op_mfma(sig, j, t):
        ks, n = j >> 2, j & 3
        o = (n * 3 + t) * 16
        b = bfr(sig, ks, t)
        c = "0" if (sig == 0 and ks == 0) else f"a[{o}:{o+15}]"
        return f"v_mfma_f32_32x32x16_bf16 a[{o}:{o+15}], a[{fr(j)}:{fr(j)+3}], v[{b}:{b+3}], {c}"
    def ox_load(sig):
        rho, dq = step_of(sig)
        out = []
        for ks in range(2):
            out.append([f"s_add_u32 s67, s{OXS[rho]}, {(2*dq+ks)*3072}"])
            for t in range(3):
                b = bfr(sig, ks, t)
                out.append([None, f"buffer_load_dwordx4 v[{b}:{b+3}], v{rLn}, s[44:47], s67 offen offset:{t*1024} {OPT['oxl']}"])
        return out
    for j in range(RD):
        I(a_rd(0, j, 0)); I(a_rd(0, j, 1))
    def seg(s0, s1, sl):
        ms = []
        for sig in range(s0, s1):
            base = (sig - s0) * 24
            for j in range(8):
                ms += [op_mfma(sig, j, t) for t in range(3)]
                jn = j + RD
                sn = sig + (jn >> 3)
                if sn < 16:
                    g0 = base + 3 * j + (0 if jn < 8 else 2)
                    g1 = min(g0 + 1, base + 23)
                    sl.put(g0, a_rd(sn, jn & 7, 0)); sl.put(g1, a_rd(sn, jn & 7, 1))
        schedule(p, ms, sl)
    def put_vm(sl, g0, groups, stride):
        g = g0
        for grp in groups:
            if len(grp) == 1: sl.put(g - 1, grp)
            else:
                if grp[0] is not None: sl.put(g - 1, grp[0])
                sl.put(g, grp[1]); g += stride
        return g
    def bar(sl, g, need, extra=()):
        sl.put(g, [Ins("s_waitcnt lgkmcnt(0)"), Ins("s_barrier", lr=list(need))] + list(extra))
    POL = OPT['pol']
    pubst = [f"v_mov_b32 v{vV1}, s53", f"buffer_store_dword v{vV1}, v255, s[24:27], s52 offen sc1"]
    allsl = Slots()
    g = put_vm(allsl, 1, stores, 2)
    wl = []
    for tl in range(4, OPT['wpre']): wl += wo_dma(tl)
    g = put_vm(allsl, max(g, 1) + 1, wl, 2)
    bar(allsl, OPT['pub'], ["OST"], pubst)
    allsl.put(POL * 24 - OPT['pe'], "buffer_load_dwordx4 v[232:235], v255, s[24:27], s54 offen sc1")
    allsl.put(POL * 24 - 2, ["s_mov_b32 s50, 0"])
    g = POL * 24 + 1
    for sig in range(4, 16):
        g = max(g, (sig - 8 + 1) * 24 + 1)
        g = put_vm(allsl, g, ox_load(sig), OPT['oxs'] if sig < 4 + OPT['oxn'] else 4)
    for s_ in (3, 5, 7, 9, 11, 13):
        bar(allsl, s_ * 24 + 13, [f"W{s_+1}", f"W{s_+2}"])
    wl = []
    for tl in range(OPT['wpre'], 14): wl += wo_dma(tl)
    g = put_vm(allsl, OPT['wl0'], wl, OPT['wls'])
    put_vm(allsl, max(g, 5 * 24 + 16), wo_dma(14) + wo_dma(15), OPT['wls'])
    def sub(s0, s1):
        r = Slots()
        for k_, v_ in allsl.items():
            if s0 * 24 <= k_ < s1 * 24: r[k_ - s0 * 24] = list(v_)
        return r
    for x in allsl.get(-1, []) : em(x)
    seg(0, POL, sub(0, POL))
    p.raw(f"""
s_cmp_lg_u32 s3, 0
s_cbranch_scc1 L1_go
L1_poll:
s_waitcnt vmcnt(0)
v_readfirstlane_b32 s66, v232
v_readfirstlane_b32 s67, v233
v_readfirstlane_b32 s68, v234
v_readfirstlane_b32 s69, v235
s_xor_b32 s66, s66, s53
s_xor_b32 s67, s67, s53
s_xor_b32 s68, s68, s53
s_xor_b32 s69, s69, s53
s_or_b32 s66, s66, s67
s_or_b32 s68, s68, s69
s_or_b32 s66, s66, s68
s_cbranch_scc0 L1_go
s_sleep 2
buffer_load_dwordx4 v[232:235], v255, s[24:27], s54 offen sc1
s_add_u32 s50, s50, 1
s_cmp_lt_u32 s50, 0x10000
s_cbranch_scc1 L1_poll
L1_go:
""")
    I("s_barrier")
    stamp(p, 9)
    if OPT['st2']:
        for idx, s_ in ((2, 8), (3, 12)):
            allsl.put(s_ * 24 - 1, ["s_memrealtime s[78:79]", "s_waitcnt lgkmcnt(0)", f"s_mov_b32 s{80+idx}, s78"])
    seg(POL, 16, sub(POL, 16))
    if OPT['st2']: stamp(p, 4)
    I(f"""
s_mul_i32 s66, s3, 24576
v_add_u32 v{rA0}, s66, v{rLn}
s_xor_b32 s67, s3, 2
s_mul_i32 s67, s67, 24576
v_add_u32 v{rA1}, s67, v{rLn}
s_add_u32 s28, s18, {P_WS_OFF}
s_addc_u32 s29, s19, 0
s_and_b32 s29, s29, 0xffff
s_mov_b32 s30, {P_BYTES}
s_lshr_b32 s66, s49, 2
s_lshl_b32 s66, s66, 4
s_add_u32 s66, s66, s48
s_mul_i32 s66, s66, 6
s_and_b32 s67, s3, 1
s_mul_i32 s67, s67, 3
s_add_u32 s66, s66, s67
s_lshl_b32 s66, s66, 15
s_lshl_b32 s67, s71, 13
s_add_u32 s66, s66, s67
s_lshr_b32 s67, s3, 1
s_lshl_b32 s67, s67, 12
s_add_u32 s66, s66, s67
s_waitcnt lgkmcnt(0)
s_barrier
""")
    for i in range(24): I(f"ds_write_b128 v{rA0}, a[{96+4*i}:{99+4*i}] offset:{i*1024}")
    for r in range(96): I(f"v_accvgpr_read_b32 v{r}, a{r}")
    I("s_waitcnt lgkmcnt(0)\ns_barrier")
    for i in range(24): I(f"ds_read_b128 v[{96+4*i}:{99+4*i}], v{rA1} offset:{i*1024}")
    for n in range(2):
        for t in range(3):
            o = (n * 3 + t) * 16
            for pr in range(8): I(f"v_pk_add_f32 v[{o+2*pr}:{o+2*pr+1}], v[{o+2*pr}:{o+2*pr+1}], v[{96+o+2*pr}:{97+o+2*pr}]")
            ob = 192 + (n * 3 + t) * 8
            for pr in range(8): I(f"v_cvt_pk_bf16_f32 v{ob+pr}, v{o+2*pr}, v{o+2*pr+1}")
            I(f"s_add_u32 s67, s66, {t*32768}")
            for s2 in range(2):
                I(f"buffer_store_dwordx4 v[{ob+4*s2}:{ob+4*s2+3}], v{rLn}, s[28:31], s67 offen offset:{(n*2+s2)*1024} {OPT['pst']}")
    if OPT['stamp']:
        I("s_waitcnt vmcnt(0)")
        stamp(p, 1)
        stamp_out(p, 10, 0)
    I("L1_end:\ns_endpgm")
    return p

def gen_red():
    p = Prog(); I = p.I
    I("s_cmp_ge_u32 s2, 768\ns_cbranch_scc1 L2_end")
    I("s_load_dwordx2 s[14:15], s[0:1], 40\ns_load_dwordx2 s[18:19], s[0:1], 56")
    stamp(p, 0)
    I(f"""
v_lshrrev_b32 v1, 6, v0
v_and_b32 v0, 63, v0
v_readfirstlane_b32 s3, v1
v_lshrrev_b32 v2, 3, v0
v_and_b32 v3, 7, v0
v_lshlrev_b32 v4, 9, v2
v_lshl_add_u32 v4, v3, 4, v4
v_lshlrev_b32 v5, 4, v2
v_lshl_add_u32 v5, v3, 10, v5
s_lshl_b32 s4, s2, 2
s_add_u32 s4, s4, s3
s_lshr_b32 s5, s4, 5
s_bfe_u32 s6, s4, 0x20003
s_and_b32 s7, s4, 7
s_lshl_b32 s8, s5, 15
s_lshl_b32 s9, s7, 12
s_add_u32 s9, s9, s8
s_lshl_b32 s10, s6, 7
s_add_u32 s9, s9, s10
s_lshl_b32 s10, s6, 13
s_add_u32 s8, s8, s10
s_lshl_b32 s10, s7, 7
s_add_u32 s8, s8, s10
s_waitcnt lgkmcnt(0)
s_add_u32 s20, s18, {P_WS_OFF}
s_addc_u32 s21, s19, 0
s_and_b32 s21, s21, 0xffff
s_mov_b32 s22, {P_BYTES}
s_mov_b32 s23, 0x00020000
""")
    for g in range(4):
        I(f"buffer_load_dwordx4 v[{8+4*g}:{11+4*g}], v4, s[20:23], s9 offen {OPT['rld']}")
        if g < 3: I(f"s_add_u32 s9, s9, {16*192*1024}")
    srd(p, 24, 14, 15, 16 * 192 * 1024)
    for d in range(4):
        for g in range(4):
            r = 8 + 4 * g + d
            I(f"v_lshlrev_b32 v{24+2*g}, 16, v{r}\nv_and_b32 v{25+2*g}, 0xffff0000, v{r}")
        I(f"v_pk_add_f32 v[24:25], v[24:25], v[26:27]\nv_pk_add_f32 v[28:29], v[28:29], v[30:31]\nv_pk_add_f32 v[24:25], v[24:25], v[28:29]")
        I(f"v_cvt_pk_bf16_f32 v{32+d}, v24, v25")
    I("buffer_store_dwordx4 v[32:35], v5, s[24:27], s8 offen")
    if OPT['stamp']:
        I("s_waitcnt vmcnt(0)")
        stamp(p, 1)
        I("s_cmp_ge_u32 s2, 256\ns_cbranch_scc1 L2_end\ns_mul_i32 s2, s2, 1")
        stamp_out(p, 2, 0x20000)
    I("L2_end:\ns_endpgm")
    return p

def kd(name, vg, acc, sg=102):
    return f""".p2align 6
.amdhsa_kernel {name}
  .amdhsa_next_free_vgpr {vg}
  .amdhsa_next_free_sgpr {sg}
  .amdhsa_accum_offset {acc}
  .amdhsa_group_segment_fixed_size 0
  .amdhsa_kernarg_size 64
  .amdhsa_user_sgpr_count 2
  .amdhsa_user_sgpr_kernarg_segment_ptr 1
  .amdhsa_system_sgpr_workgroup_id_x 1
  .amdhsa_float_denorm_mode_32 3
.end_amdhsa_kernel
"""

def main():
    k1 = gen_k1(); k1.resolve(); t1, s1 = k1.emit()
    k2 = gen_red(); k2.resolve(); t2, s2 = k2.emit()
    sys.stderr.write(f"k1 {s1}  k2 {s2}\n")
    hdr = open('cdna_kernels/' + NAME + '.s.ref').read().split('\n')
    top = [l for l in hdr if l.startswith(';') and '@launch' not in l and 'Override' not in l and 'grid=ceil' not in l]
    out = '\n'.join(top) + f"""
; @launch kernel=attn_kernel grid=(256,1,1) block=(256,1,1) lds=163840
; @launch kernel=reduce_kernel grid=(768,1,1) block=(256,1,1) lds=0
.amdgcn_target "amdgcn-amd-amdhsa--gfx950"
.text
.globl attn_kernel
.p2align 8
.type attn_kernel,@function
attn_kernel:
{t1}
.globl reduce_kernel
.p2align 8
.type reduce_kernel,@function
reduce_kernel:
{t2}
.section .rodata,"a"
{kd('attn_kernel', 512, 256)}{kd('reduce_kernel', 40, 40, 102 if OPT['stamp'] else 32)}"""
    open(sys.argv[1], 'w').write(out)
main()
```

```python
import sys, math, struct
from asmlib import *
NAME = "standalone__mha_block_cached__near_ridge"
OPT = dict(stamp=0, st2=0, kvsz=1, xw=1, rh=2, rb=1, rmask=7, pre1=8, bud=24, tbud=28, dcost=20,
           ost='sc1', oxl='sc1', pst='sc1', rld='', pub=13, pol=3, pe=12, oxs=2, oxn=3, wls=6, ctouch=1,
           dlast=13*48+8, thr=2.0**40, xreg=1)
for a in sys.argv[2:]:
    k, v = a.split('=')
    try: OPT[k] = int(v, 0)
    except ValueError:
        try: OPT[k] = float(v)
        except ValueError: OPT[k] = v.replace('+', ' ')

def f2u(x): return struct.unpack('<I', struct.pack('<f', x))[0]
SCALE = math.log2(math.e) / math.sqrt(128.0)

XBLK = 1056; XSZ = 24 * XBLK
WQSZ = 32768
BUFSZ = XSZ + WQSZ
BUFA = 163840 - 2 * BUFSZ
KRG = 4128
KSZ = 4 * KRG; VSZ = 16384
KS = [0, 32896, 65792, 98688, 131584]
VS = [16512, 49408, 82304, 115200]
SPARE = 148096
WIN = 65792
O_WS_OFF = 0x1000000; O_BYTES = 16 * 192 * 4096 * 2
FLAG_OFF = 0x800000
P_WS_OFF = 0x4000000; P_BYTES = 4 * 16 * 192 * 512 * 2

def srd(p, d, lo, hi, size):
    p.I(f"s_mov_b32 s{d}, s{lo}\ns_and_b32 s{d+1}, s{hi}, 0xffff\ns_mov_b32 s{d+2}, {size}\ns_mov_b32 s{d+3}, 0x00020000")
def stamp_ops(idx):
    if not OPT['stamp']: return []
    return ["s_memrealtime s[78:79]", "s_memtime s[76:77]", "s_waitcnt lgkmcnt(0)", f"s_mov_b32 s{80+idx}, s78", f"s_mov_b32 s{90+idx}, s76"]
def stamp(p, idx):
    for x in stamp_ops(idx): p.I(x)
def stamp_out(p, nst, base_off):
    if not OPT['stamp']: return
    p.I(f"""
s_mov_b32 s72, s18
s_and_b32 s73, s19, 0xffff
s_mov_b32 s74, 0x1000000
s_mov_b32 s75, 0x00020000
s_lshl_b32 s76, s2, 2
s_add_u32 s76, s76, s3
s_lshl_b32 s76, s76, 7
s_add_u32 s76, s76, {base_off}
v_mov_b32 v1, 0
""")
    for i in range(nst):
        p.I(f"v_mov_b32 v2, s{80+i}\nbuffer_store_dword v2, v1, s[72:75], s76 offen offset:{4*i}")
        p.I(f"v_mov_b32 v2, s{90+i}\nbuffer_store_dword v2, v1, s[72:75], s76 offen offset:{64+4*i}")

def txt(x): return x.text if isinstance(x, Ins) else x
def cost(x):
    mn = txt(x).split()[0]
    if mn.startswith('v_exp') or mn.startswith('v_rcp'): return 8
    if mn.startswith('ds_write'): return 8
    if mn.startswith('buffer_') or mn.startswith('global_'): return OPT['dcost']
    if mn.startswith('v_pk_'): return 8
    return 4
class Slots(dict):
    def put(self, g, x): self.setdefault(g, []).extend(x if isinstance(x, list) else [x])
def em(p, x):
    if isinstance(x, Ins): p.add(x)
    else: p.I(x)
def schedule(p, mfmas, fixed, streams=(), budget=None):
    streams = [list(s) for s in streams]
    for x in fixed.get(-1, []): em(p, x)
    for g, m in enumerate(mfmas):
        p.I(m)
        used = 0
        for f in fixed.get(g, []):
            em(p, f); used += cost(f)
        b = budget(g) if budget else OPT['bud']
        while True:
            c = [s for s in streams if s and s[0][1] <= g]
            if not c: break
            fs = [s for s in c if any(x[2] <= g for x in s[:200])]
            s = fs[0] if fs else min(c, key=lambda s: min(x[2] for x in s[:8]))
            if fs or used + cost(s[0][0]) <= b:
                op = s.pop(0)[0]; em(p, op); used += cost(op)
            else: break
    for s in streams:
        for op, _, _ in s: em(p, op)
    for g in fixed:
        assert g < len(mfmas), f"fixed slot {g} beyond region {len(mfmas)}: {fixed[g]}"

vK, vV0, vV1 = 240, 241, 242
vOK = [243, 244]; vOV = [245, 246]
vL = [247, 248, 249]
vX, vW0, vW1, vOX, vOW = 250, 251, 252, 253, 254
vSY = 255
S = [64, 112]; NEGM = [224, 160, 176]; QB = [192, 0, 32]
FR = 224
def fr(n): return FR + (n % 8) * 4
def qfrag(t, ksd): b = QB[t] + 4 * ksd; return f"v[{b}:{b+3}]"
def acc(t, dt): return (t * 4 + dt) * 16

def kv_addr_setup(lane, t0):
    a, b, c, d, e = [f"v{t0+i}" for i in range(5)]
    return f"""v_lshrrev_b32 {a}, 3, {lane}
v_and_b32 {b}, 7, {lane}
v_bfe_u32 {c}, {lane}, 4, 1
v_xor_b32 {d}, {b}, {c}
v_lshlrev_b32 {d}, 4, {d}
v_lshlrev_b32 {e}, 2, {c}
v_xor_b32 {e}, {b}, {e}
v_lshlrev_b32 {e}, 4, {e}
v_lshl_add_u32 {d}, {a}, 8, {d}
v_lshl_add_u32 {e}, {a}, 8, {e}
s_lshl_b32 s66, s3, 11
s_add_u32 s67, s66, 128
s_add_u32 s66, s66, 1024
v_add_u32 v{vOK[0]}, s66, {d}
v_add_u32 v{vOK[1]}, s67, {d}
v_add_u32 v{vOV[0]}, s66, {e}
v_add_u32 v{vOV[1]}, s67, {e}
s_lshr_b32 s66, s3, 1
s_lshl_b32 s66, s66, 11
v_bfe_u32 {a}, {lane}, 3, 2
v_mul_u32_u24 {a}, {KRG}, {a}
v_lshl_add_u32 {a}, {b}, 7, {a}
v_lshrrev_b32 {c}, 5, {lane}
v_bfe_u32 {d}, {lane}, 1, 1
v_xor_b32 {d}, {c}, {d}
v_lshl_add_u32 {a}, {d}, 4, {a}
v_add_u32 v{vK}, s66, {a}
v_bfe_u32 {a}, {lane}, 2, 2
v_lshlrev_b32 {a}, 7, {a}
v_lshl_add_u32 {a}, {c}, 9, {a}
v_bfe_u32 {d}, {lane}, 3, 1
v_lshl_add_u32 {a}, {d}, 6, {a}
v_bfe_u32 {d}, {lane}, 4, 1
v_lshl_add_u32 {a}, {d}, 5, {a}
v_and_b32 {d}, 3, {lane}
v_lshl_add_u32 {a}, {d}, 3, {a}
v_add_u32 v{vV0}, s66, {a}
v_xor_b32 v{vV1}, 64, v{vV0}
s_mul_i32 s61, s3, {KRG}
s_lshl_b32 s62, s3, 12""".split('\n')

def kv_tile(kind, n, dst, soff=None, tag=True):
    pre = [f"s_add_u32 m0, s{61 if kind == 'K' else 62}, {dst}"]
    if soff is None:
        pre.append(f"s_mov_b32 s59, {n*8192}"); soff = "s59"
    dm = []
    for hd in range(2):
        for half in range(2):
            sr = (28 if kind == 'K' else 36) + 4 * hd
            v = (vOK if kind == 'K' else vOV)[half]
            dm.append(Ins(f"buffer_load_dwordx4 v{v}, s[{sr}:{sr+3}], {soff} offen offset:{hd*2048+half*1024} nt lds", lw=[f"{kind}{n}"] if tag else []))
    return pre, dm
def k_read(ks, off): b = fr(ks); return f"ds_read_b128 a[{b}:{b+3}], v{vK} offset:{off + (ks>>2)*1024 + (ks&3)*32}"
def v_read(j, sec, off):
    ks, dt = j >> 2, j & 3
    b = fr(8 + j) + 2 * sec
    return f"ds_read_b64_tr_b16 a[{b}:{b+1}], v{vV1 if dt & 1 else vV0} offset:{off + (2*ks + sec)*4096 + (dt>>1)*1024}"
def s_mfma(buf, t, ks, czero=False):
    d = f"v[{buf+t*16}:{buf+t*16+15}]"
    c = d if ks else ("0" if czero else f"v[{NEGM[t]}:{NEGM[t]+15}]")
    return f"v_mfma_f32_32x32x16_bf16 {d}, a[{fr(ks)}:{fr(ks)+3}], {qfrag(t, ks)}, {c}"
def pv_mfma(buf, j, t, czero=False):
    ks, dt = j >> 2, j & 3
    o = (dt * 3 + t) * 16
    b = buf + t * 16 + 8 * ks
    c = "0" if (czero and ks == 0) else f"a[{o}:{o+15}]"
    return f"v_mfma_f32_32x32x16_bf16 a[{o}:{o+15}], a[{fr(8+j)}:{fr(8+j)+3}], v[{b}:{b+3}], {c}"
def ereg(buf, e):
    h, t, j = e // 24, (e % 24) // 8, e % 8
    return buf + t * 16 + 8 * h + j, t
def sm_ops(buf, e):
    out = []
    if e < 48:
        r, t = ereg(buf, e); out.append(f"v_exp_f32 v{r}, v{r}")
    if 1 <= e <= 48:
        r, t = ereg(buf, e - 1); out.append(f"v_add_f32 v{vL[t]}, v{vL[t]}, v{r}")
    if e >= 2 and e % 2 == 0 and e <= 48:
        r, t = ereg(buf, e - 2); base = r - ((e - 2) % 8)
        out.append(f"v_cvt_pk_bf16_f32 v{base + ((e-2) % 8)//2}, v{r}, v{r+1}")
    return out

rOW = [250, 251]; rLn = 252
rA = [240, 241]
RC = [224, 226, 228]
WSL = [KS[1], KS[2], KS[3], VS[0], KS[4], VS[1], KS[0], VS[2], VS[3]]
NSL = len(WSL)
def step_of(sig): return (0, sig) if sig < 4 else (1 + (sig - 4) % 3, (sig - 4) // 3)
def wo_setup():
    a, b, c = "v253", "v254", f"v{rOW[1]}"
    out = f"""v_mbcnt_lo_u32_b32 v{rLn}, -1, 0
v_mbcnt_hi_u32_b32 v{rLn}, -1, v{rLn}
s_and_b32 s71, s49, 3
s_andn2_b32 s70, s49, 3
s_lshl_b32 s67, s71, 8
s_lshl_b32 s68, s3, 13
s_add_u32 s69, s68, {0x20000 - 2048}
v_lshrrev_b32 {a}, 3, v{rLn}
v_and_b32 {b}, 7, v{rLn}
v_bfe_u32 {c}, v{rLn}, 4, 1
v_lshlrev_b32 {c}, 2, {c}
v_xor_b32 {b}, {b}, {c}
v_lshlrev_b32 {b}, 4, {b}
v_lshl_add_u32 {b}, {a}, 10, {b}
v_add_u32 v{rOW[0]}, s68, {b}
v_add_u32 v{rOW[1]}, s69, {b}""".split('\n')
    for rho in range(4):
        out += [f"s_add_u32 s69, s71, {rho}", "s_and_b32 s69, s69, 3", "s_add_u32 s69, s69, s70", f"s_lshl_b32 s{WOB[rho]}, s69, 18", f"s_add_u32 s{WOB[rho]}, s{WOB[rho]}, s67"]
    return out
WOB = [50, 56, 57, 58]
def wo_tile(sig):
    rho, dq = step_of(sig)
    dst = WSL[sig % NSL]
    out = []
    for hd in range(2):
        for pos in range(2):
            half = pos ^ hd
            d = dq * 32768 + half * 128 - pos * 1024 + 1024
            pre = [f"s_add_u32 s59, s{WOB[rho]}, {d}"]
            if hd == 0 and pos == 0: pre = [f"s_add_u32 m0, s62, {dst}"] + pre
            out.append((pre, Ins(f"buffer_load_dwordx4 v{rOW[hd]}, s[20:23], s59 offen offset:{hd*2048+pos*1024} lds", lw=[f"W{sig}"])))
    return out
def fin_ops():
    T = [232, 233, 234]
    fin = []
    for t in range(3): fin.append(f"v_mov_b32 v{T[t]}, v{vL[t]}")
    for t in range(3): fin.append(f"v_permlane32_swap_b32 v{T[t]}, v{vL[t]}")
    for t in range(3): fin.append(f"v_add_f32 v{vL[t]}, v{vL[t]}, v{T[t]}")
    for t in range(3): fin.append(f"v_rcp_f32 v{RC[t]}, v{vL[t]}")
    for t in range(3): fin.append(f"v_mov_b32 v{RC[t]+1}, v{RC[t]}")
    return fin
NWPRE = 6

def gen_k1():
    p = Prog(); I = p.I
    vM = [vX, vW0, vW1]; vT = [vOX, vOW, vOX]
    I("s_cmp_ge_u32 s2, 256\ns_cbranch_scc1 L1_end")
    stamp(p, 0)
    I("s_load_dwordx16 s[4:19], s[0:1], 0")
    I(f"""
v_lshrrev_b32 v1, 6, v0
v_lshlrev_b32 v{vSY}, 20, v0
v_and_b32 v0, 63, v0
v_readfirstlane_b32 s3, v1
s_and_b32 s66, s2, 7
s_lshr_b32 s67, s2, 3
s_and_b32 s48, s66, 1
s_lshl_b32 s48, s48, 3
s_lshr_b32 s68, s67, 2
s_add_u32 s48, s48, s68
s_lshr_b32 s49, s66, 1
s_lshl_b32 s49, s49, 2
s_and_b32 s69, s67, 3
s_add_u32 s49, s49, s69
s_lshl_b32 s65, s66, 3
s_add_u32 s65, s65, s68
s_mul_i32 s52, s69, {OPT['rh']}
s_mul_i32 s68, s68, {OPT['rb']}
s_add_u32 s52, s52, s68
s_and_b32 s52, s52, {OPT['rmask']}
v_lshrrev_b32 v2, 3, v0
v_and_b32 v3, 7, v0
v_bfe_u32 v4, v0, 4, 1
v_xor_b32 v5, v3, v4
v_lshlrev_b32 v5, 4, v5
v_lshlrev_b32 v6, 2, v4
v_xor_b32 v6, v3, v6
v_lshlrev_b32 v6, 4, v6
v_lshl_add_u32 v{vOX}, v2, 10, v5
v_lshl_add_u32 v{vOW}, v2, 13, v6
s_mul_i32 s50, s48, {192*1024}
s_mul_i32 s66, s3, {48*1024}
s_add_u32 s50, s50, s66
s_lshl_b32 s51, s49, 9
s_lshl_b32 s66, s3, 7
s_add_u32 s51, s51, s66
s_mul_i32 s57, s3, {6*XBLK}
s_lshl_b32 s58, s3, 10
s_waitcnt lgkmcnt(0)
""")
    srd(p, 20, 4, 5, 16 * 192 * 1024 * OPT['xw'])
    srd(p, 24, 10, 11, 512 * 8192 * OPT['xw'])
    def stage_dma(st):
        buf = BUFA + (st & 1) * BUFSZ
        pre0 = ["s_lshl_b32 s54, s52, 7", "s_add_u32 s54, s54, s50", "s_lshl_b32 s55, s52, 19", "s_add_u32 s55, s55, s51",
                "s_add_u32 s52, s52, 1", "s_and_b32 s52, s52, 7"]
        out = []
        for j in range(6):
            out.append(([f"s_add_u32 m0, s57, {buf + j*XBLK}", f"s_add_u32 s56, s54, {j*8192}"],
                        Ins(f"buffer_load_dwordx4 v{vOX}, s[20:23], s56 offen lds", lw=[f"Q{st}"])))
        for rg in range(8):
            out.append(([f"s_add_u32 m0, s58, {buf + XSZ + rg*4096}", f"s_add_u32 s56, s55, {rg*65536}"],
                        Ins(f"buffer_load_dwordx4 v{vOW}, s[24:27], s56 offen lds", lw=[f"Q{st}"])))
        out[0] = (pre0 + out[0][0], out[0][1])
        return out
    def emit_vm(lst):
        for pre, x in lst:
            for y in pre: I(y)
            em(p, x)
    emit_vm(stage_dma(0))
    if OPT['ctouch']:
        I(f"""
s_getpc_b64 s[68:69]
L1_pc:
s_lshr_b32 s66, s2, 3
s_lshl_b32 s66, s66, 2
s_add_u32 s66, s66, s3
s_lshl_b32 s66, s66, 9
s_min_u32 s66, s66, L1_code_end-L1_pc-512
s_add_u32 s68, s68, s66
s_addc_u32 s69, s69, 0
v_lshlrev_b32 v7, 3, v0
global_load_dword a255, v7, s[68:69]
""")
    for x in kv_addr_setup("v0", 2): I(x)
    ksz = (131072 + 3072) * OPT['kvsz']
    I(f"""
s_lshl_b32 s66, s48, 5
s_lshl_b32 s67, s49, 1
s_add_u32 s66, s66, s67
s_lshl_b32 s66, s66, 17
s_add_u32 s28, s6, s66
s_addc_u32 s29, s7, 0
s_sub_u32 s28, s28, 1024
s_subb_u32 s29, s29, 0
s_and_b32 s29, s29, 0xffff
s_add_u32 s32, s28, {0x20000 - 2048}
s_addc_u32 s33, s29, 0
s_add_u32 s36, s8, s66
s_addc_u32 s37, s9, 0
s_sub_u32 s36, s36, 1024
s_subb_u32 s37, s37, 0
s_and_b32 s37, s37, 0xffff
s_add_u32 s40, s36, {0x20000 - 2048}
s_addc_u32 s41, s37, 0
s_mov_b32 s30, {(131072 + 1024) * OPT['kvsz']}
s_mov_b32 s34, {ksz}
s_mov_b32 s38, {(131072 + 1024) * OPT['kvsz']}
s_mov_b32 s42, {ksz}
s_mov_b32 s31, 0x00020000
s_mov_b32 s35, 0x00020000
s_mov_b32 s39, 0x00020000
s_mov_b32 s43, 0x00020000
s_add_u32 s44, s18, {O_WS_OFF}
s_addc_u32 s45, s19, 0
s_and_b32 s45, s45, 0xffff
s_mov_b32 s46, {O_BYTES}
s_mov_b32 s47, 0x00020000
s_mov_b32 s72, s16
s_and_b32 s73, s17, 0xffff
s_mov_b32 s74, 256
s_mov_b32 s75, 0x00020000
s_mov_b32 s64, {f2u(SCALE):#x}
s_lshr_b32 s66, s3, 1
s_and_b32 s67, s3, 1
v_bfe_u32 v3, v0, 3, 2
v_mul_u32_u24 v3, {XBLK}, v3
v_and_b32 v4, 7, v0
v_lshl_add_u32 v3, v4, 7, v3
v_lshrrev_b32 v4, 5, v0
v_bfe_u32 v5, v0, 1, 1
v_xor_b32 v5, v4, v5
v_lshl_add_u32 v3, v5, 4, v3
s_mul_i32 s68, s67, {12*XBLK}
s_add_u32 s68, s68, {BUFA}
v_add_u32 v{vX}, s68, v3
v_bfe_u32 v2, v0, 2, 2
v_lshlrev_b32 v2, 7, v2
v_bfe_u32 v3, v0, 3, 1
v_lshl_add_u32 v2, v3, 6, v2
v_bfe_u32 v3, v0, 4, 1
v_lshl_add_u32 v2, v3, 5, v2
v_and_b32 v3, 1, v0
v_lshl_add_u32 v2, v3, 4, v2
v_bfe_u32 v3, v0, 1, 1
v_lshl_add_u32 v2, v3, 3, v2
v_lshl_add_u32 v2, v4, 12, v2
s_lshl_b32 s68, s66, 11
s_add_u32 s68, s68, {BUFA + XSZ}
v_add_u32 v{vW0}, s68, v2
v_xor_b32 v{vW1}, 64, v{vW0}
""")
    for r in vL: I(f"v_mov_b32 v{r}, 0")
    st1 = stage_dma(1)
    emit_vm(st1[:OPT['pre1']])
    PFT = [('K', 1, 0), ('V', 1, 16), ('K', 2, 32), ('V', 2, 48), ('K', 3, 64), ('V', 3, 80)]
    def pf_load(kind, n, base):
        out = []
        for hd in range(2):
            for half in range(2):
                r = base + 4 * (hd * 2 + half)
                sr = (28 if kind == 'K' else 36) + 4 * hd
                v = (vOK if kind == 'K' else vOV)[half]
                out.append(([f"s_mov_b32 s60, {n*8192}"] if hd + half == 0 else [],
                            f"buffer_load_dwordx4 a[{r}:{r+3}], v{v}, s[{sr}:{sr+3}], s60 offen offset:{hd*2048+half*1024} nt"))
        return out
    def pf_write(kind, base, areg, off):
        return [f"ds_write_b128 v{areg}, a[{base+4*i}:{base+4*i+3}] offset:{off + i*1024}" for i in range(4)]
    def tile_vm(kind, n, dst):
        pre, dm = kv_tile(kind, n, dst)
        return [(pre if i == 0 else [], d) for i, d in enumerate(dm)]
    NA, NB = 112, 144
    def a_read(ks, dt, sec, dst): return f"ds_read_b64_tr_b16 a[{dst+2*sec}:{dst+2*sec+1}], v{vW1 if dt & 1 else vW0} offset:{ks*8192 + (dt>>1)*1024 + sec*512}"
    def b_read(ks, t, dst): return f"ds_read_b128 a[{dst}:{dst+3}], v{vX} offset:{t*4*XBLK + ks*32}"
    def qp_reads(ks):
        par = ks & 1
        A = [a_read(ks, dt, sec, NA + 16 * par + 4 * dt) for dt in range(4) for sec in range(2)]
        B = [b_read(ks, t, NB + 12 * par + 4 * t) for t in range(3)]
        return A[:2] + B + A[2:]
    def qp_mfmas(first):
        ms = []
        for ks in range(4):
            par = ks & 1
            for dt in range(4):
                for t in range(3):
                    d = f"v[{acc(t,dt)}:{acc(t,dt)+15}]"
                    a = NA + 16 * par + 4 * dt; b = NB + 12 * par + 4 * t
                    ms.append(f"v_mfma_f32_32x32x16_bf16 {d}, a[{a}:{a+3}], a[{b}:{b+3}], {'0' if first and ks == 0 else d}")
        return ms
    A7 = [112, 168, 128, 144]; B7 = [192, 208, 192]
    def put_vm(sl, gaps, lst):
        for g, (pre, x) in zip(gaps, lst):
            sl.put(g - 1, list(pre))
            sl.setdefault(g, []).insert(0, x)
        assert len(gaps) >= len(lst), (len(gaps), len(lst))
    def qp_stage(s, carry):
        sl = Slots()
        def put_reads(g0, rs):
            for i, r in enumerate(rs): sl.put(g0 + 2 * (i // 2), r)
        for ks in range(3): put_reads(ks * 12, qp_reads(ks + 1))
        put_vm(sl, list(range(1, 35, 2)), carry)
        d = BUFSZ if s % 2 == 0 else -BUFSZ
        op = (lambda r: f"v_add_u32 v{r}, {d}, v{r}") if d > 0 else (lambda r: f"v_subrev_u32 v{r}, {-d}, v{r}")
        sl.put(35, [op(vX), op(vW0), op(vW1), "s_waitcnt lgkmcnt(0)", Ins("s_barrier", lr=[f"Q{s+1}"] + (["K0", "V0"] if s == 6 else []))])
        left = []
        if s < 6:
            put_reads(36, qp_reads(0))
            post = stage_dma(s + 2)
            put_vm(sl, list(range(37, 48, 2)), post[:6])
            left = post[6:]
        else:
            rs = [a_read(0, dt, sec, A7[0] + 4 * dt) for dt in range(4) for sec in range(2)]
            rs = rs[:2] + [b_read(0, 0, B7[0])] + rs[2:] + [a_read(1, dt, sec, A7[1] + 4 * dt) for dt in range(4) for sec in range(2)] + [b_read(ks, 0, B7[0] + 4 * ks) for ks in (1, 2, 3)]
            for i, r in enumerate(rs): sl.put(36 + (i * 12) // len(rs), r)
        schedule(p, qp_mfmas(s == 0), sl)
        return left
    p.add(Ins("s_barrier", lr=["Q0"]))
    stamp(p, 2)
    for r in qp_reads(0): I(r)
    carry = qp_stage(0, st1[OPT['pre1']:] + tile_vm('K', 0, KS[0]) + tile_vm('V', 0, VS[0]))
    stamp(p, 3)
    for s in range(1, 7):
        carry = qp_stage(s, carry + pf_load(*PFT[s - 1]))
    stamp(p, 4)
    ms = []
    for t in range(3):
        for ks in range(4):
            for dt in range(4):
                d = f"v[{acc(t,dt)}:{acc(t,dt)+15}]"
                a = A7[ks] + 4 * dt; b = B7[t] + 4 * ks
                ms.append(f"v_mfma_f32_32x32x16_bf16 {d}, a[{a}:{a+3}], a[{b}:{b+3}], {d}")
    ms += [s_mfma(S[0], t, ks, True) for t in range(3) for ks in range(8)]
    I0 = 72
    def IT(i, g=0): return I0 + 48 * i + g
    ms += [s_mfma(S[1], t, ks) for t in range(3) for ks in range(8)]
    ms += [pv_mfma(S[0], j, t, True) for j in range(8) for t in range(3)]
    for i in range(1, 15):
        ms += [s_mfma(S[(i + 1) & 1], t, ks) for ks in range(8) for t in range(3)]
        ms += [pv_mfma(S[i & 1], j, t) for j in range(8) for t in range(3)]
    TL = IT(15)
    ms += [pv_mfma(S[1], j, t) for j in range(8) for t in range(3)]
    sl = Slots()
    rs = [a_read(ks, dt, sec, A7[ks] + 4 * dt) for ks in (2, 3) for dt in range(4) for sec in range(2)]
    for i, r in enumerate(rs): sl.put(i // 2, r)
    for ks in range(4): sl.put(8 + ks, b_read(ks, 1, B7[1] + 4 * ks))
    for ks in range(4): sl.put(17 + ks, b_read(ks, 2, B7[2] + 4 * ks))
    sl.put(-1, [f"v_mbcnt_lo_u32_b32 v{vOX}, -1, 0", f"v_mbcnt_hi_u32_b32 v{vOX}, -1, v{vOX}", f"v_lshlrev_b32 v{vOX}, 4, v{vOX}",
                f"v_add_u32 v{vOW}, s62, v{vOX}", f"v_add_u32 v{vOX}, s61, v{vOX}"])
    w1 = pf_write('K', 0, vOX, KS[1]) + pf_write('V', 16, vOW, VS[1])
    for i, x in enumerate(w1): sl.put(i, x)
    sl.put(7, [f"v_add_u32 v{vOX}, {WIN}, v{vOX}", f"v_add_u32 v{vOW}, {WIN}, v{vOW}"])
    w2 = pf_write('K', 32, vOX, KS[2] - WIN) + pf_write('V', 48, vOW, VS[2] - WIN)
    for i, x in enumerate(w2): sl.put(8 + i, x)
    sl.put(24, ["s_waitcnt lgkmcnt(0)", "s_barrier"])
    w3 = pf_write('K', 64, vOX, KS[3] - WIN) + pf_write('V', 80, vOW, VS[3] - WIN)
    for i, x in enumerate(w3): sl.put(31 + 2 * i, x)
    for ks in range(8): sl.put(32 + 2 * ks, k_read(ks, KS[0]))
    sl.put(50, ["s_waitcnt lgkmcnt(0)", "s_barrier"])
    for ks in range(8): sl.put(65 + ks, k_read(ks, KS[1]))
    sl.put(12, [f"s_add_u32 s24, s18, {FLAG_OFF}", "s_addc_u32 s25, s19, 0", "s_and_b32 s25, s25, 0xffff"])
    sl.put(13, ["s_mov_b32 s26, 8192", "s_lshl_b32 s54, s65, 7", "s_lshl_b32 s55, s65, 2"])
    sl.put(14, ["s_sub_u32 s20, s12, 1024", "s_subb_u32 s21, s13, 0", "s_and_b32 s21, s21, 0xffff", f"s_mov_b32 s22, {4096*1024+1024}"])
    kwin = 0; vwin = 0
    def win_move(regs, d): return [(f"v_add_u32 v{r}, {d}, v{r}" if d > 0 else f"v_subrev_u32 v{r}, {-d}, v{r}") for r in regs]
    for i in range(0, 16):
        va = VS[i % 4]; w = (va // WIN) * WIN
        if w != vwin:
            sl.put(IT(i, 10) if i < 15 else IT(14, 41), win_move([vV0, vV1], w - vwin)); vwin = w
        for j in range(8):
            if i == 0: g0 = max(89 + j, IT(0, 15 + 3 * j)); g1 = g0 + (0 if j < 2 else 1)
            elif i < 15: g0 = IT(i, 15 + 3 * j); g1 = g0 + 1
            else: g0 = max(IT(14, 42 + 2 * j), TL + 3 * j - 9); g1 = g0 + 1
            sl.put(g0, v_read(j, 0, va - vwin)); sl.put(g1, v_read(j, 1, va - vwin))
        if i == 15: break
        need = [f"V{i+1}"] + ([f"K{i+2}"] if i + 2 < 16 else [])
        sl.put(IT(i, 40), ["s_waitcnt lgkmcnt(0)", Ins("s_barrier", lr=need)])
        n = i + 2
        if n < 16:
            ka = KS[n % 5]; w = (ka // WIN) * WIN
            if w != kwin:
                sl.put(IT(i, 38), win_move([vK], w - kwin)); kwin = w
            for ks, g in enumerate([IT(i, 42), IT(i, 44), IT(i, 46), IT(i + 1, 1), IT(i + 1, 4), IT(i + 1, 7), IT(i + 1, 10), IT(i + 1, 13)]):
                sl.put(g, k_read(ks, ka - kwin))
    vm = []
    def add_tile(kind, n, ear):
        dst = KS[n % 5] if kind == 'K' else VS[n % 4]
        for pre, d in tile_vm(kind, n, dst): vm.append((pre, d, ear))
    add_tile('K', 4, 26)
    XR = OPT['xreg']
    if XR:
        for pre, d in pf_load('V', 4, 192): vm.append((pre, d, 49))
    add_tile('K', 5, 52)
    for n in range(4, 16):
        if not (XR and n == 4): add_tile('V', n, IT(n - 4, 42))
        if n + 2 < 16: add_tile('K', n + 2, IT(n + 2 - 6, 42))
    if XR:
        sl.put(IT(0, 41), [f"v_mbcnt_lo_u32_b32 v{vOW}, -1, 0", f"v_mbcnt_hi_u32_b32 v{vOW}, -1, v{vOW}"])
        sl.put(IT(0, 43), [f"v_lshlrev_b32 v{vOW}, 4, v{vOW}", f"v_add_u32 v{vOW}, s62, v{vOW}"])
        for i, x in enumerate(pf_write('V', 192, vOW, VS[0])): sl.put(IT(0, 45) + 2 * i, x)
    g_first, g_last = 26, I0 + OPT['dlast']
    gaps = []; g = g_first - 2
    for k, (pre, d, ear) in enumerate(vm):
        rem = len(vm) - k
        step = max(2.0, (g_last - g) / rem)
        g = max(g + step, ear)
        gi = int(round(g))
        while gi in gaps or (gi - 1) in gaps or any(txt(x).startswith('s_barrier') for x in sl.get(gi, [])): gi += 1
        gaps.append(gi); g = max(g, gi)
    put_vm(sl, gaps, [(a, b) for a, b, _ in vm])
    if OPT.get('verbose'):
        last = {}
        for gi, (pre, d, ear) in zip(gaps, vm):
            if isinstance(d, Ins): last[d.lw[0]] = gi
        for k_, gi in last.items():
            n = int(k_[1:]); nb = IT(n - 2, 40) if k_[0] == 'K' else IT(n - 1, 40)
            sys.stderr.write(f"{k_}: last issue {gi} (iter {(gi-I0)/48:.2f}) margin {nb-gi}\n")
    used_vm = set(gaps)
    def free_gap(g):
        while g in used_vm or (g - 1) in used_vm or (g + 1) in used_vm: g += 1
        used_vm.add(g); return g
    NG = IT(1, 8)
    sl.put(NG - 8, ["s_lshr_b32 s56, s49, 2", "s_lshl_b32 s56, s56, 5", "s_lshr_b32 s57, s2, 3"])
    sl.put(NG - 6, ["s_add_u32 s56, s56, s57", "s_lshl_b32 s56, s56, 2", "s_add_u32 s56, s56, s3"])
    sl.put(NG - 5, ["s_lshl_b32 s56, s56, 13", f"v_mbcnt_lo_u32_b32 v{vOX}, -1, 0", f"v_mbcnt_hi_u32_b32 v{vOX}, -1, v{vOX}"])
    sl.put(NG - 3, [f"v_lshlrev_b32 v{vOX}, 7, v{vOX}"])
    sl.put(free_gap(NG), f"buffer_load_dword a212, v{vOX}, s[20:23], s56 offen offset:1024")
    sl.put(free_gap(NG + 3), f"buffer_load_dword a213, v{vOX}, s[20:23], s56 offen offset:1088")
    sl.put(free_gap(NG + 6), f"buffer_load_dwordx4 a[208:211], v{vSY}, s[24:27], s54 offen sc1")
    NG = IT(3, 8)
    sl.put(NG, [f"v_accvgpr_read_b32 v{vX}, a208", f"v_accvgpr_read_b32 v{vW0}, a209"])
    sl.put(NG + 1, [f"v_readfirstlane_b32 s56, v{vX}", f"v_readfirstlane_b32 s57, v{vW0}"])
    sl.put(NG + 2, [f"v_accvgpr_read_b32 v{vX}, a210", f"v_accvgpr_read_b32 v{vW0}, a211"])
    sl.put(NG + 3, [f"v_readfirstlane_b32 s58, v{vX}", f"v_readfirstlane_b32 s50, v{vW0}", "s_mov_b32 s51, 1"])
    for i, r in enumerate((56, 57, 58, 50)):
        sl.put(NG + 4 + i, [f"s_min_u32 s{r}, s{r}, 31", f"s_bitset1_b32 s51, s{r}"])
    sl.put(NG + 8, ["s_ff0_i32_b32 s51, s51", f"v_mov_b32 v{vW0}, 0"])
    sl.put(NG + 9, [f"v_mov_b32 v{vX}, s51"])
    sl.put(free_gap(NG + 11), f"buffer_atomic_cmpswap v[{vX}:{vW0}], v{vSY}, s[72:75], s55 offen sc0 sc1")
    sl.put(IT(8, 8), [f"v_readfirstlane_b32 s53, v{vX}"])
    sl.put(IT(8, 10), ["s_cmp_eq_u32 s53, 0", "s_cselect_b32 s53, s51, s53"])
    for i, x in enumerate(wo_setup()): sl.put(IT(9, 2) + i, x)
    wear = [IT(10, 42), IT(11, 42), IT(12, 42), IT(12, 42), IT(13, 42), IT(13, 42)]
    g = max(max(gaps) + 2, IT(13, 10))
    wg_, wl_ = [], []
    for sig in range(NWPRE):
        for pre, d in wo_tile(sig):
            g = free_gap(max(g, wear[sig]))
            while any(txt(x).startswith('s_barrier') for x in sl.get(g, [])): g = free_gap(g + 1)
            wg_.append(g); wl_.append((pre, d)); g += OPT.get('wps', 3)
    put_vm(sl, wg_, wl_)
    conv = []
    for t in range(3):
        for dt in range(4):
            a = acc(t, dt)
            ear = 16 * t + 12 + dt + 3
            for k2 in range(2):
                dl = 48 + 8 * t + 2 * dt + k2 - 2
                if t == 1 and dt < 3: dl = min(dl, 48 + 8 * dt - 2)
                for pr in range(4):
                    r = a + 8 * k2 + 2 * pr
                    conv.append((f"v_mul_f32 v{r}, s64, v{r}", ear, dl))
                    conv.append((f"v_mul_f32 v{r+1}, s64, v{r+1}", ear, dl))
                for pr in range(4):
                    r = a + 8 * k2 + 2 * pr
                    conv.append((f"v_cvt_pk_bf16_f32 v{QB[t] + 4*(2*dt+k2) + pr}, v{r}, v{r+1}", ear, dl))
    mx = []
    for t in range(3):
        b = S[0] + t * 16
        ear0 = 48 + 8 * t + 7 + 3
        ear = ear0 if t == 0 else max(ear0, 71)
        dl = 72 + 8 * t - 2
        ops = [f"v_max3_f32 v{vM[t]}, v{b}, v{b+1}, v{b+2}"]
        ops += [f"v_max3_f32 v{vM[t]}, v{vM[t]}, v{b+r}, v{b+r+1}" for r in range(3, 15, 2)]
        ops += [f"v_max_f32 v{vM[t]}, v{vM[t]}, v{b+15}", f"v_mov_b32 v{vT[t]}, v{vM[t]}", "s_nop 1", f"v_permlane32_swap_b32 v{vT[t]}, v{vM[t]}",
                f"v_max_f32 v{vM[t]}, v{vM[t]}, v{vT[t]}"]
        mx += [(o, ear0, dl) for o in ops]
        mx += [(f"v_sub_f32 v{NEGM[t]+r}, 0, v{vM[t]}", ear, dl) for r in range(16)]
    sm = []
    for n in range(16):
        buf = S[n & 1]
        pv0 = IT(n, 24) if n < 15 else TL
        def dl_of(e): return pv0 + (0 if e < 24 else 12) + (e % 24) // 8 - 2
        for e in range(49):
            t = (min(e, 47) % 24) // 8
            if n == 0: ear = 72 + 8 * t - 1
            elif n == 1: ear = IT(0, 8 * t + 7 + 4)
            else: ear = IT(n - 1, 21 + t + 4)
            if n == 0 and e < 48:
                r, t = ereg(buf, e)
                sm.append((f"v_sub_f32 v{r}, v{r}, v{vM[t]}", ear, dl_of(e) - 1))
            for o in sm_ops(buf, e):
                sm.append((o, ear, dl_of(e) - 1 if o.startswith('v_exp') else dl_of(e - 1)))
    fin = fin_ops()
    vote = [f"s_mov_b32 s66, {f2u(OPT['thr']):#x}",
            f"v_max3_f32 v232, v{vL[0]}, v{vL[1]}, v{vL[2]}", f"v_add_f32 v233, v{vL[0]}, v{vL[1]}", f"v_add_f32 v233, v233, v{vL[2]}",
            f"v_cmp_nge_f32 vcc, s66, v233", f"v_mov_b32 v234, {SPARE}", "s_lshl_b32 s67, s3, 2", "s_cmp_lg_u64 vcc, 0\ns_cselect_b32 s66, 1, 0",
            "v_add_u32 v235, s67, v234", "v_mov_b32 v236, s66", "ds_write_b32 v235, v236"]
    vote = [x for x in vote if 'max3' not in x]
    sm += [(o, TL + 10, TL + 17) for o in fin[:9] + vote]
    sl.put(TL + 19, ["s_waitcnt lgkmcnt(0)", Ins("s_barrier", lr=[f"W{i}" for i in range(4)]), "ds_read_b128 v[236:239], v234"])
    sm += [(o, TL + 18, TL + 22) for o in fin[9:]]
    if OPT['stamp']:
        sl.put(IT(1, 0) - 1, stamp_ops(5)); sl.put(TL - 1, stamp_ops(6))
    def bud(g):
        if g < IT(1): return OPT['tbud']
        return OPT['bud'] - (4 if (g - I0) % 3 == 2 else 0)
    schedule(p, ms, sl, [conv, mx, sm], budget=bud)
    I("""
v_or3_b32 v236, v236, v237, v238
v_or_b32 v236, v236, v239
v_readfirstlane_b32 s66, v236
s_cmp_lg_u32 s66, 0
s_cbranch_scc1 L1_slow
L1_norm:
""")
    stamp(p, 7)
    OXS = [63, 64, 65, 70]
    I(f"""
s_lshl_b32 s68, s48, 1
s_and_b32 s69, s3, 1
s_add_u32 s68, s68, s69
s_lshl_b32 s68, s68, 5
s_lshr_b32 s69, s3, 1
s_add_u32 s68, s68, s69
s_lshl_b32 s69, s70, 1
s_add_u32 s68, s68, s69
""")
    for rho in range(4):
        I(f"s_add_u32 s69, s71, {rho}\ns_and_b32 s69, s69, 3\ns_lshl_b32 s69, s69, 1\ns_add_u32 s69, s69, s68\ns_mul_i32 s{OXS[rho]}, s69, 24576")
    I(f"""
v_bfe_u32 v232, v{rLn}, 2, 2
v_lshlrev_b32 v232, 7, v232
v_lshrrev_b32 v233, 5, v{rLn}
v_lshl_add_u32 v232, v233, 9, v232
v_bfe_u32 v233, v{rLn}, 3, 1
v_lshl_add_u32 v232, v233, 6, v232
v_bfe_u32 v233, v{rLn}, 4, 1
v_lshl_add_u32 v232, v233, 5, v232
v_and_b32 v233, 1, v{rLn}
v_lshl_add_u32 v232, v233, 4, v232
v_bfe_u32 v233, v{rLn}, 1, 1
v_lshl_add_u32 v232, v233, 3, v232
s_lshr_b32 s69, s3, 1
s_lshl_b32 s69, s69, 11
v_add_u32 v240, s69, v232
v_xor_b32 v241, 64, v240
v_add_u32 v242, {WIN}, v240
v_add_u32 v243, {WIN}, v241
v_add_u32 v244, {2*WIN}, v240
v_add_u32 v245, {2*WIN}, v241
v_lshlrev_b32 v246, 4, v{rLn}
s_lshl_b32 s69, s71, 2
s_add_u32 s52, s54, s69
""")
    rL16 = 246
    def bfr(sig, ks, t): return (sig % 8) * 24 + (ks * 3 + t) * 4
    RD = 4
    def a_rd(sig, j, sec):
        ks, n = j >> 2, j & 3
        b = fr(j) + 2 * sec
        a = WSL[sig % NSL]; w = a // WIN
        return f"ds_read_b64_tr_b16 a[{b}:{b+1}], v{240 + 2*w + (n & 1)} offset:{a - w*WIN + (2*ks + sec)*4096 + (n>>1)*1024}"
    for j in range(RD):
        I(a_rd(0, j, 0)); I(a_rd(0, j, 1))
    for dt in range(4):
        for t in range(3):
            o = (dt * 3 + t) * 16
            tb = 192 + ((dt * 3 + t) % 2) * 16
            for r in range(16): I(f"v_accvgpr_read_b32 v{tb+r}, a{o+r}")
            for pr in range(8): I(f"v_pk_mul_f32 v[{tb+2*pr}:{tb+2*pr+1}], v[{tb+2*pr}:{tb+2*pr+1}], v[{RC[t]}:{RC[t]+1}]")
            for pr in range(8): I(f"v_cvt_pk_bf16_f32 v{bfr(dt, pr >> 2, t) + (pr&3)}, v{tb+2*pr}, v{tb+2*pr+1}")
            for k2 in range(2):
                kk = 2 * dt + k2; b = bfr(dt, k2, t)
                I(f"s_add_u32 s67, s63, {kk*3072}")
                p.add(Ins(f"buffer_store_dwordx4 v[{b}:{b+3}], v{rL16}, s[44:47], s67 offen offset:{t*1024} {OPT['ost']}", lw=["OST"]))
    stamp(p, 8)
    def op_mfma(sig, j, t):
        ks, n = j >> 2, j & 3
        o = (n * 3 + t) * 16
        b = bfr(sig, ks, t)
        c = "0" if (sig == 0 and ks == 0) else f"a[{o}:{o+15}]"
        return f"v_mfma_f32_32x32x16_bf16 a[{o}:{o+15}], a[{fr(j)}:{fr(j)+3}], v[{b}:{b+3}], {c}"
    def ox_load(sig):
        rho, dq = step_of(sig)
        out = []
        for ks in range(2):
            for t in range(3):
                b = bfr(sig, ks, t)
                out.append(([f"s_add_u32 s67, s{OXS[rho]}, {(2*dq+ks)*3072}"] if t == 0 else [],
                            f"buffer_load_dwordx4 v[{b}:{b+3}], v{rL16}, s[44:47], s67 offen offset:{t*1024} {OPT['oxl']}"))
        return out
    POL = OPT['pol']
    al = Slots()
    for sig in range(16):
        for j in range(8):
            jn = j + RD; sn = sig + (jn >> 3)
            if sn < 16:
                g0 = sig * 24 + 3 * j + (0 if jn < 8 else 2)
                al.put(g0, a_rd(sn, jn & 7, 0)); al.put(min(g0 + 1, sig * 24 + 23), a_rd(sn, jn & 7, 1))
    def bar(g, need, extra=()):
        al.put(g, ["s_waitcnt lgkmcnt(0)", Ins("s_barrier", lr=list(need))] + list(extra))
    bar(OPT['pub'], ["OST"], [f"v_mov_b32 v247, s53", f"buffer_store_dword v247, v{vSY}, s[24:27], s52 offen sc1"])
    for s_ in (3, 5, 7, 9, 11, 13): bar(s_ * 24 + 13, [f"W{s_+1}", f"W{s_+2}"])
    used = set([OPT['pub']])
    def place(g0, lst, stride):
        gs = []; g = g0
        for _ in lst:
            while g in used or (g - 1) in used or g % 24 == 0 and g // 24 == POL: g += 1
            gs.append(g); used.add(g); g += stride
        put_vm(al, gs, lst); return g
    al.put(POL * 24 - OPT['pe'], f"buffer_load_dwordx4 v[232:235], v{vSY}, s[24:27], s54 offen sc1"); used.add(POL * 24 - OPT['pe'])
    g = POL * 24 + 1
    for sig in range(4, 16):
        g = place(max(g, (sig - 8 + 1) * 24 + 1), ox_load(sig), OPT['oxs'] if sig < 4 + OPT['oxn'] else 4)
    g = place(2, [x for tl in range(NWPRE, NSL) for x in wo_tile(tl)], 3)
    for tl in range(NSL, 16):
        st = tl - NSL
        sb = 3 if st <= 3 else (st if st % 2 else st + 1)
        g = place(max(g, sb * 24 + 16), wo_tile(tl), OPT['wls'])
    if OPT['st2']:
        for idx, s_ in ((2, 8), (3, 12)): al.put(s_ * 24 - 1, stamp_ops(idx))
    def seg(s0, s1):
        r = Slots()
        for k_, v_ in al.items():
            if s0 * 24 <= k_ < s1 * 24: r[k_ - s0 * 24] = list(v_)
        schedule(p, [op_mfma(sig, j, t) for sig in range(s0, s1) for j in range(8) for t in range(3)], r)
    seg(0, POL)
    p.raw(f"""
s_mov_b32 s51, 0
s_cmp_lg_u32 s3, 0
s_cbranch_scc1 L1_go
L1_poll:
s_waitcnt vmcnt(0)
v_readfirstlane_b32 s66, v232
v_readfirstlane_b32 s60, v233
v_readfirstlane_b32 s68, v234
v_readfirstlane_b32 s69, v235
s_xor_b32 s66, s66, s53
s_xor_b32 s60, s60, s53
s_xor_b32 s68, s68, s53
s_xor_b32 s69, s69, s53
s_or_b32 s66, s66, s60
s_or_b32 s68, s68, s69
s_or_b32 s66, s66, s68
s_cbranch_scc0 L1_go
s_sleep 2
buffer_load_dwordx4 v[232:235], v{vSY}, s[24:27], s54 offen sc1
s_add_u32 s51, s51, 1
s_cmp_lt_u32 s51, 0x40000
s_cbranch_scc1 L1_poll
L1_go:
""")
    I("s_barrier")
    stamp(p, 9)
    seg(POL, 16)
    if OPT['st2']: stamp(p, 4)
    I(f"""
s_mul_i32 s66, s3, 24576
v_add_u32 v240, s66, v{rL16}
s_xor_b32 s67, s3, 2
s_mul_i32 s67, s67, 24576
v_add_u32 v241, s67, v{rL16}
s_add_u32 s28, s18, {P_WS_OFF}
s_addc_u32 s29, s19, 0
s_and_b32 s29, s29, 0xffff
s_mov_b32 s30, {P_BYTES}
s_lshr_b32 s66, s49, 2
s_lshl_b32 s66, s66, 4
s_add_u32 s66, s66, s48
s_mul_i32 s66, s66, 6
s_and_b32 s67, s3, 1
s_mul_i32 s67, s67, 3
s_add_u32 s66, s66, s67
s_lshl_b32 s66, s66, 15
s_lshl_b32 s67, s71, 13
s_add_u32 s66, s66, s67
s_lshr_b32 s67, s3, 1
s_lshl_b32 s67, s67, 12
s_add_u32 s66, s66, s67
s_waitcnt lgkmcnt(0)
s_barrier
""")
    for i in range(24): I(f"ds_write_b128 v240, a[{96+4*i}:{99+4*i}] offset:{i*1024}")
    for r in range(96): I(f"v_accvgpr_read_b32 v{r}, a{r}")
    I("s_waitcnt lgkmcnt(0)\ns_barrier")
    for i in range(24): I(f"ds_read_b128 v[{96+4*i}:{99+4*i}], v241 offset:{i*1024}")
    for n in range(2):
        for t in range(3):
            o = (n * 3 + t) * 16
            for pr in range(8): I(f"v_pk_add_f32 v[{o+2*pr}:{o+2*pr+1}], v[{o+2*pr}:{o+2*pr+1}], v[{96+o+2*pr}:{97+o+2*pr}]")
            ob = 192 + (n * 3 + t) * 8
            for pr in range(8): I(f"v_cvt_pk_bf16_f32 v{ob+pr}, v{o+2*pr}, v{o+2*pr+1}")
            I(f"s_add_u32 s67, s66, {t*32768}")
            for s2 in range(2):
                I(f"buffer_store_dwordx4 v[{ob+4*s2}:{ob+4*s2+3}], v{rL16}, s[28:31], s67 offen offset:{(n*2+s2)*1024} {OPT['pst']}")
    if OPT['stamp']:
        I("s_waitcnt vmcnt(0)")
        stamp(p, 1)
        stamp_out(p, 10, 0)
    I("L1_end:\ns_endpgm\nL1_code_end:")
    return p

def gen_slow():
    p = Prog(); I = p.I
    M = [232, 233, 234]; T = [235, 236, 237]
    M = [S[1], S[1] + 1, S[1] + 2]; T = [S[1] + 3, S[1] + 4, S[1] + 5]
    I("L1_slow:\ns_nop 15\ns_waitcnt vmcnt(0) lgkmcnt(0)\ns_barrier")
    I(f"v_mbcnt_lo_u32_b32 v{S[1]+8}, -1, 0\nv_mbcnt_hi_u32_b32 v{S[1]+8}, -1, v{S[1]+8}")
    for x in kv_addr_setup(f"v{S[1]+8}", S[1] + 9): I(x)
    for t in range(3): I(f"v_mov_b32 v{M[t]}, 0xff800000")
    def load(kinds):
        for kind in kinds:
            pre, dm = kv_tile(kind, 0, KS[0] if kind == 'K' else VS[0], soff="s60", tag=False)
            for x in pre: I(x)
            for d in dm: p.add(d)
        I("s_waitcnt vmcnt(0)\ns_barrier")
    I("s_mov_b32 s60, 0\nL1_s1:")
    p.loop_begin(2)
    load("K")
    for ks in range(8): I(k_read(ks, KS[0]))
    for ks in range(8):
        for t in range(3): I(s_mfma(S[0], t, ks, True))
    for t in range(3):
        b = S[0] + 16 * t
        for r in range(0, 16, 2): I(f"v_max3_f32 v{M[t]}, v{M[t]}, v{b+r}, v{b+r+1}")
    I("s_barrier\ns_add_u32 s60, s60, 8192\ns_cmp_lt_u32 s60, 131072\ns_cbranch_scc1 L1_s1")
    p.loop_end()
    for t in range(3): I(f"v_mov_b32 v{T[t]}, v{M[t]}")
    for t in range(3): I(f"v_permlane32_swap_b32 v{T[t]}, v{M[t]}")
    for t in range(3): I(f"v_max_f32 v{M[t]}, v{M[t]}, v{T[t]}")
    for t in range(3):
        for r in range(16): I(f"v_sub_f32 v{NEGM[t]+r}, 0, v{M[t]}")
        I(f"v_mov_b32 v{vL[t]}, 0")
    for r in range(192): I(f"v_accvgpr_write_b32 a{r}, 0")
    I("s_mov_b32 s60, 0\nL1_s2:")
    p.loop_begin(2)
    load("KV")
    for ks in range(8): I(k_read(ks, KS[0]))
    for ks in range(8):
        for t in range(3): I(s_mfma(S[0], t, ks))
    for j in range(8):
        I(v_read(j, 0, VS[0])); I(v_read(j, 1, VS[0]))
    for e in range(49):
        for x in sm_ops(S[0], e): I(x)
    for j in range(8):
        for t in range(3): I(pv_mfma(S[0], j, t))
    I("s_barrier\ns_add_u32 s60, s60, 8192\ns_cmp_lt_u32 s60, 131072\ns_cbranch_scc1 L1_s2")
    p.loop_end()
    for x in fin_ops(): I(x)
    for sig in range(NWPRE):
        for pre, d in wo_tile(sig):
            for x in pre: I(x)
            p.add(d)
    I("s_waitcnt vmcnt(0)\ns_barrier\ns_nop 15\ns_branch L1_norm")
    return p

def gen_red():
    p = Prog(); I = p.I
    I("s_cmp_ge_u32 s2, 768\ns_cbranch_scc1 L2_end")
    I("s_load_dwordx2 s[14:15], s[0:1], 40\ns_load_dwordx2 s[18:19], s[0:1], 56")
    stamp(p, 0)
    I(f"""
v_lshrrev_b32 v1, 6, v0
v_and_b32 v0, 63, v0
v_readfirstlane_b32 s3, v1
v_lshrrev_b32 v2, 3, v0
v_and_b32 v3, 7, v0
v_lshlrev_b32 v4, 9, v2
v_lshl_add_u32 v4, v3, 4, v4
v_lshlrev_b32 v5, 4, v2
v_lshl_add_u32 v5, v3, 10, v5
s_lshl_b32 s4, s2, 2
s_add_u32 s4, s4, s3
s_lshr_b32 s5, s4, 5
s_bfe_u32 s6, s4, 0x20003
s_and_b32 s7, s4, 7
s_lshl_b32 s8, s5, 15
s_lshl_b32 s9, s7, 12
s_add_u32 s9, s9, s8
s_lshl_b32 s10, s6, 7
s_add_u32 s9, s9, s10
s_lshl_b32 s10, s6, 13
s_add_u32 s8, s8, s10
s_lshl_b32 s10, s7, 7
s_add_u32 s8, s8, s10
s_waitcnt lgkmcnt(0)
s_add_u32 s20, s18, {P_WS_OFF}
s_addc_u32 s21, s19, 0
s_and_b32 s21, s21, 0xffff
s_mov_b32 s22, {P_BYTES}
s_mov_b32 s23, 0x00020000
""")
    for g in range(4):
        I(f"buffer_load_dwordx4 v[{8+4*g}:{11+4*g}], v4, s[20:23], s9 offen {OPT['rld']}")
        if g < 3: I(f"s_add_u32 s9, s9, {16*192*1024}")
    srd(p, 24, 14, 15, 16 * 192 * 1024)
    for d in range(4):
        for g in range(4):
            r = 8 + 4 * g + d
            I(f"v_lshlrev_b32 v{24+2*g}, 16, v{r}\nv_and_b32 v{25+2*g}, 0xffff0000, v{r}")
        I(f"v_pk_add_f32 v[24:25], v[24:25], v[26:27]\nv_pk_add_f32 v[28:29], v[28:29], v[30:31]\nv_pk_add_f32 v[24:25], v[24:25], v[28:29]")
        I(f"v_cvt_pk_bf16_f32 v{32+d}, v24, v25")
    I("buffer_store_dwordx4 v[32:35], v5, s[24:27], s8 offen")
    if OPT['stamp']:
        I("s_waitcnt vmcnt(0)")
        stamp(p, 1)
        I("s_cmp_ge_u32 s2, 256\ns_cbranch_scc1 L2_end\ns_mul_i32 s2, s2, 1")
        stamp_out(p, 2, 0x20000)
    I("L2_end:\ns_endpgm")
    return p

def kd(name, vg, acc, sg=102):
    return f""".p2align 6
.amdhsa_kernel {name}
  .amdhsa_next_free_vgpr {vg}
  .amdhsa_next_free_sgpr {sg}
  .amdhsa_accum_offset {acc}
  .amdhsa_group_segment_fixed_size 0
  .amdhsa_kernarg_size 64
  .amdhsa_user_sgpr_count 2
  .amdhsa_user_sgpr_kernarg_segment_ptr 1
  .amdhsa_system_sgpr_workgroup_id_x 1
  .amdhsa_float_denorm_mode_32 3
.end_amdhsa_kernel
"""

def main():
    k1 = gen_k1(); k1.resolve(); t1, s1 = k1.emit()
    ks = gen_slow(); ks.resolve(); ts, _ = ks.emit(); t1 += ts
    k2 = gen_red(); k2.resolve(); t2, s2 = k2.emit()
    sys.stderr.write(f"k1 {s1}  k2 {s2}\n")
    hdr = open('cdna_kernels/' + NAME + '.s.ref').read().split('\n')
    top = [l for l in hdr if l.startswith(';') and '@launch' not in l and 'Override' not in l and 'grid=ceil' not in l]
    out = '\n'.join(top) + f"""
; @launch kernel=attn_kernel grid=(256,1,1) block=(256,1,1) lds=163840
; @launch kernel=reduce_kernel grid=(768,1,1) block=(256,1,1) lds=0
.amdgcn_target "amdgcn-amd-amdhsa--gfx950"
.text
.globl attn_kernel
.p2align 8
.type attn_kernel,@function
attn_kernel:
{t1}
.globl reduce_kernel
.p2align 8
.type reduce_kernel,@function
reduce_kernel:
{t2}
.section .rodata,"a"
{kd('attn_kernel', 512, 256)}{kd('reduce_kernel', 40, 40, 102 if OPT['stamp'] else 32)}"""
    open(sys.argv[1], 'w').write(out)
main()
```

```python
import sys, math, struct
from asmlib import *
NAME = "standalone__mha_block_cached__near_ridge"
OPT = dict(stamp=0, la=0, ws2=2, npk=1, pa=44, pl=72, pl2=144, pbs=3, nbud=32, w6=59, w6s=2, wmar=20, oxt=4, st2=0, kvsz=1, xw=1, rh=2, rb=1, rmask=7, pre1=8, bud=24, tbud=28, dcost=12,
           ost='sc1', oxl='sc1', pst='sc1', rld='', pub=13, pol=3, pe=12, oxs=1, oxn=2, wls=6, ctouch=1,
           dlast=660, thr=2.0**40, xreg=1)
for a in sys.argv[2:]:
    k, v = a.split('=')
    try: OPT[k] = int(v, 0)
    except ValueError:
        try: OPT[k] = float(v)
        except ValueError: OPT[k] = v.replace('+', ' ')

def f2u(x): return struct.unpack('<I', struct.pack('<f', x))[0]
SCALE = math.log2(math.e) / math.sqrt(128.0)

XBLK = 1056; XSZ = 24 * XBLK
WQSZ = 32768
BUFSZ = XSZ + WQSZ
BUFA = 163840 - 2 * BUFSZ
KRG = 4128
KSZ = 4 * KRG; VSZ = 16384
KS = [0, 32896, 65792, 98688, 131584]
VS = [16512, 49408, 82304, 115200]
SPARE = 148096
WIN = 65792
O_WS_OFF = 0x1000000; O_BYTES = 16 * 192 * 4096 * 2
FLAG_OFF = 0x800000
P_WS_OFF = 0x4000000; P_BYTES = 4 * 16 * 192 * 512 * 2

def srd(p, d, lo, hi, size):
    p.I(f"s_mov_b32 s{d}, s{lo}\ns_and_b32 s{d+1}, s{hi}, 0xffff\ns_mov_b32 s{d+2}, {size}\ns_mov_b32 s{d+3}, 0x00020000")
def stamp_ops(idx):
    if not OPT['stamp']: return []
    return ["s_memrealtime s[78:79]", "s_memtime s[76:77]", "s_waitcnt lgkmcnt(0)", f"s_mov_b32 s{80+idx}, s78", f"s_mov_b32 s{90+idx}, s76"]
def stamp(p, idx):
    for x in stamp_ops(idx): p.I(x)
def stamp_out(p, nst, base_off):
    if not OPT['stamp']: return
    p.I(f"""
s_mov_b32 s72, s18
s_and_b32 s73, s19, 0xffff
s_mov_b32 s74, 0x1000000
s_mov_b32 s75, 0x00020000
s_lshl_b32 s76, s2, 2
s_add_u32 s76, s76, s3
s_lshl_b32 s76, s76, 7
s_add_u32 s76, s76, {base_off}
v_mov_b32 v1, 0
""")
    for i in range(nst):
        p.I(f"v_mov_b32 v2, s{80+i}\nbuffer_store_dword v2, v1, s[72:75], s76 offen offset:{4*i}")
        p.I(f"v_mov_b32 v2, s{90+i}\nbuffer_store_dword v2, v1, s[72:75], s76 offen offset:{64+4*i}")

def txt(x): return x.text if isinstance(x, Ins) else x
def cost(x):
    mn = txt(x).split()[0]
    if mn.startswith('v_exp') or mn.startswith('v_rcp'): return 8
    if mn.startswith('ds_write'): return 8
    if mn.startswith('buffer_') or mn.startswith('global_'): return OPT['dcost']
    if mn.startswith('v_pk_'): return 8
    return 4
class Slots(dict):
    def put(self, g, x): self.setdefault(g, []).extend(x if isinstance(x, list) else [x])
def em(p, x):
    if isinstance(x, Ins): p.add(x)
    else: p.I(x)
def schedule(p, mfmas, fixed, streams=(), budget=None):
    streams = [list(s) for s in streams]
    for x in fixed.get(-1, []): em(p, x)
    for g, m in enumerate(mfmas):
        p.I(m)
        used = 0
        for f in fixed.get(g, []):
            em(p, f); used += cost(f)
        b = budget(g) if budget else OPT['bud']
        while True:
            c = [s for s in streams if s and s[0][1] <= g]
            if not c: break
            fs = [s for s in c if any(x[2] <= g for x in s[:200])]
            s = fs[0] if fs else min(c, key=lambda s: min(x[2] for x in s[:8]))
            if fs or used + cost(s[0][0]) <= b:
                op = s.pop(0)[0]; em(p, op); used += cost(op)
            else: break
    for s in streams:
        for op, _, _ in s: em(p, op)
    for g in fixed:
        assert g < len(mfmas), f"fixed slot {g} beyond region {len(mfmas)}: {fixed[g]}"

vK, vV0, vV1 = 240, 241, 242
vOK = [243, 244]; vOV = [245, 246]
vL = [247, 248, 249]
vX, vW0, vW1, vOX, vOW = 250, 251, 252, 253, 254
vSY = 255
S = [64, 112]; NEGM = [224, 160, 176]; QB = [192, 0, 32]
FR = 224
def fr(n): return FR + (n % 8) * 4
def qfrag(t, ksd): b = QB[t] + 4 * ksd; return f"v[{b}:{b+3}]"
def acc(t, dt): return (t * 4 + dt) * 16

def kv_addr_setup(lane, t0):
    a, b, c, d, e = [f"v{t0+i}" for i in range(5)]
    return f"""v_lshrrev_b32 {a}, 3, {lane}
v_and_b32 {b}, 7, {lane}
v_bfe_u32 {c}, {lane}, 4, 1
v_xor_b32 {d}, {b}, {c}
v_lshlrev_b32 {d}, 4, {d}
v_lshlrev_b32 {e}, 2, {c}
v_xor_b32 {e}, {b}, {e}
v_lshlrev_b32 {e}, 4, {e}
v_lshl_add_u32 {d}, {a}, 8, {d}
v_lshl_add_u32 {e}, {a}, 8, {e}
s_lshl_b32 s66, s3, 11
s_add_u32 s67, s66, 128
s_add_u32 s66, s66, 1024
v_add_u32 v{vOK[0]}, s66, {d}
v_add_u32 v{vOK[1]}, s67, {d}
v_add_u32 v{vOV[0]}, s66, {e}
v_add_u32 v{vOV[1]}, s67, {e}
s_lshr_b32 s66, s3, 1
s_lshl_b32 s66, s66, 11
v_bfe_u32 {a}, {lane}, 3, 2
v_mul_u32_u24 {a}, {KRG}, {a}
v_lshl_add_u32 {a}, {b}, 7, {a}
v_lshrrev_b32 {c}, 5, {lane}
v_bfe_u32 {d}, {lane}, 1, 1
v_xor_b32 {d}, {c}, {d}
v_lshl_add_u32 {a}, {d}, 4, {a}
v_add_u32 v{vK}, s66, {a}
v_bfe_u32 {a}, {lane}, 2, 2
v_lshlrev_b32 {a}, 7, {a}
v_lshl_add_u32 {a}, {c}, 9, {a}
v_bfe_u32 {d}, {lane}, 3, 1
v_lshl_add_u32 {a}, {d}, 6, {a}
v_bfe_u32 {d}, {lane}, 4, 1
v_lshl_add_u32 {a}, {d}, 5, {a}
v_and_b32 {d}, 3, {lane}
v_lshl_add_u32 {a}, {d}, 3, {a}
v_add_u32 v{vV0}, s66, {a}
v_xor_b32 v{vV1}, 64, v{vV0}
s_mul_i32 s61, s3, {KRG}
s_lshl_b32 s62, s3, 12""".split('\n')

def kv_tile(kind, n, dst, soff=None, tag=True):
    pre = [f"s_add_u32 m0, s{61 if kind == 'K' else 62}, {dst}"]
    if soff is None:
        pre.append(f"s_mov_b32 s59, {n*8192}"); soff = "s59"
    dm = []
    for hd in range(2):
        for half in range(2):
            sr = (28 if kind == 'K' else 36) + 4 * hd
            v = (vOK if kind == 'K' else vOV)[half]
            dm.append(Ins(f"buffer_load_dwordx4 v{v}, s[{sr}:{sr+3}], {soff} offen offset:{hd*2048+half*1024} nt lds", lw=[f"{kind}{n}"] if tag else []))
    return pre, dm
def k_read(ks, off): b = fr(ks); return f"ds_read_b128 a[{b}:{b+3}], v{vK} offset:{off + (ks>>2)*1024 + (ks&3)*32}"
def v_read(j, sec, off):
    ks, dt = j >> 2, j & 3
    b = fr(8 + j) + 2 * sec
    return f"ds_read_b64_tr_b16 a[{b}:{b+1}], v{vV1 if dt & 1 else vV0} offset:{off + (2*ks + sec)*4096 + (dt>>1)*1024}"
def s_mfma(buf, t, ks, czero=False):
    d = f"v[{buf+t*16}:{buf+t*16+15}]"
    c = d if ks else ("0" if czero else f"v[{NEGM[t]}:{NEGM[t]+15}]")
    return f"v_mfma_f32_32x32x16_bf16 {d}, a[{fr(ks)}:{fr(ks)+3}], {qfrag(t, ks)}, {c}"
def pv_mfma(buf, j, t, czero=False):
    ks, dt = j >> 2, j & 3
    o = (dt * 3 + t) * 16
    b = buf + t * 16 + 8 * ks
    c = "0" if (czero and ks == 0) else f"a[{o}:{o+15}]"
    return f"v_mfma_f32_32x32x16_bf16 a[{o}:{o+15}], a[{fr(8+j)}:{fr(8+j)+3}], v[{b}:{b+3}], {c}"
def ereg(buf, e):
    h, t, j = e // 24, (e % 24) // 8, e % 8
    return buf + t * 16 + 8 * h + j, t
def sm_ops(buf, e):
    out = []
    if e < 48:
        r, t = ereg(buf, e); out.append(f"v_exp_f32 v{r}, v{r}")
    if 1 <= e <= 48:
        r, t = ereg(buf, e - 1); out.append(f"v_add_f32 v{vL[t]}, v{vL[t]}, v{r}")
    if e >= 2 and e % 2 == 0 and e <= 48:
        r, t = ereg(buf, e - 2); base = r - ((e - 2) % 8)
        out.append(f"v_cvt_pk_bf16_f32 v{base + ((e-2) % 8)//2}, v{r}, v{r+1}")
    return out

rOW = [250, 251]; rLn = 252
rA = [240, 241]
RC = [224, 226, 228]
WSL = [KS[1], KS[2], KS[3], VS[0], KS[4], VS[1], KS[0], VS[2], VS[3]]
NSL = len(WSL)
def step_of(sig): return (0, sig) if sig < 4 else (1 + (sig - 4) % 3, (sig - 4) // 3)
def wo_setup():
    a, b, c = "v253", "v254", f"v{rOW[1]}"
    out = f"""v_mbcnt_lo_u32_b32 v{rLn}, -1, 0
v_mbcnt_hi_u32_b32 v{rLn}, -1, v{rLn}
s_and_b32 s71, s49, 3
s_andn2_b32 s70, s49, 3
s_lshl_b32 s67, s71, 8
s_lshl_b32 s68, s3, 13
s_add_u32 s69, s68, {0x20000 - 2048}
v_lshrrev_b32 {a}, 3, v{rLn}
v_and_b32 {b}, 7, v{rLn}
v_bfe_u32 {c}, v{rLn}, 4, 1
v_lshlrev_b32 {c}, 2, {c}
v_xor_b32 {b}, {b}, {c}
v_lshlrev_b32 {b}, 4, {b}
v_lshl_add_u32 {b}, {a}, 10, {b}
v_add_u32 v{rOW[0]}, s68, {b}
v_add_u32 v{rOW[1]}, s69, {b}""".split('\n')
    for rho in range(4):
        out += [f"s_add_u32 s69, s71, {rho}", "s_and_b32 s69, s69, 3", "s_add_u32 s69, s69, s70", f"s_lshl_b32 s{WOB[rho]}, s69, 18", f"s_add_u32 s{WOB[rho]}, s{WOB[rho]}, s67"]
    return out
WOB = [50, 56, 57, 58]
def wo_tile(sig):
    rho, dq = step_of(sig)
    dst = WSL[sig % NSL]
    out = []
    for hd in range(2):
        for pos in range(2):
            half = pos ^ hd
            d = dq * 32768 + half * 128 - pos * 1024 + 1024
            pre = [f"s_add_u32 s59, s{WOB[rho]}, {d}"]
            if hd == 0 and pos == 0: pre = [f"s_add_u32 m0, s62, {dst}"] + pre
            out.append((pre, Ins(f"buffer_load_dwordx4 v{rOW[hd]}, s[8:11], s59 offen offset:{hd*2048+pos*1024} lds", lw=[f"W{sig}"])))
    return out
def fin_ops():
    T = [232, 233, 234]
    fin = []
    for t in range(3): fin.append(f"v_mov_b32 v{T[t]}, v{vL[t]}")
    for t in range(3): fin.append(f"v_permlane32_swap_b32 v{T[t]}, v{vL[t]}")
    for t in range(3): fin.append(f"v_add_f32 v{vL[t]}, v{vL[t]}, v{T[t]}")
    for t in range(3): fin.append(f"v_rcp_f32 v{RC[t]}, v{vL[t]}")
    for t in range(3): fin.append(f"v_mov_b32 v{RC[t]+1}, v{RC[t]}")
    return fin
NWPRE = 6

def gen_k1():
    p = Prog(); I = p.I
    vM = [vX, vW0, vW1]; vT = [vOX, vOW, vOX]
    I("s_cmp_ge_u32 s2, 256\ns_cbranch_scc1 L1_end")
    stamp(p, 0)
    I("s_load_dwordx16 s[4:19], s[0:1], 0")
    I(f"""
v_lshrrev_b32 v1, 6, v0
v_lshlrev_b32 v{vSY}, 20, v0
v_and_b32 v0, 63, v0
v_readfirstlane_b32 s3, v1
s_and_b32 s66, s2, 7
s_lshr_b32 s67, s2, 3
s_and_b32 s48, s66, 1
s_lshl_b32 s48, s48, 3
s_lshr_b32 s68, s67, 2
s_add_u32 s48, s48, s68
s_lshr_b32 s49, s66, 1
s_lshl_b32 s49, s49, 2
s_and_b32 s69, s67, 3
s_add_u32 s49, s49, s69
s_lshl_b32 s65, s66, 3
s_add_u32 s65, s65, s68
s_mul_i32 s52, s69, {OPT['rh']}
s_mul_i32 s68, s68, {OPT['rb']}
s_add_u32 s52, s52, s68
s_and_b32 s52, s52, {OPT['rmask']}
v_lshrrev_b32 v2, 3, v0
v_and_b32 v3, 7, v0
v_bfe_u32 v4, v0, 4, 1
v_xor_b32 v5, v3, v4
v_lshlrev_b32 v5, 4, v5
v_lshlrev_b32 v6, 2, v4
v_xor_b32 v6, v3, v6
v_lshlrev_b32 v6, 4, v6
v_lshl_add_u32 v{vOX}, v2, 10, v5
v_lshl_add_u32 v{vOW}, v2, 13, v6
s_mul_i32 s50, s48, {192*1024}
s_mul_i32 s66, s3, {48*1024}
s_add_u32 s50, s50, s66
s_lshl_b32 s51, s49, 9
s_lshl_b32 s66, s3, 7
s_add_u32 s51, s51, s66
s_mul_i32 s57, s3, {6*XBLK}
s_lshl_b32 s58, s3, 10
s_waitcnt lgkmcnt(0)
""")
    srd(p, 20, 4, 5, 16 * 192 * 1024 * OPT['xw'])
    srd(p, 24, 10, 11, 512 * 8192 * OPT['xw'])
    def stage_dma(st):
        buf = BUFA + (st & 1) * BUFSZ
        pre0 = ["s_lshl_b32 s54, s52, 7", "s_add_u32 s54, s54, s50", "s_lshl_b32 s55, s52, 19", "s_add_u32 s55, s55, s51",
                "s_add_u32 s52, s52, 1", "s_and_b32 s52, s52, 7"]
        out = []
        for j in range(6):
            out.append(([f"s_add_u32 m0, s57, {buf + j*XBLK}", f"s_add_u32 s56, s54, {j*8192}"],
                        Ins(f"buffer_load_dwordx4 v{vOX}, s[20:23], s56 offen lds", lw=[f"Q{st}"])))
        for rg in range(8):
            out.append(([f"s_add_u32 m0, s58, {buf + XSZ + rg*4096}", f"s_add_u32 s56, s55, {rg*65536}"],
                        Ins(f"buffer_load_dwordx4 v{vOW}, s[24:27], s56 offen lds", lw=[f"Q{st}"])))
        out[0] = (pre0 + out[0][0], out[0][1])
        return out
    def emit_vm(lst):
        for pre, x in lst:
            for y in pre: I(y)
            em(p, x)
    def touch(st_ahead):
        if not OPT['la']: return []
        return [([f"s_add_u32 s66, s52, {st_ahead}", "s_and_b32 s66, s66, 7", "s_lshl_b32 s67, s66, 7", "s_lshl_b32 s66, s66, 19"],
                 f"buffer_load_dword a{TCH[0] % 8 + 98}, v228, s[20:23], s67 offen"),
                ([], f"buffer_load_dword a{(TCH[0] + 1) % 8 + 98}, v229, s[24:27], s66 offen")] + [TCH.__setitem__(0, TCH[0] + 2)][:0]
    TCH = [0]
    if OPT['la']:
        I(f"""
v_min_u32 v228, 11, v0
v_lshlrev_b32 v228, 10, v228
s_mul_i32 s66, s48, {192*1024}
s_and_b32 s67, s49, 3
s_mul_i32 s67, s67, {48*1024}
s_add_u32 s66, s66, s67
s_mul_i32 s67, s3, {12*1024}
s_add_u32 s66, s66, s67
v_add_u32 v228, s66, v228
v_bfe_u32 v229, v0, 2, 1
v_lshlrev_b32 v229, 13, v229
v_and_b32 v7, 3, v0
v_lshl_add_u32 v229, v7, 7, v229
s_and_b32 s66, s48, 7
s_lshl_b32 s66, s66, 2
s_add_u32 s66, s66, s3
s_lshl_b32 s66, s66, 14
s_lshl_b32 s67, s49, 9
s_add_u32 s66, s66, s67
v_add_u32 v229, s66, v229
""")
        for a_ in range(1, OPT['la'] + 1): emit_vm(touch(a_))
    emit_vm(stage_dma(0))
    if OPT['ctouch']:
        I(f"""
s_getpc_b64 s[68:69]
L1_pc:
s_lshr_b32 s66, s2, 3
s_lshl_b32 s66, s66, 2
s_add_u32 s66, s66, s3
s_lshl_b32 s66, s66, 9
s_min_u32 s66, s66, L1_code_end-L1_pc-512
s_add_u32 s68, s68, s66
s_addc_u32 s69, s69, 0
v_lshlrev_b32 v7, 3, v0
global_load_dword a255, v7, s[68:69]
""")
    for x in kv_addr_setup("v0", 2): I(x)
    ksz = (131072 + 3072) * OPT['kvsz']
    I(f"""
s_lshl_b32 s66, s48, 5
s_lshl_b32 s67, s49, 1
s_add_u32 s66, s66, s67
s_lshl_b32 s66, s66, 17
s_add_u32 s28, s6, s66
s_addc_u32 s29, s7, 0
s_sub_u32 s28, s28, 1024
s_subb_u32 s29, s29, 0
s_and_b32 s29, s29, 0xffff
s_add_u32 s32, s28, {0x20000 - 2048}
s_addc_u32 s33, s29, 0
s_add_u32 s36, s8, s66
s_addc_u32 s37, s9, 0
s_sub_u32 s36, s36, 1024
s_subb_u32 s37, s37, 0
s_and_b32 s37, s37, 0xffff
s_add_u32 s40, s36, {0x20000 - 2048}
s_addc_u32 s41, s37, 0
s_mov_b32 s30, {(131072 + 1024) * OPT['kvsz']}
s_mov_b32 s34, {ksz}
s_mov_b32 s38, {(131072 + 1024) * OPT['kvsz']}
s_mov_b32 s42, {ksz}
s_mov_b32 s31, 0x00020000
s_mov_b32 s35, 0x00020000
s_mov_b32 s39, 0x00020000
s_mov_b32 s43, 0x00020000
s_add_u32 s44, s18, {O_WS_OFF}
s_addc_u32 s45, s19, 0
s_and_b32 s45, s45, 0xffff
s_mov_b32 s46, {O_BYTES}
s_mov_b32 s47, 0x00020000
s_mov_b32 s72, s16
s_and_b32 s73, s17, 0xffff
s_mov_b32 s74, 256
s_mov_b32 s75, 0x00020000
s_mov_b32 s64, {f2u(SCALE):#x}
s_add_u32 s4, s18, {FLAG_OFF}
s_addc_u32 s5, s19, 0
s_and_b32 s5, s5, 0xffff
s_mov_b32 s6, 8192
s_mov_b32 s7, 0x00020000
s_lshl_b32 s53, s65, 7
s_lshl_b32 s65, s65, 2
s_sub_u32 s8, s12, 1024
s_subb_u32 s9, s13, 0
s_and_b32 s9, s9, 0xffff
s_mov_b32 s10, {4096*1024+1024}
s_mov_b32 s11, 0x00020000
s_lshr_b32 s63, s49, 2
s_lshl_b32 s63, s63, 5
s_lshr_b32 s66, s2, 3
s_add_u32 s63, s63, s66
s_lshl_b32 s63, s63, 2
s_add_u32 s63, s63, s3
s_lshl_b32 s63, s63, 13
s_lshr_b32 s66, s3, 1
s_and_b32 s67, s3, 1
v_bfe_u32 v3, v0, 3, 2
v_mul_u32_u24 v3, {XBLK}, v3
v_and_b32 v4, 7, v0
v_lshl_add_u32 v3, v4, 7, v3
v_lshrrev_b32 v4, 5, v0
v_bfe_u32 v5, v0, 1, 1
v_xor_b32 v5, v4, v5
v_lshl_add_u32 v3, v5, 4, v3
s_mul_i32 s68, s67, {12*XBLK}
s_add_u32 s68, s68, {BUFA}
v_add_u32 v{vX}, s68, v3
v_bfe_u32 v2, v0, 2, 2
v_lshlrev_b32 v2, 7, v2
v_bfe_u32 v3, v0, 3, 1
v_lshl_add_u32 v2, v3, 6, v2
v_bfe_u32 v3, v0, 4, 1
v_lshl_add_u32 v2, v3, 5, v2
v_and_b32 v3, 1, v0
v_lshl_add_u32 v2, v3, 4, v2
v_bfe_u32 v3, v0, 1, 1
v_lshl_add_u32 v2, v3, 3, v2
v_lshl_add_u32 v2, v4, 12, v2
s_lshl_b32 s68, s66, 11
s_add_u32 s68, s68, {BUFA + XSZ}
v_add_u32 v{vW0}, s68, v2
v_xor_b32 v{vW1}, 64, v{vW0}
""")
    for r in vL: I(f"v_mov_b32 v{r}, 0")
    st1 = stage_dma(1)
    emit_vm(st1[:OPT['pre1']])
    PFT = [('K', 1, 0), ('V', 1, 16), ('K', 2, 32), ('V', 2, 48), ('K', 3, 64), ('V', 3, 80)]
    def pf_load(kind, n, base):
        out = []
        for hd in range(2):
            for half in range(2):
                r = base + 4 * (hd * 2 + half)
                sr = (28 if kind == 'K' else 36) + 4 * hd
                v = (vOK if kind == 'K' else vOV)[half]
                out.append(([f"s_mov_b32 s60, {n*8192}"] if hd + half == 0 else [],
                            f"buffer_load_dwordx4 a[{r}:{r+3}], v{v}, s[{sr}:{sr+3}], s60 offen offset:{hd*2048+half*1024} nt"))
        return out
    def pf_write(kind, base, areg, off):
        return [f"ds_write_b128 v{areg}, a[{base+4*i}:{base+4*i+3}] offset:{off + i*1024}" for i in range(4)]
    def tile_vm(kind, n, dst):
        pre, dm = kv_tile(kind, n, dst)
        return [(pre if i == 0 else [], d) for i, d in enumerate(dm)]
    NA, NB = 112, 144
    def a_read(ks, dt, sec, dst): return f"ds_read_b64_tr_b16 a[{dst+2*sec}:{dst+2*sec+1}], v{vW1 if dt & 1 else vW0} offset:{ks*8192 + (dt>>1)*1024 + sec*512}"
    def b_read(ks, t, dst): return f"ds_read_b128 a[{dst}:{dst+3}], v{vX} offset:{t*4*XBLK + ks*32}"
    def qp_reads(ks):
        par = ks & 1
        A = [a_read(ks, dt, sec, NA + 16 * par + 4 * dt) for dt in range(4) for sec in range(2)]
        B = [b_read(ks, t, NB + 12 * par + 4 * t) for t in range(3)]
        return A[:2] + B + A[2:]
    def qp_mfmas(first):
        ms = []
        for ks in range(4):
            par = ks & 1
            for dt in range(4):
                for t in range(3):
                    d = f"v[{acc(t,dt)}:{acc(t,dt)+15}]"
                    a = NA + 16 * par + 4 * dt; b = NB + 12 * par + 4 * t
                    ms.append(f"v_mfma_f32_32x32x16_bf16 {d}, a[{a}:{a+3}], a[{b}:{b+3}], {'0' if first and ks == 0 else d}")
        return ms
    A7 = [112, 168, 128, 144]; B7 = [192, 208, 192]
    def put_vm(sl, gaps, lst):
        for g, (pre, x) in zip(gaps, lst):
            sl.put(g - 1, list(pre))
            sl.setdefault(g, []).insert(0, x)
        assert len(gaps) >= len(lst), (len(gaps), len(lst))
    def qp_stage(s, carry):
        sl = Slots()
        def put_reads(g0, rs):
            for i, r in enumerate(rs): sl.put(g0 + 2 * (i // 2), r)
        for ks in range(3): put_reads(ks * 12, qp_reads(ks + 1))
        put_vm(sl, list(range(1, 35, 2)), carry)
        d = BUFSZ if s % 2 == 0 else -BUFSZ
        op = (lambda r: f"v_add_u32 v{r}, {d}, v{r}") if d > 0 else (lambda r: f"v_subrev_u32 v{r}, {-d}, v{r}")
        sl.put(35, [op(vX), op(vW0), op(vW1), "s_waitcnt lgkmcnt(0)", Ins("s_barrier", lr=[f"Q{s+1}"] + (["K0", "V0"] if s == 6 else []))])
        left = []
        if s == 6:
            sl.put(27, ["s_mov_b32 s12, 1", "v_readfirstlane_b32 s14, v224", "v_readfirstlane_b32 s15, v225", "v_readfirstlane_b32 s16, v226", "v_readfirstlane_b32 s17, v227"])
            for i_, r_ in enumerate((14, 15, 16, 17)):
                sl.put(28 + i_, [f"s_min_u32 s13, s{r_}, 31", "s_bitset1_b32 s12, s13", f"s_sub_u32 s{r_}, s{r_}, 8", f"s_min_u32 s13, s{r_}, 31", "s_bitset1_b32 s12, s13"])
            sl.put(33, ["s_ff0_i32_b32 s12, s12"])
        if s < 6:
            put_reads(36, qp_reads(0))
            post = stage_dma(s + 2)
            put_vm(sl, list(range(37, 48, 2)), post[:6])
            left = post[6:]
        else:
            rs = [a_read(0, dt, sec, A7[0] + 4 * dt) for dt in range(4) for sec in range(2)]
            rs = rs[:2] + [b_read(0, 0, B7[0])] + rs[2:] + [a_read(1, dt, sec, A7[1] + 4 * dt) for dt in range(4) for sec in range(2)] + [b_read(ks, 0, B7[0] + 4 * ks) for ks in (1, 2, 3)]
            for i, r in enumerate(rs): sl.put(36 + (i * 12) // len(rs), r)
        schedule(p, qp_mfmas(s == 0), sl)
        return left
    p.add(Ins("s_barrier", lr=["Q0"]))
    stamp(p, 2)
    for r in qp_reads(0): I(r)
    def la(s): return touch(OPT['la'] - 1) if (OPT['la'] and s + 1 + OPT['la'] < 8) else []
    carry = qp_stage(0, st1[OPT['pre1']:] + la(0) + tile_vm('K', 0, KS[0]) + tile_vm('V', 0, VS[0]))
    stamp(p, 3)
    for s in range(1, 7):
        ex = [([], f"buffer_load_dwordx4 v[224:227], v{vSY}, s[4:7], s53 offen sc1")] if s == 4 else []
        carry = qp_stage(s, carry + la(s) + pf_load(*PFT[s - 1]) + ex)
    stamp(p, 4)
    ms = []
    for t in range(3):
        for ks in range(4):
            for dt in range(4):
                d = f"v[{acc(t,dt)}:{acc(t,dt)+15}]"
                a = A7[ks] + 4 * dt; b = B7[t] + 4 * ks
                ms.append(f"v_mfma_f32_32x32x16_bf16 {d}, a[{a}:{a+3}], a[{b}:{b+3}], {d}")
    ms += [s_mfma(S[0], t, ks, True) for t in range(3) for ks in range(8)]
    I0 = 72
    def IT(i, g=0): return I0 + 48 * i + g
    ms += [s_mfma(S[1], t, ks) for t in range(3) for ks in range(8)]
    ms += [pv_mfma(S[0], j, t, True) for j in range(8) for t in range(3)]
    for i in range(1, 15):
        ms += [s_mfma(S[(i + 1) & 1], t, ks) for ks in range(8) for t in range(3)]
        ms += [pv_mfma(S[i & 1], j, t) for j in range(8) for t in range(3)]
    TL = IT(15)
    ms += [pv_mfma(S[1], j, t) for j in range(8) for t in range(3)]
    sl = Slots()
    rs = [a_read(ks, dt, sec, A7[ks] + 4 * dt) for ks in (2, 3) for dt in range(4) for sec in range(2)]
    for i, r in enumerate(rs): sl.put(i // 2, r)
    for ks in range(4): sl.put(8 + ks, b_read(ks, 1, B7[1] + 4 * ks))
    for ks in range(4): sl.put(17 + ks, b_read(ks, 2, B7[2] + 4 * ks))
    sl.put(-1, [f"v_mbcnt_lo_u32_b32 v{vOX}, -1, 0", f"v_mbcnt_hi_u32_b32 v{vOX}, -1, v{vOX}", f"v_lshlrev_b32 v{vOX}, 4, v{vOX}",
                f"v_add_u32 v{vOW}, s62, v{vOX}", f"v_add_u32 v{vOX}, s61, v{vOX}"])
    w1 = pf_write('K', 0, vOX, KS[1]) + pf_write('V', 16, vOW, VS[1])
    WS2 = OPT['ws2']
    for i, x in enumerate(w1): sl.put(WS2 * i, x)
    sl.put(WS2 * 8 - 1, [f"v_add_u32 v{vOX}, {WIN}, v{vOX}", f"v_add_u32 v{vOW}, {WIN}, v{vOW}"])
    w2 = pf_write('K', 32, vOX, KS[2] - WIN) + pf_write('V', 48, vOW, VS[2] - WIN)
    for i, x in enumerate(w2): sl.put(WS2 * (8 + i), x)
    sl.put(25, ["s_waitcnt lgkmcnt(1)", "s_barrier"])
    w3 = pf_write('K', 64, vOX, KS[3] - WIN) + pf_write('V', 80, vOW, VS[3] - WIN)
    for i, x in enumerate(w3): sl.put(max(WS2 * 16, 26) + 2 * i, x)
    for ks in range(8): sl.put(33 + 2 * ks, k_read(ks, KS[0]))
    sl.put(52, ["s_waitcnt lgkmcnt(0)", "s_barrier"])
    for ks in range(8): sl.put(65 + ks, k_read(ks, KS[1]))
    kwin = 0; vwin = 0
    def win_move(regs, d): return [(f"v_add_u32 v{r}, {d}, v{r}" if d > 0 else f"v_subrev_u32 v{r}, {-d}, v{r}") for r in regs]
    for i in range(0, 16):
        va = VS[i % 4]; w = (va // WIN) * WIN
        if w != vwin:
            sl.put(IT(i, 10) if i < 15 else IT(14, 41), win_move([vV0, vV1], w - vwin)); vwin = w
        for j in range(8):
            if i == 0: g0 = max(89 + j, IT(0, 15 + 3 * j)); g1 = g0 + (0 if j < 2 else 1)
            elif i < 15: g0 = IT(i, 15 + 3 * j); g1 = g0 + 1
            else: g0 = max(IT(14, 42 + 2 * j), TL + 3 * j - 9); g1 = g0 + 1
            sl.put(g0, v_read(j, 0, va - vwin)); sl.put(g1, v_read(j, 1, va - vwin))
        if i == 15: break
        need = [f"V{i+1}"] + ([f"K{i+2}"] if i + 2 < 16 else [])
        sl.put(IT(i, 40), ["s_waitcnt lgkmcnt(0)", Ins("s_barrier", lr=need)])
        n = i + 2
        if n < 16:
            ka = KS[n % 5]; w = (ka // WIN) * WIN
            if w != kwin:
                sl.put(IT(i, 38), win_move([vK], w - kwin)); kwin = w
            for ks, g in enumerate([IT(i, 42), IT(i, 44), IT(i, 46), IT(i + 1, 1), IT(i + 1, 4), IT(i + 1, 7), IT(i + 1, 10), IT(i + 1, 13)]):
                sl.put(g, k_read(ks, ka - kwin))
    vm = []
    def add_tile(kind, n, ear):
        dst = KS[n % 5] if kind == 'K' else VS[n % 4]
        for pre, d in tile_vm(kind, n, dst): vm.append((pre, d, ear))
    add_tile('K', 4, 27)
    XR = OPT['xreg']
    if XR:
        for pre, d in pf_load('V', 4, 192): vm.append((pre, d, 49))
    add_tile('K', 5, 54)
    for n in range(4, 16):
        if not (XR and n == 4): add_tile('V', n, IT(n - 4, 42))
        if n + 2 < 16: add_tile('K', n + 2, IT(n + 2 - 6, 42))
    if XR:
        sl.put(IT(2, 14), [f"v_mbcnt_lo_u32_b32 v{vOW}, -1, 0", f"v_mbcnt_hi_u32_b32 v{vOW}, -1, v{vOW}"])
        sl.put(IT(2, 16), [f"v_lshlrev_b32 v{vOW}, 4, v{vOW}", f"v_add_u32 v{vOW}, s62, v{vOW}"])
        for i, x in enumerate(pf_write('V', 192, vOW, VS[0])): sl.put(IT(2, 18) + 2 * i, x)
    g_first, g_last = 26, I0 + OPT['dlast']
    gaps = []; g = g_first - 2
    for k, (pre, d, ear) in enumerate(vm):
        rem = len(vm) - k
        step = max(2.0, (g_last - g) / rem)
        g = max(g + step, ear)
        gi = int(round(g))
        while gi in gaps or (gi - 1) in gaps or any(txt(x).startswith('s_barrier') for x in sl.get(gi, [])): gi += 1
        gaps.append(gi); g = max(g, gi)
    put_vm(sl, gaps, [(a, b) for a, b, _ in vm])
    if OPT.get('verbose'):
        last = {}
        for gi, (pre, d, ear) in zip(gaps, vm):
            if isinstance(d, Ins): last[d.lw[0]] = gi
        for k_, gi in last.items():
            n = int(k_[1:]); nb = IT(n - 2, 40) if k_[0] == 'K' else IT(n - 1, 40)
            sys.stderr.write(f"{k_}: last issue {gi} (iter {(gi-I0)/48:.2f}) margin {nb-gi}\n")
    used_vm = set(gaps)
    def free_gap(g):
        while g in used_vm or (g - 1) in used_vm or (g + 1) in used_vm: g += 1
        used_vm.add(g); return g
    sl.put(-1, ["v_mbcnt_lo_u32_b32 v237, -1, 0", "v_mbcnt_hi_u32_b32 v237, -1, v237", "v_lshlrev_b32 v237, 7, v237"])
    sl.put(free_gap(12), "buffer_load_dword a96, v237, s[8:11], s63 offen offset:1024")
    sl.put(free_gap(14), "buffer_load_dword a97, v237, s[8:11], s63 offen offset:1088")
    sl.put(32, ["v_accvgpr_write_b32 a208, s12", "v_accvgpr_write_b32 a209, 0"])
    sl.put(free_gap(34), f"buffer_atomic_cmpswap a[208:209], v{vSY}, s[72:75], s65 offen sc0 sc1")
    sl.put(IT(8, 6), [f"v_accvgpr_read_b32 v{vX}, a208"])
    sl.put(IT(8, 8), [f"v_readfirstlane_b32 s13, v{vX}"])
    sl.put(IT(8, 10), ["s_cmp_eq_u32 s13, 0", "s_cselect_b32 s13, s12, s13"])
    for i, x in enumerate(wo_setup()): sl.put(IT(9, 2) + i, x)
    wear = [IT(10, 42), IT(11, 42), IT(12, 42), IT(12, 42), IT(13, 42), IT(13, 42)]
    g = max(max(gaps) + 2, IT(13, 10))
    wg_, wl_ = [], []
    for sig in range(NWPRE):
        for pre, d in wo_tile(sig):
            g = free_gap(max(g, wear[sig]))
            while any(txt(x).startswith('s_barrier') for x in sl.get(g, [])): g = free_gap(g + 1)
            wg_.append(g); wl_.append((pre, d)); g += OPT.get('wps', 3)
    put_vm(sl, wg_, wl_)
    conv = []
    for t in range(3):
        for dt in range(4):
            a = acc(t, dt)
            ear = 16 * t + 12 + dt + 3
            for k2 in range(2):
                dl = 48 + 8 * t + 2 * dt + k2 - 2
                if t == 1 and dt < 3: dl = min(dl, 48 + 8 * dt - 2)
                for pr in range(4):
                    r = a + 8 * k2 + 2 * pr
                    conv.append((f"v_mul_f32 v{r}, s64, v{r}", ear, dl))
                    conv.append((f"v_mul_f32 v{r+1}, s64, v{r+1}", ear, dl))
                for pr in range(4):
                    r = a + 8 * k2 + 2 * pr
                    conv.append((f"v_cvt_pk_bf16_f32 v{QB[t] + 4*(2*dt+k2) + pr}, v{r}, v{r+1}", ear, dl))
    mx = []
    for t in range(3):
        b = S[0] + t * 16
        ear0 = 48 + 8 * t + 7 + 3
        ear = ear0 if t == 0 else max(ear0, 71)
        dl = 72 + 8 * t - 2
        ops = [f"v_max3_f32 v{vM[t]}, v{b}, v{b+1}, v{b+2}"]
        ops += [f"v_max3_f32 v{vM[t]}, v{vM[t]}, v{b+r}, v{b+r+1}" for r in range(3, 15, 2)]
        ops += [f"v_max_f32 v{vM[t]}, v{vM[t]}, v{b+15}", f"v_mov_b32 v{vT[t]}, v{vM[t]}", "s_nop 1", f"v_permlane32_swap_b32 v{vT[t]}, v{vM[t]}",
                f"v_max_f32 v{vM[t]}, v{vM[t]}, v{vT[t]}"]
        mx += [(o, ear0, dl) for o in ops]
        mx += [(f"v_sub_f32 v{NEGM[t]+r}, 0, v{vM[t]}", ear, dl) for r in range(16)]
    sm = []
    for n in range(16):
        buf = S[n & 1]
        pv0 = IT(n, 24) if n < 15 else TL
        def dl_of(e): return pv0 + (0 if e < 24 else 12) + (e % 24) // 8 - 2
        for e in range(49):
            t = (min(e, 47) % 24) // 8
            if n == 0: ear = 72 + 8 * t - 1
            elif n == 1: ear = IT(0, 8 * t + 7 + 4)
            else: ear = IT(n - 1, 21 + t + 4)
            if n == 0 and e < 48:
                r, t = ereg(buf, e)
                sm.append((f"v_sub_f32 v{r}, v{r}, v{vM[t]}", ear, dl_of(e) - 1))
            for o in sm_ops(buf, e):
                sm.append((o, ear, dl_of(e) - 1 if o.startswith('v_exp') else dl_of(e - 1)))
    fin = fin_ops()
    vote = [f"s_mov_b32 s66, {f2u(OPT['thr']):#x}",
            f"v_max3_f32 v232, v{vL[0]}, v{vL[1]}, v{vL[2]}", f"v_add_f32 v233, v{vL[0]}, v{vL[1]}", f"v_add_f32 v233, v233, v{vL[2]}",
            f"v_cmp_nge_f32 vcc, s66, v233", f"v_mov_b32 v234, {SPARE}", "s_lshl_b32 s67, s3, 2", "s_cmp_lg_u64 vcc, 0\ns_cselect_b32 s66, 1, 0",
            "v_add_u32 v235, s67, v234", "v_mov_b32 v236, s66", "ds_write_b32 v235, v236"]
    vote = [x for x in vote if 'max3' not in x]
    sm += [(o, TL + 10, TL + 17) for o in fin[:9] + vote]
    sl.put(TL + 19, ["s_waitcnt lgkmcnt(0)", Ins("s_barrier", lr=[f"W{i}" for i in range(4)]), "ds_read_b128 v[236:239], v234"])
    sm += [(o, TL + 18, TL + 22) for o in fin[9:]]
    if OPT['stamp']:
        sl.put(IT(1, 0) - 1, stamp_ops(5)); sl.put(TL - 1, stamp_ops(6))
    def bud(g):
        if g < IT(1): return OPT['tbud']
        return OPT['bud'] - (4 if (g - I0) % 3 == 2 else 0)
    schedule(p, ms, sl, [conv, mx, sm], budget=bud)
    I("""
v_or3_b32 v236, v236, v237, v238
v_or_b32 v236, v236, v239
v_readfirstlane_b32 s66, v236
s_cmp_lg_u32 s66, 0
s_cbranch_scc1 L1_slow
L1_norm:
""")
    stamp(p, 7)
    OXS = [63, 64, 65, 70]
    I(f"""
s_lshl_b32 s68, s48, 1
s_and_b32 s69, s3, 1
s_add_u32 s68, s68, s69
s_lshl_b32 s68, s68, 5
s_lshr_b32 s69, s3, 1
s_add_u32 s68, s68, s69
s_lshl_b32 s69, s70, 1
s_add_u32 s68, s68, s69
""")
    for rho in range(4):
        I(f"s_add_u32 s69, s71, {rho}\ns_and_b32 s69, s69, 3\ns_lshl_b32 s69, s69, 1\ns_add_u32 s69, s69, s68\ns_mul_i32 s{OXS[rho]}, s69, 24576")
    I(f"""
v_bfe_u32 v232, v{rLn}, 2, 2
v_lshlrev_b32 v232, 7, v232
v_lshrrev_b32 v233, 5, v{rLn}
v_lshl_add_u32 v232, v233, 9, v232
v_bfe_u32 v233, v{rLn}, 3, 1
v_lshl_add_u32 v232, v233, 6, v232
v_bfe_u32 v233, v{rLn}, 4, 1
v_lshl_add_u32 v232, v233, 5, v232
v_and_b32 v233, 1, v{rLn}
v_lshl_add_u32 v232, v233, 4, v232
v_bfe_u32 v233, v{rLn}, 1, 1
v_lshl_add_u32 v232, v233, 3, v232
s_lshr_b32 s69, s3, 1
s_lshl_b32 s69, s69, 11
v_add_u32 v240, s69, v232
v_xor_b32 v241, 64, v240
v_add_u32 v242, {WIN}, v240
v_add_u32 v243, {WIN}, v241
v_add_u32 v244, {2*WIN}, v240
v_add_u32 v245, {2*WIN}, v241
v_lshlrev_b32 v246, 4, v{rLn}
s_lshl_b32 s69, s71, 2
s_add_u32 s52, s53, s69
""")
    rL16 = 246
    NBR = 5
    def bfr(sig, ks, t): return (sig % NBR) * 24 + (ks * 3 + t) * 4
    def oacc(n, t):
        return (f"v[{120+(n*3+t)*16}:{135+(n*3+t)*16}]" if n < 2 else f"a[{((n-2)*3+t)*16}:{((n-2)*3+t)*16+15}]")
    RD = 4
    GR = [(0, ks, n) for ks in range(2) for n in range(3)] + [(0, 0, 3), (0, 1, 3)]
    for sig in range(1, 14): GR += [(sig, ks, n) for ks in range(2) for n in range(4)]
    GR += [(sig, ks, n) for sig in (14, 15) for ks in range(2) for n in (2, 3)] + [(sig, ks, n) for sig in (14, 15) for ks in range(2) for n in (0, 1)]
    def a_rd(k, sec):
        sig, ks, n = GR[k]
        b = fr(k) + 2 * sec
        a = WSL[sig % NSL]; w = a // WIN
        return f"ds_read_b64_tr_b16 a[{b}:{b+1}], v{240 + 2*w + (n & 1)} offset:{a - w*WIN + (2*ks + sec)*4096 + (n>>1)*1024}"
    def op_mfma(k, t):
        sig, ks, n = GR[k]
        b = bfr(sig, ks, t); d = oacc(n, t)
        return f"v_mfma_f32_32x32x16_bf16 {d}, a[{fr(k)}:{fr(k)+3}], v[{b}:{b+3}], {'0' if (sig == 0 and ks == 0) else d}"
    for k in range(RD):
        I(a_rd(k, 0)); I(a_rd(k, 1))
    def norm_unit(dt, pk):
        out = []
        for t in range(3):
            for k2 in range(2):
                o = (dt * 3 + t) * 16 + 8 * k2
                tb = 216 if k2 == 0 else 230
                out += [f"v_accvgpr_read_b32 v{tb+r}, a{o+r}" for r in range(8)]
                if pk: out += [f"v_pk_mul_f32 v[{tb+2*pr}:{tb+2*pr+1}], v[{tb+2*pr}:{tb+2*pr+1}], v[{RC[t]}:{RC[t]+1}]" for pr in range(4)]
                else: out += [f"v_mul_f32 v{tb+r}, v{RC[t]}, v{tb+r}" for r in range(8)]
                b = bfr(dt, k2, t)
                out += [f"v_cvt_pk_bf16_f32 v{b+pr}, v{tb+2*pr}, v{tb+2*pr+1}" for pr in range(4)]
                out.append(f"s_add_u32 s67, s63, {(2*dt+k2)*3072}")
                out.append(Ins(f"buffer_store_dwordx4 v[{b}:{b+3}], v{rL16}, s[44:47], s67 offen offset:{t*1024} {OPT['ost']}", lw=["OA" if dt < 2 else "OB"]))
        return out
    for x in norm_unit(0, True): em(p, x)
    stamp(p, 8)
    nrm = []
    for dt, dl in ((1, 18), (2, 48), (3, 72)):
        nrm += [(x, 0, dl - 2) for x in norm_unit(dt, OPT['npk'])]
    def ox_load(sig):
        rho, dq = step_of(sig)
        out = []
        for ks in range(2):
            for t in range(3):
                b = bfr(sig, ks, t)
                out.append(([f"s_add_u32 s60, s{OXS[rho]}, {(2*dq+ks)*3072}"] if t == 0 else [],
                            f"buffer_load_dwordx4 v[{b}:{b+3}], v{rL16}, s[44:47], s60 offen offset:{t*1024} {OPT['oxl']}"))
        return out
    al = Slots()
    for k in range(len(GR)):
        kn = k + RD
        if kn < len(GR):
            nxt = (kn >> 3) != (k >> 3)
            g0 = 3 * k + (2 if nxt else 0)
            al.put(g0, a_rd(kn, 0)); al.put(min(g0 + 1, (k >> 3) * 24 + 23), a_rd(kn, 1))
    def bar(g, need, extra=()):
        al.put(g, ["s_waitcnt lgkmcnt(0)", Ins("s_barrier", lr=list(need))] + list(extra))
    PA, PL, PB, PL2 = OPT['pa'], OPT['pl'], 3 * 24 + 13, OPT['pl2']
    al.put(PA, [Ins("s_barrier", lr=["OA"]), "v_mov_b32 v247, s13", f"buffer_store_dword v247, v{vSY}, s[4:7], s52 offen sc1"])
    for s_ in (3, 5, 7, 9, 11, 13):
        ex = ["s_add_u32 s66, s13, 8", "v_mov_b32 v247, s66", f"buffer_store_dword v247, v{vSY}, s[4:7], s52 offen sc1"] if s_ == OPT['pbs'] else []
        bar(s_ * 24 + 13, [f"W{s_+1}", f"W{s_+2}"] + (["OB"] if s_ == OPT['pbs'] else []), ex)
    used = set([PA, OPT['pbs'] * 24 + 13])
    def place(g0, lst, stride):
        gs = []; g = g0
        for _ in lst:
            while g in used or g in (PL, PL2): g += 1
            gs.append(g); used.add(g); g += stride
        put_vm(al, gs, lst); return g
    for pl_ in (PL, PL2):
        al.put(pl_ - OPT['pe'], f"buffer_load_dwordx4 a[208:211], v{vSY}, s[4:7], s53 offen sc1"); used.add(pl_ - OPT['pe'])
    def chk(tl, g):
        nb = (tl - 1 if tl % 2 == 0 else tl - 2) * 24 + 13
        assert g + OPT['wmar'] <= nb, f"wo tile {tl} issued at {g}, needed by barrier {nb}"
    g = OPT['w6']
    for tl in range(NWPRE, NSL):
        g = place(g, wo_tile(tl), OPT['w6s']); chk(tl, g)
    for tl in range(NSL, 16):
        st = tl - NSL
        sb = 3 if st <= 3 else (st if st % 2 else st + 1)
        g = place(max(g, sb * 24 + 16), wo_tile(tl), OPT['wls']); chk(tl, g)
    g = PL + 1
    for sig in range(4, 16):
        g = max(g, (sig - NBR + 1) * 24 + 1)
        if sig >= 10: g = max(g, PL2 + 1)
        g = place(g, ox_load(sig), OPT['oxs'] if sig < 4 + OPT['oxn'] else OPT['oxt'])
        if OPT.get('verbose'): sys.stderr.write(f"ox {sig}: end gap {g} need {sig*24}\n")
        assert g <= min(sig * 24, 14 * 24 + 12)
    XREG = [16512, 65792, 65792 + 24576, 65792 + 2 * 24576]
    fs = """s_cmp_eq_u32 s3, 0\ns_cselect_b32 s66, X0, X1
s_cmp_eq_u32 s3, 2\ns_cselect_b32 s66, X2, s66
s_cmp_eq_u32 s3, 3\ns_cselect_b32 s66, X3, s66""".split('\n')
    setup = [f"s_mul_i32 s66, s3, 24576", f"s_add_u32 s66, s66, {65792 - 24576}", f"s_cmp_eq_u32 s3, 0\ns_cselect_b32 s66, 16512, s66", f"v_add_u32 v248, s66, v{rL16}",
             "s_xor_b32 s67, s3, 2", "s_mul_i32 s66, s67, 24576", f"s_add_u32 s66, s66, {65792 - 24576}", "s_cmp_eq_u32 s67, 0\ns_cselect_b32 s66, 16512, s66", f"v_add_u32 v249, s66, v{rL16}",
             f"s_add_u32 s28, s18, {P_WS_OFF}\ns_addc_u32 s29, s19, 0", "s_and_b32 s29, s29, 0xffff", f"s_mov_b32 s30, {P_BYTES}",
             "s_lshr_b32 s66, s49, 2", "s_lshl_b32 s66, s66, 4", "s_add_u32 s66, s66, s48", "s_mul_i32 s66, s66, 6", "s_and_b32 s67, s3, 1", "s_mul_i32 s67, s67, 3",
             "s_add_u32 s66, s66, s67", "s_lshl_b32 s66, s66, 15", "s_lshl_b32 s67, s71, 13", "s_add_u32 s66, s66, s67", "s_lshr_b32 s67, s3, 1", "s_lshl_b32 s67, s67, 12",
             "s_add_u32 s66, s66, s67"]
    for i, x in enumerate(setup): al.put(12 * 24 + i, x)
    E0 = 15 * 24
    for i in range(24): al.put(E0 + 1 + i // 2 + (0 if i < 12 else 1), f"ds_write_b128 v248, a[{4*i}:{4*i+3}] offset:{i*1024}")
    al.put(E0 + 17, ["s_waitcnt lgkmcnt(0)", "s_barrier"])
    def xr(i): return 24 + 4 * i if i < 18 else 216 + 4 * (i - 18)
    for i in range(24): al.put(E0 + 18 + i // 4, f"ds_read_b128 v[{xr(i)}:{xr(i)+3}], v249 offset:{i*1024}")
    if OPT['st2']:
        for idx, s_ in ((2, 8), (3, 12)): al.put(s_ * 24 - 1, stamp_ops(idx))
    allm = [op_mfma(k, t) for k in range(len(GR)) for t in range(3)]
    def seg(g0, g1, streams=(), budget=None):
        r = Slots()
        for k_, v_ in al.items():
            if g0 <= k_ < g1: r[k_ - g0] = list(v_)
        schedule(p, allm[g0:g1], r, streams, budget)
    def poll(tag, full):
        chk = "\n".join(f"s_or_b32 s{r}, s{r}, 8" for r in (66, 67, 68, 69)) if not full else ""
        p.raw(f"""
s_mov_b32 s51, 0
s_add_u32 s14, s13, 8
s_cmp_lg_u32 s3, 0
s_cbranch_scc1 L1_go{tag}
L1_poll{tag}:
s_waitcnt vmcnt(0)
v_accvgpr_read_b32 v253, a208
v_accvgpr_read_b32 v254, a209
s_nop 0
v_readfirstlane_b32 s66, v253
v_readfirstlane_b32 s67, v254
v_accvgpr_read_b32 v253, a210
v_accvgpr_read_b32 v254, a211
s_nop 0
v_readfirstlane_b32 s68, v253
v_readfirstlane_b32 s69, v254
s_nop 1
{chk}
s_xor_b32 s66, s66, s14
s_xor_b32 s67, s67, s14
s_xor_b32 s68, s68, s14
s_xor_b32 s69, s69, s14
s_or_b32 s66, s66, s67
s_or_b32 s68, s68, s69
s_or_b32 s66, s66, s68
s_cbranch_scc0 L1_go{tag}
s_sleep 2
buffer_load_dwordx4 a[208:211], v{vSY}, s[4:7], s53 offen sc1
s_add_u32 s51, s51, 1
s_cmp_lt_u32 s51, 0x40000
s_cbranch_scc1 L1_poll{tag}
L1_go{tag}:
""")
        I("s_barrier")
    assert PL >= 72
    seg(0, PL, [nrm], lambda g: OPT['nbud'])
    poll("a", False)
    stamp(p, 9)
    seg(PL, PL2)
    poll("b", True)
    seg(PL2, len(allm))
    if OPT['st2']: stamp(p, 4)
    for n in range(2):
        for t in range(3):
            o = 120 + (n * 3 + t) * 16
            for q4 in range(4):
                x = xr((n * 3 + t) * 4 + q4)
                I(f"v_pk_add_f32 v[{o+4*q4}:{o+4*q4+1}], v[{o+4*q4}:{o+4*q4+1}], v[{x}:{x+1}]")
                I(f"v_pk_add_f32 v[{o+4*q4+2}:{o+4*q4+3}], v[{o+4*q4+2}:{o+4*q4+3}], v[{x+2}:{x+3}]")
            for pr in range(8): I(f"v_cvt_pk_bf16_f32 v{o+pr}, v{o+2*pr}, v{o+2*pr+1}")
            I(f"s_add_u32 s67, s66, {t*32768}")
            for s2 in range(2):
                I(f"buffer_store_dwordx4 v[{o+4*s2}:{o+4*s2+3}], v{rL16}, s[28:31], s67 offen offset:{(n*2+s2)*1024} {OPT['pst']}")
    if OPT['stamp']:
        I("s_waitcnt vmcnt(0)")
        stamp(p, 1)
        stamp_out(p, 10, 0)
    I("L1_end:\ns_endpgm\nL1_code_end:")
    return p

def gen_slow():
    p = Prog(); I = p.I
    M = [232, 233, 234]; T = [235, 236, 237]
    M = [S[1], S[1] + 1, S[1] + 2]; T = [S[1] + 3, S[1] + 4, S[1] + 5]
    I("L1_slow:\ns_nop 15\ns_waitcnt vmcnt(0) lgkmcnt(0)\ns_barrier")
    I(f"v_mbcnt_lo_u32_b32 v{S[1]+8}, -1, 0\nv_mbcnt_hi_u32_b32 v{S[1]+8}, -1, v{S[1]+8}")
    for x in kv_addr_setup(f"v{S[1]+8}", S[1] + 9): I(x)
    for t in range(3): I(f"v_mov_b32 v{M[t]}, 0xff800000")
    def load(kinds):
        for kind in kinds:
            pre, dm = kv_tile(kind, 0, KS[0] if kind == 'K' else VS[0], soff="s60", tag=False)
            for x in pre: I(x)
            for d in dm: p.add(d)
        I("s_waitcnt vmcnt(0)\ns_barrier")
    I("s_mov_b32 s60, 0\nL1_s1:")
    p.loop_begin(2)
    load("K")
    for ks in range(8): I(k_read(ks, KS[0]))
    for ks in range(8):
        for t in range(3): I(s_mfma(S[0], t, ks, True))
    for t in range(3):
        b = S[0] + 16 * t
        for r in range(0, 16, 2): I(f"v_max3_f32 v{M[t]}, v{M[t]}, v{b+r}, v{b+r+1}")
    I("s_barrier\ns_add_u32 s60, s60, 8192\ns_cmp_lt_u32 s60, 131072\ns_cbranch_scc1 L1_s1")
    p.loop_end()
    for t in range(3): I(f"v_mov_b32 v{T[t]}, v{M[t]}")
    for t in range(3): I(f"v_permlane32_swap_b32 v{T[t]}, v{M[t]}")
    for t in range(3): I(f"v_max_f32 v{M[t]}, v{M[t]}, v{T[t]}")
    for t in range(3):
        for r in range(16): I(f"v_sub_f32 v{NEGM[t]+r}, 0, v{M[t]}")
        I(f"v_mov_b32 v{vL[t]}, 0")
    for r in range(192): I(f"v_accvgpr_write_b32 a{r}, 0")
    I("s_mov_b32 s60, 0\nL1_s2:")
    p.loop_begin(2)
    load("KV")
    for ks in range(8): I(k_read(ks, KS[0]))
    for ks in range(8):
        for t in range(3): I(s_mfma(S[0], t, ks))
    for j in range(8):
        I(v_read(j, 0, VS[0])); I(v_read(j, 1, VS[0]))
    for e in range(49):
        for x in sm_ops(S[0], e): I(x)
    for j in range(8):
        for t in range(3): I(pv_mfma(S[0], j, t))
    I("s_barrier\ns_add_u32 s60, s60, 8192\ns_cmp_lt_u32 s60, 131072\ns_cbranch_scc1 L1_s2")
    p.loop_end()
    for x in fin_ops(): I(x)
    for sig in range(NWPRE):
        for pre, d in wo_tile(sig):
            for x in pre: I(x)
            p.add(d)
    I("s_waitcnt vmcnt(0)\ns_barrier\ns_nop 15\ns_branch L1_norm")
    return p

def gen_red():
    p = Prog(); I = p.I
    I("s_cmp_ge_u32 s2, 768\ns_cbranch_scc1 L2_end")
    I("s_load_dwordx2 s[14:15], s[0:1], 40\ns_load_dwordx2 s[18:19], s[0:1], 56")
    stamp(p, 0)
    I(f"""
v_lshrrev_b32 v1, 6, v0
v_and_b32 v0, 63, v0
v_readfirstlane_b32 s3, v1
v_lshrrev_b32 v2, 3, v0
v_and_b32 v3, 7, v0
v_lshlrev_b32 v4, 9, v2
v_lshl_add_u32 v4, v3, 4, v4
v_lshlrev_b32 v5, 4, v2
v_lshl_add_u32 v5, v3, 10, v5
s_lshl_b32 s4, s2, 2
s_add_u32 s4, s4, s3
s_lshr_b32 s5, s4, 5
s_bfe_u32 s6, s4, 0x20003
s_and_b32 s7, s4, 7
s_lshl_b32 s8, s5, 15
s_lshl_b32 s9, s7, 12
s_add_u32 s9, s9, s8
s_lshl_b32 s10, s6, 7
s_add_u32 s9, s9, s10
s_lshl_b32 s10, s6, 13
s_add_u32 s8, s8, s10
s_lshl_b32 s10, s7, 7
s_add_u32 s8, s8, s10
s_waitcnt lgkmcnt(0)
s_add_u32 s20, s18, {P_WS_OFF}
s_addc_u32 s21, s19, 0
s_and_b32 s21, s21, 0xffff
s_mov_b32 s22, {P_BYTES}
s_mov_b32 s23, 0x00020000
""")
    for g in range(4):
        I(f"buffer_load_dwordx4 v[{8+4*g}:{11+4*g}], v4, s[20:23], s9 offen {OPT['rld']}")
        if g < 3: I(f"s_add_u32 s9, s9, {16*192*1024}")
    srd(p, 24, 14, 15, 16 * 192 * 1024)
    for d in range(4):
        for g in range(4):
            r = 8 + 4 * g + d
            I(f"v_lshlrev_b32 v{24+2*g}, 16, v{r}\nv_and_b32 v{25+2*g}, 0xffff0000, v{r}")
        I(f"v_pk_add_f32 v[24:25], v[24:25], v[26:27]\nv_pk_add_f32 v[28:29], v[28:29], v[30:31]\nv_pk_add_f32 v[24:25], v[24:25], v[28:29]")
        I(f"v_cvt_pk_bf16_f32 v{32+d}, v24, v25")
    I("buffer_store_dwordx4 v[32:35], v5, s[24:27], s8 offen")
    if OPT['stamp']:
        I("s_waitcnt vmcnt(0)")
        stamp(p, 1)
        I("s_cmp_ge_u32 s2, 256\ns_cbranch_scc1 L2_end\ns_mul_i32 s2, s2, 1")
        stamp_out(p, 2, 0x20000)
    I("L2_end:\ns_endpgm")
    return p

def kd(name, vg, acc, sg=102):
    return f""".p2align 6
.amdhsa_kernel {name}
  .amdhsa_next_free_vgpr {vg}
  .amdhsa_next_free_sgpr {sg}
  .amdhsa_accum_offset {acc}
  .amdhsa_group_segment_fixed_size 0
  .amdhsa_kernarg_size 64
  .amdhsa_user_sgpr_count 2
  .amdhsa_user_sgpr_kernarg_segment_ptr 1
  .amdhsa_system_sgpr_workgroup_id_x 1
  .amdhsa_float_denorm_mode_32 3
.end_amdhsa_kernel
"""

def main():
    k1 = gen_k1(); k1.resolve(); t1, s1 = k1.emit()
    ks = gen_slow(); ks.resolve(); ts, _ = ks.emit(); t1 += ts
    k2 = gen_red(); k2.resolve(); t2, s2 = k2.emit()
    sys.stderr.write(f"k1 {s1}  k2 {s2}\n")
    hdr = open('cdna_kernels/' + NAME + '.s.ref').read().split('\n')
    top = [l for l in hdr if l.startswith(';') and '@launch' not in l and 'Override' not in l and 'grid=ceil' not in l]
    out = '\n'.join(top) + f"""
; @launch kernel=attn_kernel grid=(256,1,1) block=(256,1,1) lds=163840
; @launch kernel=reduce_kernel grid=(768,1,1) block=(256,1,1) lds=0
.amdgcn_target "amdgcn-amd-amdhsa--gfx950"
.text
.globl attn_kernel
.p2align 8
.type attn_kernel,@function
attn_kernel:
{t1}
.globl reduce_kernel
.p2align 8
.type reduce_kernel,@function
reduce_kernel:
{t2}
.section .rodata,"a"
{kd('attn_kernel', 512, 256)}{kd('reduce_kernel', 40, 40, 102 if OPT['stamp'] else 32)}"""
    open(sys.argv[1], 'w').write(out)
main()
```

```python
import sys, math, struct
from asmlib import *
NAME = "standalone__mha_block_cached__near_ridge"
OPT = dict(stamp=0, dfirst=26, kmar=24, la=0, ws2=2, npk=1, pa=44, pl=72, pl2=144, pbs=3, nbud=32, w6=59, w6s=2, wmar=20, oxt=4, st2=0, kvsz=1, xw=1, rh=2, rb=1, rmask=7, pre1=8, bud=24, tbud=28, dcost=12,
           ost='sc1', oxl='sc1', pst='sc1', rld='', pub=13, pol=3, pe=12, oxs=1, oxn=2, wls=6, ctouch=1,
           dlast=660, thr=2.0**40, xreg=1)
for a in sys.argv[2:]:
    k, v = a.split('=')
    try: OPT[k] = int(v, 0)
    except ValueError:
        try: OPT[k] = float(v)
        except ValueError: OPT[k] = v.replace('+', ' ')

def f2u(x): return struct.unpack('<I', struct.pack('<f', x))[0]
SCALE = math.log2(math.e) / math.sqrt(128.0)

XBLK = 1056; XSZ = 24 * XBLK
WQSZ = 32768
BUFSZ = XSZ + WQSZ
BUFA = 163840 - 2 * BUFSZ
KRG = 4128
KSZ = 4 * KRG; VSZ = 16384
KS = [0, 32896, 65792, 98688, 131584]
VS = [16512, 49408, 82304, 115200]
SPARE = 148096
WIN = 65792
O_WS_OFF = 0x1000000; O_BYTES = 16 * 192 * 4096 * 2
FLAG_OFF = 0x800000
P_WS_OFF = 0x4000000; P_BYTES = 4 * 16 * 192 * 512 * 2

def srd(p, d, lo, hi, size):
    p.I(f"s_mov_b32 s{d}, s{lo}\ns_and_b32 s{d+1}, s{hi}, 0xffff\ns_mov_b32 s{d+2}, {size}\ns_mov_b32 s{d+3}, 0x00020000")
def stamp_ops(idx):
    if not OPT['stamp']: return []
    return ["s_memrealtime s[78:79]", "s_memtime s[76:77]", "s_waitcnt lgkmcnt(0)", f"s_mov_b32 s{80+idx}, s78", f"s_mov_b32 s{90+idx}, s76"]
def stamp(p, idx):
    for x in stamp_ops(idx): p.I(x)
def stamp_out(p, nst, base_off):
    if not OPT['stamp']: return
    p.I(f"""
s_mov_b32 s72, s18
s_and_b32 s73, s19, 0xffff
s_mov_b32 s74, 0x1000000
s_mov_b32 s75, 0x00020000
s_lshl_b32 s76, s2, 2
s_add_u32 s76, s76, s3
s_lshl_b32 s76, s76, 7
s_add_u32 s76, s76, {base_off}
v_mov_b32 v1, 0
""")
    for i in range(nst):
        p.I(f"v_mov_b32 v2, s{80+i}\nbuffer_store_dword v2, v1, s[72:75], s76 offen offset:{4*i}")
        p.I(f"v_mov_b32 v2, s{90+i}\nbuffer_store_dword v2, v1, s[72:75], s76 offen offset:{64+4*i}")

def txt(x): return x.text if isinstance(x, Ins) else x
def cost(x):
    mn = txt(x).split()[0]
    if mn.startswith('v_exp') or mn.startswith('v_rcp'): return 8
    if mn.startswith('ds_write'): return 8
    if mn.startswith('buffer_') or mn.startswith('global_'): return OPT['dcost']
    if mn.startswith('v_pk_'): return 8
    return 4
class Slots(dict):
    def put(self, g, x): self.setdefault(g, []).extend(x if isinstance(x, list) else [x])
def em(p, x):
    if isinstance(x, Ins): p.add(x)
    else: p.I(x)
def schedule(p, mfmas, fixed, streams=(), budget=None):
    streams = [list(s) for s in streams]
    for x in fixed.get(-1, []): em(p, x)
    for g, m in enumerate(mfmas):
        p.I(m)
        used = 0
        for f in fixed.get(g, []):
            em(p, f); used += cost(f)
        b = budget(g) if budget else OPT['bud']
        while True:
            c = [s for s in streams if s and s[0][1] <= g]
            if not c: break
            fs = [s for s in c if any(x[2] <= g for x in s[:200])]
            s = fs[0] if fs else min(c, key=lambda s: min(x[2] for x in s[:8]))
            if fs or used + cost(s[0][0]) <= b:
                op = s.pop(0)[0]; em(p, op); used += cost(op)
            else: break
    for s in streams:
        for op, _, _ in s: em(p, op)
    for g in fixed:
        assert g < len(mfmas), f"fixed slot {g} beyond region {len(mfmas)}: {fixed[g]}"

vK, vV0, vV1 = 240, 241, 242
vOK = [243, 244]; vOV = [245, 246]
vL = [247, 248, 249]
vX, vW0, vW1, vOX, vOW = 250, 251, 252, 253, 254
vSY = 255
S = [64, 112]; NEGM = [224, 160, 176]; QB = [192, 0, 32]
FR = 224
def fr(n): return FR + (n % 8) * 4
def qfrag(t, ksd): b = QB[t] + 4 * ksd; return f"v[{b}:{b+3}]"
def acc(t, dt): return (t * 4 + dt) * 16

def kv_addr_setup(lane, t0):
    a, b, c, d, e = [f"v{t0+i}" for i in range(5)]
    return f"""v_lshrrev_b32 {a}, 3, {lane}
v_and_b32 {b}, 7, {lane}
v_bfe_u32 {c}, {lane}, 4, 1
v_xor_b32 {d}, {b}, {c}
v_lshlrev_b32 {d}, 4, {d}
v_lshlrev_b32 {e}, 2, {c}
v_xor_b32 {e}, {b}, {e}
v_lshlrev_b32 {e}, 4, {e}
v_lshl_add_u32 {d}, {a}, 8, {d}
v_lshl_add_u32 {e}, {a}, 8, {e}
s_lshl_b32 s66, s3, 11
s_add_u32 s67, s66, 128
s_add_u32 s66, s66, 1024
v_add_u32 v{vOK[0]}, s66, {d}
v_add_u32 v{vOK[1]}, s67, {d}
v_add_u32 v{vOV[0]}, s66, {e}
v_add_u32 v{vOV[1]}, s67, {e}
s_lshr_b32 s66, s3, 1
s_lshl_b32 s66, s66, 11
v_bfe_u32 {a}, {lane}, 3, 2
v_mul_u32_u24 {a}, {KRG}, {a}
v_lshl_add_u32 {a}, {b}, 7, {a}
v_lshrrev_b32 {c}, 5, {lane}
v_bfe_u32 {d}, {lane}, 1, 1
v_xor_b32 {d}, {c}, {d}
v_lshl_add_u32 {a}, {d}, 4, {a}
v_add_u32 v{vK}, s66, {a}
v_bfe_u32 {a}, {lane}, 2, 2
v_lshlrev_b32 {a}, 7, {a}
v_lshl_add_u32 {a}, {c}, 9, {a}
v_bfe_u32 {d}, {lane}, 3, 1
v_lshl_add_u32 {a}, {d}, 6, {a}
v_bfe_u32 {d}, {lane}, 4, 1
v_lshl_add_u32 {a}, {d}, 5, {a}
v_and_b32 {d}, 3, {lane}
v_lshl_add_u32 {a}, {d}, 3, {a}
v_add_u32 v{vV0}, s66, {a}
v_xor_b32 v{vV1}, 64, v{vV0}
s_mul_i32 s61, s3, {KRG}
s_lshl_b32 s62, s3, 12""".split('\n')

def kv_tile(kind, n, dst, soff=None, tag=True):
    pre = [f"s_add_u32 m0, s{61 if kind == 'K' else 62}, {dst}"]
    if soff is None:
        pre.append(f"s_mov_b32 s59, {n*8192}"); soff = "s59"
    dm = []
    for hd in range(2):
        for half in range(2):
            sr = (28 if kind == 'K' else 36) + 4 * hd
            v = (vOK if kind == 'K' else vOV)[half]
            dm.append(Ins(f"buffer_load_dwordx4 v{v}, s[{sr}:{sr+3}], {soff} offen offset:{hd*2048+half*1024} nt lds", lw=[f"{kind}{n}"] if tag else []))
    return pre, dm
def k_read(ks, off): b = fr(ks); return f"ds_read_b128 a[{b}:{b+3}], v{vK} offset:{off + (ks>>2)*1024 + (ks&3)*32}"
def v_read(j, sec, off):
    ks, dt = j >> 2, j & 3
    b = fr(8 + j) + 2 * sec
    return f"ds_read_b64_tr_b16 a[{b}:{b+1}], v{vV1 if dt & 1 else vV0} offset:{off + (2*ks + sec)*4096 + (dt>>1)*1024}"
def s_mfma(buf, t, ks, czero=False):
    d = f"v[{buf+t*16}:{buf+t*16+15}]"
    c = d if ks else ("0" if czero else f"v[{NEGM[t]}:{NEGM[t]+15}]")
    return f"v_mfma_f32_32x32x16_bf16 {d}, a[{fr(ks)}:{fr(ks)+3}], {qfrag(t, ks)}, {c}"
def pv_mfma(buf, j, t, czero=False):
    ks, dt = j >> 2, j & 3
    o = (dt * 3 + t) * 16
    b = buf + t * 16 + 8 * ks
    c = "0" if (czero and ks == 0) else f"a[{o}:{o+15}]"
    return f"v_mfma_f32_32x32x16_bf16 a[{o}:{o+15}], a[{fr(8+j)}:{fr(8+j)+3}], v[{b}:{b+3}], {c}"
def ereg(buf, e):
    h, t, j = e // 24, (e % 24) // 8, e % 8
    return buf + t * 16 + 8 * h + j, t
def sm_ops(buf, e):
    out = []
    if e < 48:
        r, t = ereg(buf, e); out.append(f"v_exp_f32 v{r}, v{r}")
    if 1 <= e <= 48:
        r, t = ereg(buf, e - 1); out.append(f"v_add_f32 v{vL[t]}, v{vL[t]}, v{r}")
    if e >= 2 and e % 2 == 0 and e <= 48:
        r, t = ereg(buf, e - 2); base = r - ((e - 2) % 8)
        out.append(f"v_cvt_pk_bf16_f32 v{base + ((e-2) % 8)//2}, v{r}, v{r+1}")
    return out

rOW = [250, 251]; rLn = 252
rA = [240, 241]
RC = [224, 226, 228]
WSL = [KS[1], KS[2], KS[3], VS[0], KS[4], VS[1], KS[0], VS[2], VS[3]]
NSL = len(WSL)
def step_of(sig): return (0, sig) if sig < 4 else (1 + (sig - 4) % 3, (sig - 4) // 3)
def wo_setup():
    a, b, c = "v253", "v254", f"v{rOW[1]}"
    out = f"""v_mbcnt_lo_u32_b32 v{rLn}, -1, 0
v_mbcnt_hi_u32_b32 v{rLn}, -1, v{rLn}
s_and_b32 s71, s49, 3
s_andn2_b32 s70, s49, 3
s_lshl_b32 s67, s71, 8
s_lshl_b32 s68, s3, 13
s_add_u32 s69, s68, {0x20000 - 2048}
v_lshrrev_b32 {a}, 3, v{rLn}
v_and_b32 {b}, 7, v{rLn}
v_bfe_u32 {c}, v{rLn}, 4, 1
v_lshlrev_b32 {c}, 2, {c}
v_xor_b32 {b}, {b}, {c}
v_lshlrev_b32 {b}, 4, {b}
v_lshl_add_u32 {b}, {a}, 10, {b}
v_add_u32 v{rOW[0]}, s68, {b}
v_add_u32 v{rOW[1]}, s69, {b}""".split('\n')
    for rho in range(4):
        out += [f"s_add_u32 s69, s71, {rho}", "s_and_b32 s69, s69, 3", "s_add_u32 s69, s69, s70", f"s_lshl_b32 s{WOB[rho]}, s69, 18", f"s_add_u32 s{WOB[rho]}, s{WOB[rho]}, s67"]
    return out
WOB = [50, 56, 57, 58]
def wo_tile(sig):
    rho, dq = step_of(sig)
    dst = WSL[sig % NSL]
    out = []
    for hd in range(2):
        for pos in range(2):
            half = pos ^ hd
            d = dq * 32768 + half * 128 - pos * 1024 + 1024
            pre = [f"s_add_u32 s59, s{WOB[rho]}, {d}"]
            if hd == 0 and pos == 0: pre = [f"s_add_u32 m0, s62, {dst}"] + pre
            out.append((pre, Ins(f"buffer_load_dwordx4 v{rOW[hd]}, s[8:11], s59 offen offset:{hd*2048+pos*1024} lds", lw=[f"W{sig}"])))
    return out
def fin_ops():
    T = [232, 233, 234]
    fin = []
    for t in range(3): fin.append(f"v_mov_b32 v{T[t]}, v{vL[t]}")
    for t in range(3): fin.append(f"v_permlane32_swap_b32 v{T[t]}, v{vL[t]}")
    for t in range(3): fin.append(f"v_add_f32 v{vL[t]}, v{vL[t]}, v{T[t]}")
    for t in range(3): fin.append(f"v_rcp_f32 v{RC[t]}, v{vL[t]}")
    for t in range(3): fin.append(f"v_mov_b32 v{RC[t]+1}, v{RC[t]}")
    return fin
NWPRE = OPT.get('nwpre', 6)

def gen_k1():
    p = Prog(); I = p.I
    vM = [vX, vW0, vW1]; vT = [vOX, vOW, vOX]
    I("s_cmp_ge_u32 s2, 256\ns_cbranch_scc1 L1_end")
    stamp(p, 0)
    I("s_load_dwordx16 s[4:19], s[0:1], 0")
    I(f"""
v_lshrrev_b32 v1, 6, v0
v_lshlrev_b32 v{vSY}, 20, v0
v_and_b32 v0, 63, v0
v_readfirstlane_b32 s3, v1
s_and_b32 s66, s2, 7
s_lshr_b32 s67, s2, 3
s_and_b32 s48, s66, 1
s_lshl_b32 s48, s48, 3
s_lshr_b32 s68, s67, 2
s_add_u32 s48, s48, s68
s_lshr_b32 s49, s66, 1
s_lshl_b32 s49, s49, 2
s_and_b32 s69, s67, 3
s_add_u32 s49, s49, s69
s_lshl_b32 s65, s66, 3
s_add_u32 s65, s65, s68
s_mul_i32 s52, s69, {OPT['rh']}
s_mul_i32 s68, s68, {OPT['rb']}
s_add_u32 s52, s52, s68
s_and_b32 s52, s52, {OPT['rmask']}
v_lshrrev_b32 v2, 3, v0
v_and_b32 v3, 7, v0
v_bfe_u32 v4, v0, 4, 1
v_xor_b32 v5, v3, v4
v_lshlrev_b32 v5, 4, v5
v_lshlrev_b32 v6, 2, v4
v_xor_b32 v6, v3, v6
v_lshlrev_b32 v6, 4, v6
v_lshl_add_u32 v{vOX}, v2, 10, v5
v_lshl_add_u32 v{vOW}, v2, 13, v6
s_mul_i32 s50, s48, {192*1024}
s_mul_i32 s66, s3, {48*1024}
s_add_u32 s50, s50, s66
s_lshl_b32 s51, s49, 9
s_lshl_b32 s66, s3, 7
s_add_u32 s51, s51, s66
s_mul_i32 s57, s3, {6*XBLK}
s_lshl_b32 s58, s3, 10
s_waitcnt lgkmcnt(0)
""")
    srd(p, 20, 4, 5, 16 * 192 * 1024 * OPT['xw'])
    srd(p, 24, 10, 11, 512 * 8192 * OPT['xw'])
    def stage_dma(st):
        buf = BUFA + (st & 1) * BUFSZ
        pre0 = ["s_lshl_b32 s54, s52, 7", "s_add_u32 s54, s54, s50", "s_lshl_b32 s55, s52, 19", "s_add_u32 s55, s55, s51",
                "s_add_u32 s52, s52, 1", "s_and_b32 s52, s52, 7"]
        out = []
        for j in range(6):
            out.append(([f"s_add_u32 m0, s57, {buf + j*XBLK}", f"s_add_u32 s56, s54, {j*8192}"],
                        Ins(f"buffer_load_dwordx4 v{vOX}, s[20:23], s56 offen lds", lw=[f"Q{st}"])))
        for rg in range(8):
            out.append(([f"s_add_u32 m0, s58, {buf + XSZ + rg*4096}", f"s_add_u32 s56, s55, {rg*65536}"],
                        Ins(f"buffer_load_dwordx4 v{vOW}, s[24:27], s56 offen lds", lw=[f"Q{st}"])))
        out[0] = (pre0 + out[0][0], out[0][1])
        return out
    def emit_vm(lst):
        for pre, x in lst:
            for y in pre: I(y)
            em(p, x)
    def touch(st_ahead):
        if not OPT['la']: return []
        return [([f"s_add_u32 s66, s52, {st_ahead}", "s_and_b32 s66, s66, 7", "s_lshl_b32 s67, s66, 7", "s_lshl_b32 s66, s66, 19"],
                 f"buffer_load_dword a{TCH[0] % 8 + 98}, v228, s[20:23], s67 offen"),
                ([], f"buffer_load_dword a{(TCH[0] + 1) % 8 + 98}, v229, s[24:27], s66 offen")] + [TCH.__setitem__(0, TCH[0] + 2)][:0]
    TCH = [0]
    if OPT['la']:
        I(f"""
v_min_u32 v228, 11, v0
v_lshlrev_b32 v228, 10, v228
s_mul_i32 s66, s48, {192*1024}
s_and_b32 s67, s49, 3
s_mul_i32 s67, s67, {48*1024}
s_add_u32 s66, s66, s67
s_mul_i32 s67, s3, {12*1024}
s_add_u32 s66, s66, s67
v_add_u32 v228, s66, v228
v_bfe_u32 v229, v0, 2, 1
v_lshlrev_b32 v229, 13, v229
v_and_b32 v7, 3, v0
v_lshl_add_u32 v229, v7, 7, v229
s_and_b32 s66, s48, 7
s_lshl_b32 s66, s66, 2
s_add_u32 s66, s66, s3
s_lshl_b32 s66, s66, 14
s_lshl_b32 s67, s49, 9
s_add_u32 s66, s66, s67
v_add_u32 v229, s66, v229
""")
        for a_ in range(1, OPT['la'] + 1): emit_vm(touch(a_))
    emit_vm(stage_dma(0))
    if OPT['ctouch']:
        I(f"""
s_getpc_b64 s[68:69]
L1_pc:
s_lshr_b32 s66, s2, 3
s_lshl_b32 s66, s66, 2
s_add_u32 s66, s66, s3
s_lshl_b32 s66, s66, 9
s_min_u32 s66, s66, L1_code_end-L1_pc-512
s_add_u32 s68, s68, s66
s_addc_u32 s69, s69, 0
v_lshlrev_b32 v7, 3, v0
global_load_dword a255, v7, s[68:69]
""")
    for x in kv_addr_setup("v0", 2): I(x)
    ksz = (131072 + 3072) * OPT['kvsz']
    I(f"""
s_lshl_b32 s66, s48, 5
s_lshl_b32 s67, s49, 1
s_add_u32 s66, s66, s67
s_lshl_b32 s66, s66, 17
s_add_u32 s28, s6, s66
s_addc_u32 s29, s7, 0
s_sub_u32 s28, s28, 1024
s_subb_u32 s29, s29, 0
s_and_b32 s29, s29, 0xffff
s_add_u32 s32, s28, {0x20000 - 2048}
s_addc_u32 s33, s29, 0
s_add_u32 s36, s8, s66
s_addc_u32 s37, s9, 0
s_sub_u32 s36, s36, 1024
s_subb_u32 s37, s37, 0
s_and_b32 s37, s37, 0xffff
s_add_u32 s40, s36, {0x20000 - 2048}
s_addc_u32 s41, s37, 0
s_mov_b32 s30, {(131072 + 1024) * OPT['kvsz']}
s_mov_b32 s34, {ksz}
s_mov_b32 s38, {(131072 + 1024) * OPT['kvsz']}
s_mov_b32 s42, {ksz}
s_mov_b32 s31, 0x00020000
s_mov_b32 s35, 0x00020000
s_mov_b32 s39, 0x00020000
s_mov_b32 s43, 0x00020000
s_add_u32 s44, s18, {O_WS_OFF}
s_addc_u32 s45, s19, 0
s_and_b32 s45, s45, 0xffff
s_mov_b32 s46, {O_BYTES}
s_mov_b32 s47, 0x00020000
s_mov_b32 s72, s16
s_and_b32 s73, s17, 0xffff
s_mov_b32 s74, 256
s_mov_b32 s75, 0x00020000
s_mov_b32 s64, {f2u(SCALE):#x}
s_add_u32 s4, s18, {FLAG_OFF}
s_addc_u32 s5, s19, 0
s_and_b32 s5, s5, 0xffff
s_mov_b32 s6, 8192
s_mov_b32 s7, 0x00020000
s_lshl_b32 s53, s65, 7
s_lshl_b32 s65, s65, 2
s_sub_u32 s8, s12, 1024
s_subb_u32 s9, s13, 0
s_and_b32 s9, s9, 0xffff
s_mov_b32 s10, {4096*1024+1024}
s_mov_b32 s11, 0x00020000
s_lshr_b32 s63, s49, 2
s_lshl_b32 s63, s63, 5
s_lshr_b32 s66, s2, 3
s_add_u32 s63, s63, s66
s_lshl_b32 s63, s63, 2
s_add_u32 s63, s63, s3
s_lshl_b32 s63, s63, 13
s_lshr_b32 s66, s3, 1
s_and_b32 s67, s3, 1
v_bfe_u32 v3, v0, 3, 2
v_mul_u32_u24 v3, {XBLK}, v3
v_and_b32 v4, 7, v0
v_lshl_add_u32 v3, v4, 7, v3
v_lshrrev_b32 v4, 5, v0
v_bfe_u32 v5, v0, 1, 1
v_xor_b32 v5, v4, v5
v_lshl_add_u32 v3, v5, 4, v3
s_mul_i32 s68, s67, {12*XBLK}
s_add_u32 s68, s68, {BUFA}
v_add_u32 v{vX}, s68, v3
v_bfe_u32 v2, v0, 2, 2
v_lshlrev_b32 v2, 7, v2
v_bfe_u32 v3, v0, 3, 1
v_lshl_add_u32 v2, v3, 6, v2
v_bfe_u32 v3, v0, 4, 1
v_lshl_add_u32 v2, v3, 5, v2
v_and_b32 v3, 1, v0
v_lshl_add_u32 v2, v3, 4, v2
v_bfe_u32 v3, v0, 1, 1
v_lshl_add_u32 v2, v3, 3, v2
v_lshl_add_u32 v2, v4, 12, v2
s_lshl_b32 s68, s66, 11
s_add_u32 s68, s68, {BUFA + XSZ}
v_add_u32 v{vW0}, s68, v2
v_xor_b32 v{vW1}, 64, v{vW0}
""")
    for r in vL: I(f"v_mov_b32 v{r}, 0")
    st1 = stage_dma(1)
    emit_vm(st1[:OPT['pre1']])
    PFT = [('K', 1, 0), ('V', 1, 16), ('K', 2, 32), ('V', 2, 48), ('K', 3, 64), ('V', 3, 80)]
    def pf_load(kind, n, base):
        out = []
        for hd in range(2):
            for half in range(2):
                r = base + 4 * (hd * 2 + half)
                sr = (28 if kind == 'K' else 36) + 4 * hd
                v = (vOK if kind == 'K' else vOV)[half]
                out.append(([f"s_mov_b32 s60, {n*8192}"] if hd + half == 0 else [],
                            f"buffer_load_dwordx4 a[{r}:{r+3}], v{v}, s[{sr}:{sr+3}], s60 offen offset:{hd*2048+half*1024} nt"))
        return out
    def pf_write(kind, base, areg, off):
        return [f"ds_write_b128 v{areg}, a[{base+4*i}:{base+4*i+3}] offset:{off + i*1024}" for i in range(4)]
    def tile_vm(kind, n, dst):
        pre, dm = kv_tile(kind, n, dst)
        return [(pre if i == 0 else [], d) for i, d in enumerate(dm)]
    NA, NB = 112, 144
    def a_read(ks, dt, sec, dst): return f"ds_read_b64_tr_b16 a[{dst+2*sec}:{dst+2*sec+1}], v{vW1 if dt & 1 else vW0} offset:{ks*8192 + (dt>>1)*1024 + sec*512}"
    def b_read(ks, t, dst): return f"ds_read_b128 a[{dst}:{dst+3}], v{vX} offset:{t*4*XBLK + ks*32}"
    def qp_reads(ks):
        par = ks & 1
        A = [a_read(ks, dt, sec, NA + 16 * par + 4 * dt) for dt in range(4) for sec in range(2)]
        B = [b_read(ks, t, NB + 12 * par + 4 * t) for t in range(3)]
        return A[:2] + B + A[2:]
    def qp_mfmas(first):
        ms = []
        for ks in range(4):
            par = ks & 1
            for dt in range(4):
                for t in range(3):
                    d = f"v[{acc(t,dt)}:{acc(t,dt)+15}]"
                    a = NA + 16 * par + 4 * dt; b = NB + 12 * par + 4 * t
                    ms.append(f"v_mfma_f32_32x32x16_bf16 {d}, a[{a}:{a+3}], a[{b}:{b+3}], {'0' if first and ks == 0 else d}")
        return ms
    A7 = [112, 168, 128, 144]; B7 = [192, 208, 192]
    def put_vm(sl, gaps, lst):
        for g, (pre, x) in zip(gaps, lst):
            sl.put(g - 1, list(pre))
            sl.setdefault(g, []).insert(0, x)
        assert len(gaps) >= len(lst), (len(gaps), len(lst))
    def qp_stage(s, carry):
        sl = Slots()
        def put_reads(g0, rs):
            for i, r in enumerate(rs): sl.put(g0 + 2 * (i // 2), r)
        for ks in range(3): put_reads(ks * 12, qp_reads(ks + 1))
        put_vm(sl, list(range(1, 35, 2)), carry)
        d = BUFSZ if s % 2 == 0 else -BUFSZ
        op = (lambda r: f"v_add_u32 v{r}, {d}, v{r}") if d > 0 else (lambda r: f"v_subrev_u32 v{r}, {-d}, v{r}")
        sl.put(35, [op(vX), op(vW0), op(vW1), "s_waitcnt lgkmcnt(0)", Ins("s_barrier", lr=[f"Q{s+1}"] + (["K0", "V0"] if s == 6 else []))])
        left = []
        if s == 6:
            sl.put(27, ["s_mov_b32 s12, 1", "v_readfirstlane_b32 s14, v224", "v_readfirstlane_b32 s15, v225", "v_readfirstlane_b32 s16, v226", "v_readfirstlane_b32 s17, v227"])
            for i_, r_ in enumerate((14, 15, 16, 17)):
                sl.put(28 + i_, [f"s_min_u32 s13, s{r_}, 31", "s_bitset1_b32 s12, s13", f"s_sub_u32 s{r_}, s{r_}, 8", f"s_min_u32 s13, s{r_}, 31", "s_bitset1_b32 s12, s13"])
            sl.put(33, ["s_ff0_i32_b32 s12, s12"])
        if s < 6:
            put_reads(36, qp_reads(0))
            post = stage_dma(s + 2)
            put_vm(sl, list(range(37, 48, 2)), post[:6])
            left = post[6:]
        else:
            rs = [a_read(0, dt, sec, A7[0] + 4 * dt) for dt in range(4) for sec in range(2)]
            rs = rs[:2] + [b_read(0, 0, B7[0])] + rs[2:] + [a_read(1, dt, sec, A7[1] + 4 * dt) for dt in range(4) for sec in range(2)] + [b_read(ks, 0, B7[0] + 4 * ks) for ks in (1, 2, 3)]
            for i, r in enumerate(rs): sl.put(36 + (i * 12) // len(rs), r)
        schedule(p, qp_mfmas(s == 0), sl)
        return left
    p.add(Ins("s_barrier", lr=["Q0"]))
    stamp(p, 2)
    for r in qp_reads(0): I(r)
    PFL = []
    for t_ in PFT + ([('K', 4, 96)] if OPT['xreg'] >= 2 else []): PFL += pf_load(*t_)
    def la(s): return touch(OPT['la'] - 1) if (OPT['la'] and s + 1 + OPT['la'] < 8) else []
    carry = qp_stage(0, st1[OPT['pre1']:] + la(0) + tile_vm('K', 0, KS[0]) + tile_vm('V', 0, VS[0]))
    stamp(p, 3)
    for s in range(1, 7):
        ex = [([], f"buffer_load_dwordx4 v[224:227], v{vSY}, s[4:7], s53 offen sc1")] if s == 4 else []
        pfl = PFL[(s - 1) * len(PFL) // 6: s * len(PFL) // 6]
        carry = qp_stage(s, carry + la(s) + pfl + ex)
    stamp(p, 4)
    ms = []
    for t in range(3):
        for ks in range(4):
            for dt in range(4):
                d = f"v[{acc(t,dt)}:{acc(t,dt)+15}]"
                a = A7[ks] + 4 * dt; b = B7[t] + 4 * ks
                ms.append(f"v_mfma_f32_32x32x16_bf16 {d}, a[{a}:{a+3}], a[{b}:{b+3}], {d}")
    ms += [s_mfma(S[0], t, ks, True) for t in range(3) for ks in range(8)]
    I0 = 72
    def IT(i, g=0): return I0 + 48 * i + g
    ms += [s_mfma(S[1], t, ks) for t in range(3) for ks in range(8)]
    ms += [pv_mfma(S[0], j, t, True) for j in range(8) for t in range(3)]
    for i in range(1, 15):
        ms += [s_mfma(S[(i + 1) & 1], t, ks) for ks in range(8) for t in range(3)]
        ms += [pv_mfma(S[i & 1], j, t) for j in range(8) for t in range(3)]
    TL = IT(15)
    ms += [pv_mfma(S[1], j, t) for j in range(8) for t in range(3)]
    sl = Slots()
    rs = [a_read(ks, dt, sec, A7[ks] + 4 * dt) for ks in (2, 3) for dt in range(4) for sec in range(2)]
    for i, r in enumerate(rs): sl.put(i // 2, r)
    for ks in range(4): sl.put(8 + ks, b_read(ks, 1, B7[1] + 4 * ks))
    for ks in range(4): sl.put(17 + ks, b_read(ks, 2, B7[2] + 4 * ks))
    sl.put(-1, [f"v_mbcnt_lo_u32_b32 v{vOX}, -1, 0", f"v_mbcnt_hi_u32_b32 v{vOX}, -1, v{vOX}", f"v_lshlrev_b32 v{vOX}, 4, v{vOX}",
                f"v_add_u32 v{vOW}, s62, v{vOX}", f"v_add_u32 v{vOX}, s61, v{vOX}"])
    w1 = pf_write('K', 0, vOX, KS[1]) + pf_write('V', 16, vOW, VS[1])
    WS2 = OPT['ws2']
    for i, x in enumerate(w1): sl.put(WS2 * i, x)
    sl.put(WS2 * 8 - 1, [f"v_add_u32 v{vOX}, {WIN}, v{vOX}", f"v_add_u32 v{vOW}, {WIN}, v{vOW}"])
    w2 = pf_write('K', 32, vOX, KS[2] - WIN) + pf_write('V', 48, vOW, VS[2] - WIN)
    for i, x in enumerate(w2): sl.put(WS2 * (8 + i), x)
    sl.put(25, ["s_waitcnt lgkmcnt(1)", "s_barrier"])
    w3 = pf_write('K', 64, vOX, KS[3] - WIN) + pf_write('V', 80, vOW, VS[3] - WIN)
    for i, x in enumerate(w3): sl.put(max(WS2 * 16, 26) + 2 * i, x)
    for ks in range(8): sl.put(33 + 2 * ks, k_read(ks, KS[0]))
    sl.put(52, ["s_waitcnt lgkmcnt(0)", "s_barrier"])
    for ks in range(8): sl.put(65 + ks, k_read(ks, KS[1]))
    kwin = 0; vwin = 0
    def win_move(regs, d): return [(f"v_add_u32 v{r}, {d}, v{r}" if d > 0 else f"v_subrev_u32 v{r}, {-d}, v{r}") for r in regs]
    for i in range(0, 16):
        va = VS[i % 4]; w = (va // WIN) * WIN
        if w != vwin:
            sl.put(IT(i, 10) if i < 15 else IT(14, 41), win_move([vV0, vV1], w - vwin)); vwin = w
        for j in range(8):
            if i == 0: g0 = max(89 + j, IT(0, 15 + 3 * j)); g1 = g0 + (0 if j < 2 else 1)
            elif i < 15: g0 = IT(i, 15 + 3 * j); g1 = g0 + 1
            else: g0 = max(IT(14, 42 + 2 * j), TL + 3 * j - 9); g1 = g0 + 1
            sl.put(g0, v_read(j, 0, va - vwin)); sl.put(g1, v_read(j, 1, va - vwin))
        if i == 15: break
        need = [f"V{i+1}"] + ([f"K{i+2}"] if i + 2 < 16 else [])
        sl.put(IT(i, 40), ["s_waitcnt lgkmcnt(0)", Ins("s_barrier", lr=need)])
        n = i + 2
        if n < 16:
            ka = KS[n % 5]; w = (ka // WIN) * WIN
            if w != kwin:
                sl.put(IT(i, 38), win_move([vK], w - kwin)); kwin = w
            for ks, g in enumerate([IT(i, 42), IT(i, 44), IT(i, 46), IT(i + 1, 1), IT(i + 1, 4), IT(i + 1, 7), IT(i + 1, 10), IT(i + 1, 13)]):
                sl.put(g, k_read(ks, ka - kwin))
    XR = OPT['xreg']
    tiles = []
    def add_tile(kind, n, ear):
        dst = KS[n % 5] if kind == 'K' else VS[n % 4]
        tiles.append((IT(n - 2, 40) if kind == 'K' else IT(n - 1, 40) - 1, ear, tile_vm(kind, n, dst)))
    if XR < 2: add_tile('K', 4, 27)
    add_tile('K', 5, 54)
    for n in range(6, 16): add_tile('K', n, IT(n - 6, 42))
    for n in range(4 + min(XR, 2), 16): add_tile('V', n, IT(n - 4, 42))
    if XR:
        tiles.append((IT(2, 40), 49, pf_load('V', 4, 192)))
        sl.put(IT(2, 14), [f"v_mbcnt_lo_u32_b32 v{vOW}, -1, 0", f"v_mbcnt_hi_u32_b32 v{vOW}, -1, v{vOW}"])
        sl.put(IT(2, 16), [f"v_lshlrev_b32 v{vOW}, 4, v{vOW}", f"v_add_u32 v{vOW}, s62, v{vOW}"])
        for i, x in enumerate(pf_write('V', 192, vOW, VS[0])): sl.put(IT(2, 18) + 2 * i, x)
    if XR >= 2:
        tiles.append((IT(2, 39), 33, pf_load('V', 5, 208)))
        for i, x in enumerate(pf_write('V', 208, vOW, VS[1])): sl.put(IT(3, 18) + 2 * i, x)
        sl.put(47, [f"v_add_u32 v{vOX}, {WIN}, v{vOX}"])
        for i, x in enumerate(pf_write('K', 96, vOX, KS[4] - 2 * WIN)): sl.put(48 + i, x)
    g_first, g_last = OPT['dfirst'], I0 + OPT['dlast']
    nops = sum(len(t[2]) for t in tiles)
    gaps = []; vm = []; g = g_first - 2.0
    while tiles:
        step = max(2.0, (g_last - g) / (nops - len(gaps)))
        av = [t for t in tiles if t[1] <= g + step]
        t = min(av, key=lambda t: t[0]) if av else min(tiles, key=lambda t: t[1])
        tiles.remove(t)
        for pre, d in t[2]:
            step = max(2.0, (g_last - g) / (nops - len(gaps)))
            g = max(g + step, t[1])
            gi = int(round(g))
            while gi in gaps or (gi - 1) in gaps or any(txt(x).startswith('s_barrier') for x in sl.get(gi, [])): gi += 1
            gaps.append(gi); g = max(g, gi); vm.append((pre, d, t[1]))
        assert gaps[-1] + OPT['kmar'] <= t[0], (txt(t[2][0][1]), gaps[-1], t[0])
    put_vm(sl, gaps, [(a, b) for a, b, _ in vm])
    if OPT.get('verbose'):
        last = {}
        for gi, (pre, d, ear) in zip(gaps, vm):
            if isinstance(d, Ins): last[d.lw[0]] = gi
        for k_, gi in last.items():
            n = int(k_[1:]); nb = IT(n - 2, 40) if k_[0] == 'K' else IT(n - 1, 40)
            sys.stderr.write(f"{k_}: last issue {gi} (iter {(gi-I0)/48:.2f}) margin {nb-gi}\n")
    used_vm = set(gaps)
    def free_gap(g):
        while g in used_vm or (g - 1) in used_vm or (g + 1) in used_vm: g += 1
        used_vm.add(g); return g
    sl.put(-1, ["v_mbcnt_lo_u32_b32 v237, -1, 0", "v_mbcnt_hi_u32_b32 v237, -1, v237", "v_lshlrev_b32 v237, 7, v237"])
    sl.put(free_gap(12), "buffer_load_dword a184, v237, s[8:11], s63 offen offset:1024")
    sl.put(free_gap(14), "buffer_load_dword a185, v237, s[8:11], s63 offen offset:1088")
    if XR < 2:
        sl.put(32, ["v_accvgpr_write_b32 a208, s12", "v_accvgpr_write_b32 a209, 0"])
        sl.put(free_gap(34), f"buffer_atomic_cmpswap a[208:209], v{vSY}, s[72:75], s65 offen sc0 sc1")
        sl.put(IT(8, 6), [f"v_accvgpr_read_b32 v{vX}, a208"])
        sl.put(IT(8, 8), [f"v_readfirstlane_b32 s13, v{vX}"])
        sl.put(IT(8, 10), ["s_cmp_eq_u32 s13, 0", "s_cselect_b32 s13, s12, s13"])
    else:
        sl.put(14, ["v_mov_b32 v238, s12", "v_mov_b32 v239, 0"])
        sl.put(free_gap(16), f"buffer_atomic_cmpswap v[238:239], v{vSY}, s[72:75], s65 offen sc1")
        sl.put(free_gap(IT(4, 20)), f"buffer_load_dword v{vX}, v{vSY}, s[72:75], s65 offen sc1")
        sl.put(IT(8, 8), [f"v_readfirstlane_b32 s13, v{vX}"])
    for i, x in enumerate(wo_setup()): sl.put(IT(9, 2) + i, x)
    wear = [IT(10, 42), IT(11, 42), IT(12, 42), IT(12, 42), IT(13, 42), IT(13, 42)]
    g = max(max(gaps) + 2, IT(13, 10))
    wg_, wl_ = [], []
    for sig in range(NWPRE):
        for pre, d in wo_tile(sig):
            g = free_gap(max(g, wear[sig]))
            while any(txt(x).startswith('s_barrier') for x in sl.get(g, [])): g = free_gap(g + 1)
            wg_.append(g); wl_.append((pre, d)); g += OPT.get('wps', 3)
    put_vm(sl, wg_, wl_)
    conv = []
    for t in range(3):
        for dt in range(4):
            a = acc(t, dt)
            ear = 16 * t + 12 + dt + 3
            for k2 in range(2):
                dl = 48 + 8 * t + 2 * dt + k2 - 2
                if t == 1 and dt < 3: dl = min(dl, 48 + 8 * dt - 2)
                for pr in range(4):
                    r = a + 8 * k2 + 2 * pr
                    conv.append((f"v_mul_f32 v{r}, s64, v{r}", ear, dl))
                    conv.append((f"v_mul_f32 v{r+1}, s64, v{r+1}", ear, dl))
                for pr in range(4):
                    r = a + 8 * k2 + 2 * pr
                    conv.append((f"v_cvt_pk_bf16_f32 v{QB[t] + 4*(2*dt+k2) + pr}, v{r}, v{r+1}", ear, dl))
    mx = []
    for t in range(3):
        b = S[0] + t * 16
        ear0 = 48 + 8 * t + 7 + 3
        ear = ear0 if t == 0 else max(ear0, 71)
        dl = 72 + 8 * t - 2
        ops = [f"v_max3_f32 v{vM[t]}, v{b}, v{b+1}, v{b+2}"]
        ops += [f"v_max3_f32 v{vM[t]}, v{vM[t]}, v{b+r}, v{b+r+1}" for r in range(3, 15, 2)]
        ops += [f"v_max_f32 v{vM[t]}, v{vM[t]}, v{b+15}", f"v_mov_b32 v{vT[t]}, v{vM[t]}", "s_nop 1", f"v_permlane32_swap_b32 v{vT[t]}, v{vM[t]}",
                f"v_max_f32 v{vM[t]}, v{vM[t]}, v{vT[t]}"]
        mx += [(o, ear0, dl) for o in ops]
        mx += [(f"v_sub_f32 v{NEGM[t]+r}, 0, v{vM[t]}", ear, dl) for r in range(16)]
    sm = []
    for n in range(16):
        buf = S[n & 1]
        pv0 = IT(n, 24) if n < 15 else TL
        def dl_of(e): return pv0 + (0 if e < 24 else 12) + (e % 24) // 8 - 2
        for e in range(49):
            t = (min(e, 47) % 24) // 8
            if n == 0: ear = 72 + 8 * t - 1
            elif n == 1: ear = IT(0, 8 * t + 7 + 4)
            else: ear = IT(n - 1, 21 + t + 4)
            if n == 0 and e < 48:
                r, t = ereg(buf, e)
                sm.append((f"v_sub_f32 v{r}, v{r}, v{vM[t]}", ear, dl_of(e) - 1))
            for o in sm_ops(buf, e):
                sm.append((o, ear, dl_of(e) - 1 if o.startswith('v_exp') else dl_of(e - 1)))
    fin = fin_ops()
    vote = [f"s_mov_b32 s66, {f2u(OPT['thr']):#x}",
            f"v_max3_f32 v232, v{vL[0]}, v{vL[1]}, v{vL[2]}", f"v_add_f32 v233, v{vL[0]}, v{vL[1]}", f"v_add_f32 v233, v233, v{vL[2]}",
            f"v_cmp_nge_f32 vcc, s66, v233", f"v_mov_b32 v234, {SPARE}", "s_lshl_b32 s67, s3, 2", "s_cmp_lg_u64 vcc, 0\ns_cselect_b32 s66, 1, 0",
            "v_add_u32 v235, s67, v234", "v_mov_b32 v236, s66", "ds_write_b32 v235, v236"]
    vote = [x for x in vote if 'max3' not in x]
    sm += [(o, TL + 10, TL + 17) for o in fin[:9] + vote]
    sl.put(TL + 19, ["s_waitcnt lgkmcnt(0)", Ins("s_barrier", lr=[f"W{i}" for i in range(4)]), "ds_read_b128 v[236:239], v234"])
    sm += [(o, TL + 18, TL + 22) for o in fin[9:]]
    if OPT['stamp']:
        sl.put(IT(1, 0) - 1, stamp_ops(5)); sl.put(TL - 1, stamp_ops(6))
    def bud(g):
        if g < IT(1): return OPT['tbud']
        return OPT['bud'] - (4 if (g - I0) % 3 == 2 else 0)
    schedule(p, ms, sl, [conv, mx, sm], budget=bud)
    I("""
v_or3_b32 v236, v236, v237, v238
v_or_b32 v236, v236, v239
v_readfirstlane_b32 s66, v236
s_cmp_lg_u32 s66, 0
s_cbranch_scc1 L1_slow
L1_norm:
""")
    stamp(p, 7)
    OXS = [63, 64, 65, 70]
    I(f"""
s_lshl_b32 s68, s48, 1
s_and_b32 s69, s3, 1
s_add_u32 s68, s68, s69
s_lshl_b32 s68, s68, 5
s_lshr_b32 s69, s3, 1
s_add_u32 s68, s68, s69
s_lshl_b32 s69, s70, 1
s_add_u32 s68, s68, s69
""")
    for rho in range(4):
        I(f"s_add_u32 s69, s71, {rho}\ns_and_b32 s69, s69, 3\ns_lshl_b32 s69, s69, 1\ns_add_u32 s69, s69, s68\ns_mul_i32 s{OXS[rho]}, s69, 24576")
    I(f"""
v_bfe_u32 v232, v{rLn}, 2, 2
v_lshlrev_b32 v232, 7, v232
v_lshrrev_b32 v233, 5, v{rLn}
v_lshl_add_u32 v232, v233, 9, v232
v_bfe_u32 v233, v{rLn}, 3, 1
v_lshl_add_u32 v232, v233, 6, v232
v_bfe_u32 v233, v{rLn}, 4, 1
v_lshl_add_u32 v232, v233, 5, v232
v_and_b32 v233, 1, v{rLn}
v_lshl_add_u32 v232, v233, 4, v232
v_bfe_u32 v233, v{rLn}, 1, 1
v_lshl_add_u32 v232, v233, 3, v232
s_lshr_b32 s69, s3, 1
s_lshl_b32 s69, s69, 11
v_add_u32 v240, s69, v232
v_xor_b32 v241, 64, v240
v_add_u32 v242, {WIN}, v240
v_add_u32 v243, {WIN}, v241
v_add_u32 v244, {2*WIN}, v240
v_add_u32 v245, {2*WIN}, v241
v_lshlrev_b32 v246, 4, v{rLn}
s_lshl_b32 s69, s71, 2
s_add_u32 s52, s53, s69
""")
    rL16 = 246
    NBR = 5
    def bfr(sig, ks, t): return (sig % NBR) * 24 + (ks * 3 + t) * 4
    def oacc(n, t):
        return (f"v[{120+(n*3+t)*16}:{135+(n*3+t)*16}]" if n < 2 else f"a[{((n-2)*3+t)*16}:{((n-2)*3+t)*16+15}]")
    RD = 4
    GR = [(0, ks, n) for ks in range(2) for n in range(3)] + [(0, 0, 3), (0, 1, 3)]
    for sig in range(1, 14): GR += [(sig, ks, n) for ks in range(2) for n in range(4)]
    GR += [(sig, ks, n) for sig in (14, 15) for ks in range(2) for n in (2, 3)] + [(sig, ks, n) for sig in (14, 15) for ks in range(2) for n in (0, 1)]
    def a_rd(k, sec):
        sig, ks, n = GR[k]
        b = fr(k) + 2 * sec
        a = WSL[sig % NSL]; w = a // WIN
        return f"ds_read_b64_tr_b16 a[{b}:{b+1}], v{240 + 2*w + (n & 1)} offset:{a - w*WIN + (2*ks + sec)*4096 + (n>>1)*1024}"
    def op_mfma(k, t):
        sig, ks, n = GR[k]
        b = bfr(sig, ks, t); d = oacc(n, t)
        return f"v_mfma_f32_32x32x16_bf16 {d}, a[{fr(k)}:{fr(k)+3}], v[{b}:{b+3}], {'0' if (sig == 0 and ks == 0) else d}"
    for k in range(RD):
        I(a_rd(k, 0)); I(a_rd(k, 1))
    def norm_unit(dt, pk):
        out = []
        for t in range(3):
            for k2 in range(2):
                o = (dt * 3 + t) * 16 + 8 * k2
                tb = 216 if k2 == 0 else 230
                out += [f"v_accvgpr_read_b32 v{tb+r}, a{o+r}" for r in range(8)]
                if pk: out += [f"v_pk_mul_f32 v[{tb+2*pr}:{tb+2*pr+1}], v[{tb+2*pr}:{tb+2*pr+1}], v[{RC[t]}:{RC[t]+1}]" for pr in range(4)]
                else: out += [f"v_mul_f32 v{tb+r}, v{RC[t]}, v{tb+r}" for r in range(8)]
                b = bfr(dt, k2, t)
                out += [f"v_cvt_pk_bf16_f32 v{b+pr}, v{tb+2*pr}, v{tb+2*pr+1}" for pr in range(4)]
                out.append(f"s_add_u32 s67, s63, {(2*dt+k2)*3072}")
                out.append(Ins(f"buffer_store_dwordx4 v[{b}:{b+3}], v{rL16}, s[44:47], s67 offen offset:{t*1024} {OPT['ost']}", lw=["OA" if dt < 2 else "OB"]))
        return out
    for x in norm_unit(0, True): em(p, x)
    stamp(p, 8)
    nrm = []
    for dt, dl in ((1, 18), (2, 48), (3, 72)):
        nrm += [(x, 0, dl - 2) for x in norm_unit(dt, OPT['npk'])]
    def ox_load(sig):
        rho, dq = step_of(sig)
        out = []
        for ks in range(2):
            for t in range(3):
                b = bfr(sig, ks, t)
                out.append(([f"s_add_u32 s60, s{OXS[rho]}, {(2*dq+ks)*3072}"] if t == 0 else [],
                            f"buffer_load_dwordx4 v[{b}:{b+3}], v{rL16}, s[44:47], s60 offen offset:{t*1024} {OPT['oxl']}"))
        return out
    al = Slots()
    for k in range(len(GR)):
        kn = k + RD
        if kn < len(GR):
            nxt = (kn >> 3) != (k >> 3)
            g0 = 3 * k + (2 if nxt else 0)
            al.put(g0, a_rd(kn, 0)); al.put(min(g0 + 1, (k >> 3) * 24 + 23), a_rd(kn, 1))
    def bar(g, need, extra=()):
        al.put(g, ["s_waitcnt lgkmcnt(0)", Ins("s_barrier", lr=list(need))] + list(extra))
    PA, PL, PB, PL2 = OPT['pa'], OPT['pl'], 3 * 24 + 13, OPT['pl2']
    al.put(PA, [Ins("s_barrier", lr=["OA"]), "v_mov_b32 v247, s13", f"buffer_store_dword v247, v{vSY}, s[4:7], s52 offen sc1"])
    for s_ in (3, 5, 7, 9, 11, 13):
        ex = ["s_add_u32 s66, s13, 8", "v_mov_b32 v247, s66", f"buffer_store_dword v247, v{vSY}, s[4:7], s52 offen sc1"] if s_ == OPT['pbs'] else []
        bar(s_ * 24 + 13, [f"W{s_+1}", f"W{s_+2}"] + (["OB"] if s_ == OPT['pbs'] else []), ex)
    used = set([PA, OPT['pbs'] * 24 + 13])
    def place(g0, lst, stride):
        gs = []; g = g0
        for _ in lst:
            while g in used or g in (PL, PL2): g += 1
            gs.append(g); used.add(g); g += stride
        put_vm(al, gs, lst); return g
    for pl_ in (PL, PL2):
        al.put(pl_ - OPT['pe'], f"buffer_load_dwordx4 a[208:211], v{vSY}, s[4:7], s53 offen sc1"); used.add(pl_ - OPT['pe'])
    def chk(tl, g):
        nb = (tl - 1 if tl % 2 == 0 else tl - 2) * 24 + 13
        assert g + OPT['wmar'] <= nb, f"wo tile {tl} issued at {g}, needed by barrier {nb}"
    g = OPT['w6']
    for tl in range(NWPRE, NSL):
        g = place(g, wo_tile(tl), OPT['w6s']); chk(tl, g)
    for tl in range(NSL, 16):
        st = tl - NSL
        sb = 3 if st <= 3 else (st if st % 2 else st + 1)
        g = place(max(g, sb * 24 + 16), wo_tile(tl), OPT['wls']); chk(tl, g)
    g = PL + 1
    for sig in range(4, 16):
        g = max(g, (sig - NBR + 1) * 24 + 1)
        if sig >= 10: g = max(g, PL2 + 1)
        g = place(g, ox_load(sig), OPT['oxs'] if sig < 4 + OPT['oxn'] else OPT['oxt'])
        if OPT.get('verbose'): sys.stderr.write(f"ox {sig}: end gap {g} need {sig*24}\n")
        assert g <= min(sig * 24, 14 * 24 + 12)
    XREG = [16512, 65792, 65792 + 24576, 65792 + 2 * 24576]
    fs = """s_cmp_eq_u32 s3, 0\ns_cselect_b32 s66, X0, X1
s_cmp_eq_u32 s3, 2\ns_cselect_b32 s66, X2, s66
s_cmp_eq_u32 s3, 3\ns_cselect_b32 s66, X3, s66""".split('\n')
    setup = [f"s_mul_i32 s66, s3, 24576", f"s_add_u32 s66, s66, {65792 - 24576}", f"s_cmp_eq_u32 s3, 0\ns_cselect_b32 s66, 16512, s66", f"v_add_u32 v248, s66, v{rL16}",
             "s_xor_b32 s67, s3, 2", "s_mul_i32 s66, s67, 24576", f"s_add_u32 s66, s66, {65792 - 24576}", "s_cmp_eq_u32 s67, 0\ns_cselect_b32 s66, 16512, s66", f"v_add_u32 v249, s66, v{rL16}",
             f"s_add_u32 s28, s18, {P_WS_OFF}\ns_addc_u32 s29, s19, 0", "s_and_b32 s29, s29, 0xffff", f"s_mov_b32 s30, {P_BYTES}",
             "s_lshr_b32 s66, s49, 2", "s_lshl_b32 s66, s66, 4", "s_add_u32 s66, s66, s48", "s_mul_i32 s66, s66, 6", "s_and_b32 s67, s3, 1", "s_mul_i32 s67, s67, 3",
             "s_add_u32 s66, s66, s67", "s_lshl_b32 s66, s66, 15", "s_lshl_b32 s67, s71, 13", "s_add_u32 s66, s66, s67", "s_lshr_b32 s67, s3, 1", "s_lshl_b32 s67, s67, 12",
             "s_add_u32 s66, s66, s67"]
    for i, x in enumerate(setup): al.put(12 * 24 + i, x)
    E0 = 15 * 24
    for i in range(24): al.put(E0 + 1 + i // 2 + (0 if i < 12 else 1), f"ds_write_b128 v248, a[{4*i}:{4*i+3}] offset:{i*1024}")
    al.put(E0 + 17, ["s_waitcnt lgkmcnt(0)", "s_barrier"])
    def xr(i): return 24 + 4 * i if i < 18 else 216 + 4 * (i - 18)
    for i in range(24): al.put(E0 + 18 + i // 4, f"ds_read_b128 v[{xr(i)}:{xr(i)+3}], v249 offset:{i*1024}")
    if OPT['st2']:
        for idx, s_ in ((2, 8), (3, 12)): al.put(s_ * 24 - 1, stamp_ops(idx))
    allm = [op_mfma(k, t) for k in range(len(GR)) for t in range(3)]
    def seg(g0, g1, streams=(), budget=None):
        r = Slots()
        for k_, v_ in al.items():
            if g0 <= k_ < g1: r[k_ - g0] = list(v_)
        schedule(p, allm[g0:g1], r, streams, budget)
    def poll(tag, full):
        chk = "\n".join(f"s_or_b32 s{r}, s{r}, 8" for r in (66, 67, 68, 69)) if not full else ""
        p.raw(f"""
s_mov_b32 s51, 0
s_add_u32 s14, s13, 8
s_cmp_lg_u32 s3, 0
s_cbranch_scc1 L1_go{tag}
L1_poll{tag}:
s_waitcnt vmcnt(0)
v_accvgpr_read_b32 v253, a208
v_accvgpr_read_b32 v254, a209
s_nop 0
v_readfirstlane_b32 s66, v253
v_readfirstlane_b32 s67, v254
v_accvgpr_read_b32 v253, a210
v_accvgpr_read_b32 v254, a211
s_nop 0
v_readfirstlane_b32 s68, v253
v_readfirstlane_b32 s69, v254
s_nop 1
{chk}
s_xor_b32 s66, s66, s14
s_xor_b32 s67, s67, s14
s_xor_b32 s68, s68, s14
s_xor_b32 s69, s69, s14
s_or_b32 s66, s66, s67
s_or_b32 s68, s68, s69
s_or_b32 s66, s66, s68
s_cbranch_scc0 L1_go{tag}
s_sleep 2
buffer_load_dwordx4 a[208:211], v{vSY}, s[4:7], s53 offen sc1
s_add_u32 s51, s51, 1
s_cmp_lt_u32 s51, 0x40000
s_cbranch_scc1 L1_poll{tag}
L1_go{tag}:
""")
        I("s_barrier")
    assert PL >= 72
    seg(0, PL, [nrm], lambda g: OPT['nbud'])
    poll("a", False)
    stamp(p, 9)
    seg(PL, PL2)
    poll("b", True)
    seg(PL2, len(allm))
    if OPT['st2']: stamp(p, 4)
    for n in range(2):
        for t in range(3):
            o = 120 + (n * 3 + t) * 16
            for q4 in range(4):
                x = xr((n * 3 + t) * 4 + q4)
                I(f"v_pk_add_f32 v[{o+4*q4}:{o+4*q4+1}], v[{o+4*q4}:{o+4*q4+1}], v[{x}:{x+1}]")
                I(f"v_pk_add_f32 v[{o+4*q4+2}:{o+4*q4+3}], v[{o+4*q4+2}:{o+4*q4+3}], v[{x+2}:{x+3}]")
            for pr in range(8): I(f"v_cvt_pk_bf16_f32 v{o+pr}, v{o+2*pr}, v{o+2*pr+1}")
            I(f"s_add_u32 s67, s66, {t*32768}")
            for s2 in range(2):
                I(f"buffer_store_dwordx4 v[{o+4*s2}:{o+4*s2+3}], v{rL16}, s[28:31], s67 offen offset:{(n*2+s2)*1024} {OPT['pst']}")
    if OPT['stamp']:
        I("s_waitcnt vmcnt(0)")
        stamp(p, 1)
        stamp_out(p, 10, 0)
    I("L1_end:\ns_endpgm\nL1_code_end:")
    return p

def gen_slow():
    p = Prog(); I = p.I
    M = [232, 233, 234]; T = [235, 236, 237]
    M = [S[1], S[1] + 1, S[1] + 2]; T = [S[1] + 3, S[1] + 4, S[1] + 5]
    I("L1_slow:\ns_nop 15\ns_waitcnt vmcnt(0) lgkmcnt(0)\ns_barrier")
    I(f"v_mbcnt_lo_u32_b32 v{S[1]+8}, -1, 0\nv_mbcnt_hi_u32_b32 v{S[1]+8}, -1, v{S[1]+8}")
    for x in kv_addr_setup(f"v{S[1]+8}", S[1] + 9): I(x)
    for t in range(3): I(f"v_mov_b32 v{M[t]}, 0xff800000")
    def load(kinds):
        for kind in kinds:
            pre, dm = kv_tile(kind, 0, KS[0] if kind == 'K' else VS[0], soff="s60", tag=False)
            for x in pre: I(x)
            for d in dm: p.add(d)
        I("s_waitcnt vmcnt(0)\ns_barrier")
    I("s_mov_b32 s60, 0\nL1_s1:")
    p.loop_begin(2)
    load("K")
    for ks in range(8): I(k_read(ks, KS[0]))
    for ks in range(8):
        for t in range(3): I(s_mfma(S[0], t, ks, True))
    for t in range(3):
        b = S[0] + 16 * t
        for r in range(0, 16, 2): I(f"v_max3_f32 v{M[t]}, v{M[t]}, v{b+r}, v{b+r+1}")
    I("s_barrier\ns_add_u32 s60, s60, 8192\ns_cmp_lt_u32 s60, 131072\ns_cbranch_scc1 L1_s1")
    p.loop_end()
    for t in range(3): I(f"v_mov_b32 v{T[t]}, v{M[t]}")
    for t in range(3): I(f"v_permlane32_swap_b32 v{T[t]}, v{M[t]}")
    for t in range(3): I(f"v_max_f32 v{M[t]}, v{M[t]}, v{T[t]}")
    for t in range(3):
        for r in range(16): I(f"v_sub_f32 v{NEGM[t]+r}, 0, v{M[t]}")
        I(f"v_mov_b32 v{vL[t]}, 0")
    for r in range(192): I(f"v_accvgpr_write_b32 a{r}, 0")
    I("s_mov_b32 s60, 0\nL1_s2:")
    p.loop_begin(2)
    load("KV")
    for ks in range(8): I(k_read(ks, KS[0]))
    for ks in range(8):
        for t in range(3): I(s_mfma(S[0], t, ks))
    for j in range(8):
        I(v_read(j, 0, VS[0])); I(v_read(j, 1, VS[0]))
    for e in range(49):
        for x in sm_ops(S[0], e): I(x)
    for j in range(8):
        for t in range(3): I(pv_mfma(S[0], j, t))
    I("s_barrier\ns_add_u32 s60, s60, 8192\ns_cmp_lt_u32 s60, 131072\ns_cbranch_scc1 L1_s2")
    p.loop_end()
    for x in fin_ops(): I(x)
    for sig in range(NWPRE):
        for pre, d in wo_tile(sig):
            for x in pre: I(x)
            p.add(d)
    I("s_waitcnt vmcnt(0)\ns_barrier\ns_nop 15\ns_branch L1_norm")
    return p

def gen_red():
    p = Prog(); I = p.I
    I("s_cmp_ge_u32 s2, 768\ns_cbranch_scc1 L2_end")
    I("s_load_dwordx2 s[14:15], s[0:1], 40\ns_load_dwordx2 s[18:19], s[0:1], 56")
    stamp(p, 0)
    I(f"""
v_lshrrev_b32 v1, 6, v0
v_and_b32 v0, 63, v0
v_readfirstlane_b32 s3, v1
v_lshrrev_b32 v2, 3, v0
v_and_b32 v3, 7, v0
v_lshlrev_b32 v4, 9, v2
v_lshl_add_u32 v4, v3, 4, v4
v_lshlrev_b32 v5, 4, v2
v_lshl_add_u32 v5, v3, 10, v5
s_lshl_b32 s4, s2, 2
s_add_u32 s4, s4, s3
s_lshr_b32 s5, s4, 5
s_bfe_u32 s6, s4, 0x20003
s_and_b32 s7, s4, 7
s_lshl_b32 s8, s5, 15
s_lshl_b32 s9, s7, 12
s_add_u32 s9, s9, s8
s_lshl_b32 s10, s6, 7
s_add_u32 s9, s9, s10
s_lshl_b32 s10, s6, 13
s_add_u32 s8, s8, s10
s_lshl_b32 s10, s7, 7
s_add_u32 s8, s8, s10
s_waitcnt lgkmcnt(0)
s_add_u32 s20, s18, {P_WS_OFF}
s_addc_u32 s21, s19, 0
s_and_b32 s21, s21, 0xffff
s_mov_b32 s22, {P_BYTES}
s_mov_b32 s23, 0x00020000
""")
    for g in range(4):
        I(f"buffer_load_dwordx4 v[{8+4*g}:{11+4*g}], v4, s[20:23], s9 offen {OPT['rld']}")
        if g < 3: I(f"s_add_u32 s9, s9, {16*192*1024}")
    srd(p, 24, 14, 15, 16 * 192 * 1024)
    for d in range(4):
        for g in range(4):
            r = 8 + 4 * g + d
            I(f"v_lshlrev_b32 v{24+2*g}, 16, v{r}\nv_and_b32 v{25+2*g}, 0xffff0000, v{r}")
        I(f"v_pk_add_f32 v[24:25], v[24:25], v[26:27]\nv_pk_add_f32 v[28:29], v[28:29], v[30:31]\nv_pk_add_f32 v[24:25], v[24:25], v[28:29]")
        I(f"v_cvt_pk_bf16_f32 v{32+d}, v24, v25")
    I("buffer_store_dwordx4 v[32:35], v5, s[24:27], s8 offen")
    if OPT['stamp']:
        I("s_waitcnt vmcnt(0)")
        stamp(p, 1)
        I("s_cmp_ge_u32 s2, 256\ns_cbranch_scc1 L2_end\ns_mul_i32 s2, s2, 1")
        stamp_out(p, 2, 0x20000)
    I("L2_end:\ns_endpgm")
    return p

def kd(name, vg, acc, sg=102):
    return f""".p2align 6
.amdhsa_kernel {name}
  .amdhsa_next_free_vgpr {vg}
  .amdhsa_next_free_sgpr {sg}
  .amdhsa_accum_offset {acc}
  .amdhsa_group_segment_fixed_size 0
  .amdhsa_kernarg_size 64
  .amdhsa_user_sgpr_count 2
  .amdhsa_user_sgpr_kernarg_segment_ptr 1
  .amdhsa_system_sgpr_workgroup_id_x 1
  .amdhsa_float_denorm_mode_32 3
.end_amdhsa_kernel
"""

def main():
    k1 = gen_k1(); k1.resolve(); t1, s1 = k1.emit()
    ks = gen_slow(); ks.resolve(); ts, _ = ks.emit(); t1 += ts
    k2 = gen_red(); k2.resolve(); t2, s2 = k2.emit()
    sys.stderr.write(f"k1 {s1}  k2 {s2}\n")
    hdr = open('cdna_kernels/' + NAME + '.s.ref').read().split('\n')
    top = [l for l in hdr if l.startswith(';') and '@launch' not in l and 'Override' not in l and 'grid=ceil' not in l]
    out = '\n'.join(top) + f"""
; @launch kernel=attn_kernel grid=(256,1,1) block=(256,1,1) lds=163840
; @launch kernel=reduce_kernel grid=(768,1,1) block=(256,1,1) lds=0
.amdgcn_target "amdgcn-amd-amdhsa--gfx950"
.text
.globl attn_kernel
.p2align 8
.type attn_kernel,@function
attn_kernel:
{t1}
.globl reduce_kernel
.p2align 8
.type reduce_kernel,@function
reduce_kernel:
{t2}
.section .rodata,"a"
{kd('attn_kernel', 512, 256)}{kd('reduce_kernel', 40, 40, 102 if OPT['stamp'] else 32)}"""
    open(sys.argv[1], 'w').write(out)
main()
```

```python
import sys, math, struct
from asmlib import *
NAME = "standalone__mha_block_cached__near_ridge"
OPT = dict(stamp=0, tlb=0, dfirst=26, kmar=24, la=0, ws2=2, npk=1, pa=44, pl=72, pl2=144, pbs=3, nbud=32, w6=59, w6s=2, wmar=20, oxt=4, st2=0, kvsz=1, xw=1, rh=2, rb=1, rmask=7, pre1=8, bud=24, tbud=28, dcost=12,
           ost='sc1', oxl='sc1', pst='sc1', rld='', pub=13, pol=3, pe=12, oxs=1, oxn=2, wls=6, ctouch=1,
           dlast=640, thr=2.0**40, xreg=1)
for a in sys.argv[2:]:
    k, v = a.split('=')
    try: OPT[k] = int(v, 0)
    except ValueError:
        try: OPT[k] = float(v)
        except ValueError: OPT[k] = v.replace('+', ' ')

def f2u(x): return struct.unpack('<I', struct.pack('<f', x))[0]
SCALE = math.log2(math.e) / math.sqrt(128.0)

XBLK = 1056; XSZ = 24 * XBLK
WQSZ = 32768
BUFSZ = XSZ + WQSZ
BUFA = 163840 - 2 * BUFSZ
KRG = 4128
KSZ = 4 * KRG; VSZ = 16384
KS = [0, 32896, 65792, 98688, 131584]
VS = [16512, 49408, 82304, 115200]
SPARE = 148096
WIN = 65792
O_WS_OFF = 0x1000000; O_BYTES = 16 * 192 * 4096 * 2
FLAG_OFF = 0x800000
P_WS_OFF = 0x4000000; P_BYTES = 4 * 16 * 192 * 512 * 2

def srd(p, d, lo, hi, size):
    p.I(f"s_mov_b32 s{d}, s{lo}\ns_and_b32 s{d+1}, s{hi}, 0xffff\ns_mov_b32 s{d+2}, {size}\ns_mov_b32 s{d+3}, 0x00020000")
def stamp_ops(idx):
    if not OPT['stamp']: return []
    return ["s_memrealtime s[78:79]", "s_memtime s[76:77]", "s_waitcnt lgkmcnt(0)", f"s_mov_b32 s{80+idx}, s78", f"s_mov_b32 s{90+idx}, s76"]
def stamp(p, idx):
    for x in stamp_ops(idx): p.I(x)
def stamp_out(p, nst, base_off):
    if not OPT['stamp']: return
    p.I(f"""
s_mov_b32 s72, s18
s_and_b32 s73, s19, 0xffff
s_mov_b32 s74, 0x1000000
s_mov_b32 s75, 0x00020000
s_lshl_b32 s76, s2, 2
s_add_u32 s76, s76, s3
s_lshl_b32 s76, s76, 7
s_add_u32 s76, s76, {base_off}
v_mov_b32 v1, 0
""")
    for i in range(nst):
        p.I(f"v_mov_b32 v2, s{80+i}\nbuffer_store_dword v2, v1, s[72:75], s76 offen offset:{4*i}")
        p.I(f"v_mov_b32 v2, s{90+i}\nbuffer_store_dword v2, v1, s[72:75], s76 offen offset:{64+4*i}")

def txt(x): return x.text if isinstance(x, Ins) else x
def cost(x):
    mn = txt(x).split()[0]
    if mn.startswith('v_exp') or mn.startswith('v_rcp'): return 8
    if mn.startswith('ds_write'): return 8
    if mn.startswith('buffer_') or mn.startswith('global_'): return OPT['dcost']
    if mn.startswith('v_pk_'): return 8
    return 4
class Slots(dict):
    def put(self, g, x): self.setdefault(g, []).extend(x if isinstance(x, list) else [x])
def em(p, x):
    if isinstance(x, Ins): p.add(x)
    else: p.I(x)
def schedule(p, mfmas, fixed, streams=(), budget=None):
    streams = [list(s) for s in streams]
    for x in fixed.get(-1, []): em(p, x)
    for g, m in enumerate(mfmas):
        p.I(m)
        used = 0
        for f in fixed.get(g, []):
            em(p, f); used += cost(f)
        b = budget(g) if budget else OPT['bud']
        while True:
            c = [s for s in streams if s and s[0][1] <= g]
            if not c: break
            fs = [s for s in c if any(x[2] <= g for x in s[:200])]
            s = fs[0] if fs else min(c, key=lambda s: min(x[2] for x in s[:8]))
            if fs or used + cost(s[0][0]) <= b:
                op = s.pop(0)[0]; em(p, op); used += cost(op)
            else: break
    for s in streams:
        for op, _, _ in s: em(p, op)
    for g in fixed:
        assert g < len(mfmas), f"fixed slot {g} beyond region {len(mfmas)}: {fixed[g]}"

vK, vV0, vV1 = 240, 241, 242
vOK = [243, 244]; vOV = [245, 246]
vL = [247, 248, 249]
vX, vW0, vW1, vOX, vOW = 250, 251, 252, 253, 254
vSY = 255
S = [64, 112]; NEGM = [224, 160, 176]; QB = [192, 0, 32]
FR = 224
def fr(n): return FR + (n % 8) * 4
def qfrag(t, ksd): b = QB[t] + 4 * ksd; return f"v[{b}:{b+3}]"
def acc(t, dt): return (t * 4 + dt) * 16

def kv_addr_setup(lane, t0):
    a, b, c, d, e = [f"v{t0+i}" for i in range(5)]
    return f"""v_lshrrev_b32 {a}, 3, {lane}
v_and_b32 {b}, 7, {lane}
v_bfe_u32 {c}, {lane}, 4, 1
v_xor_b32 {d}, {b}, {c}
v_lshlrev_b32 {d}, 4, {d}
v_lshlrev_b32 {e}, 2, {c}
v_xor_b32 {e}, {b}, {e}
v_lshlrev_b32 {e}, 4, {e}
v_lshl_add_u32 {d}, {a}, 8, {d}
v_lshl_add_u32 {e}, {a}, 8, {e}
s_lshl_b32 s66, s3, 11
s_add_u32 s67, s66, 128
s_add_u32 s66, s66, 1024
v_add_u32 v{vOK[0]}, s66, {d}
v_add_u32 v{vOK[1]}, s67, {d}
v_add_u32 v{vOV[0]}, s66, {e}
v_add_u32 v{vOV[1]}, s67, {e}
s_lshr_b32 s66, s3, 1
s_lshl_b32 s66, s66, 11
v_bfe_u32 {a}, {lane}, 3, 2
v_mul_u32_u24 {a}, {KRG}, {a}
v_lshl_add_u32 {a}, {b}, 7, {a}
v_lshrrev_b32 {c}, 5, {lane}
v_bfe_u32 {d}, {lane}, 1, 1
v_xor_b32 {d}, {c}, {d}
v_lshl_add_u32 {a}, {d}, 4, {a}
v_add_u32 v{vK}, s66, {a}
v_bfe_u32 {a}, {lane}, 2, 2
v_lshlrev_b32 {a}, 7, {a}
v_lshl_add_u32 {a}, {c}, 9, {a}
v_bfe_u32 {d}, {lane}, 3, 1
v_lshl_add_u32 {a}, {d}, 6, {a}
v_bfe_u32 {d}, {lane}, 4, 1
v_lshl_add_u32 {a}, {d}, 5, {a}
v_and_b32 {d}, 3, {lane}
v_lshl_add_u32 {a}, {d}, 3, {a}
v_add_u32 v{vV0}, s66, {a}
v_xor_b32 v{vV1}, 64, v{vV0}
s_mul_i32 s61, s3, {KRG}
s_lshl_b32 s62, s3, 12""".split('\n')

def kv_tile(kind, n, dst, soff=None, tag=True):
    pre = [f"s_add_u32 m0, s{61 if kind == 'K' else 62}, {dst}"]
    if soff is None:
        pre.append(f"s_mov_b32 s59, {n*8192}"); soff = "s59"
    dm = []
    for hd in range(2):
        for half in range(2):
            sr = (28 if kind == 'K' else 36) + 4 * hd
            v = (vOK if kind == 'K' else vOV)[half]
            dm.append(Ins(f"buffer_load_dwordx4 v{v}, s[{sr}:{sr+3}], {soff} offen offset:{hd*2048+half*1024} nt lds", lw=[f"{kind}{n}"] if tag else []))
    return pre, dm
def k_read(ks, off): b = fr(ks); return f"ds_read_b128 a[{b}:{b+3}], v{vK} offset:{off + (ks>>2)*1024 + (ks&3)*32}"
def v_read(j, sec, off):
    ks, dt = j >> 2, j & 3
    b = fr(8 + j) + 2 * sec
    return f"ds_read_b64_tr_b16 a[{b}:{b+1}], v{vV1 if dt & 1 else vV0} offset:{off + (2*ks + sec)*4096 + (dt>>1)*1024}"
def s_mfma(buf, t, ks, czero=False):
    d = f"v[{buf+t*16}:{buf+t*16+15}]"
    c = d if ks else ("0" if czero else f"v[{NEGM[t]}:{NEGM[t]+15}]")
    return f"v_mfma_f32_32x32x16_bf16 {d}, a[{fr(ks)}:{fr(ks)+3}], {qfrag(t, ks)}, {c}"
def pv_mfma(buf, j, t, czero=False):
    ks, dt = j >> 2, j & 3
    o = (dt * 3 + t) * 16
    b = buf + t * 16 + 8 * ks
    c = "0" if (czero and ks == 0) else f"a[{o}:{o+15}]"
    return f"v_mfma_f32_32x32x16_bf16 a[{o}:{o+15}], a[{fr(8+j)}:{fr(8+j)+3}], v[{b}:{b+3}], {c}"
def ereg(buf, e):
    h, t, j = e // 24, (e % 24) // 8, e % 8
    return buf + t * 16 + 8 * h + j, t
def sm_ops(buf, e):
    out = []
    if e < 48:
        r, t = ereg(buf, e); out.append(f"v_exp_f32 v{r}, v{r}")
    if 1 <= e <= 48:
        r, t = ereg(buf, e - 1); out.append(f"v_add_f32 v{vL[t]}, v{vL[t]}, v{r}")
    if e >= 2 and e % 2 == 0 and e <= 48:
        r, t = ereg(buf, e - 2); base = r - ((e - 2) % 8)
        out.append(f"v_cvt_pk_bf16_f32 v{base + ((e-2) % 8)//2}, v{r}, v{r+1}")
    return out

rOW = [250, 251]; rLn = 252
rA = [240, 241]
RC = [224, 226, 228]
WSL = [KS[1], KS[2], KS[3], VS[0], KS[4], VS[1], KS[0], VS[2], VS[3]]
NSL = len(WSL)
def step_of(sig): return (0, sig) if sig < 4 else (1 + (sig - 4) % 3, (sig - 4) // 3)
def wo_setup():
    a, b, c = "v253", "v254", f"v{rOW[1]}"
    out = f"""v_mbcnt_lo_u32_b32 v{rLn}, -1, 0
v_mbcnt_hi_u32_b32 v{rLn}, -1, v{rLn}
s_and_b32 s71, s49, 3
s_andn2_b32 s70, s49, 3
s_lshl_b32 s67, s71, 8
s_lshl_b32 s68, s3, 13
s_add_u32 s69, s68, {0x20000 - 2048}
v_lshrrev_b32 {a}, 3, v{rLn}
v_and_b32 {b}, 7, v{rLn}
v_bfe_u32 {c}, v{rLn}, 4, 1
v_lshlrev_b32 {c}, 2, {c}
v_xor_b32 {b}, {b}, {c}
v_lshlrev_b32 {b}, 4, {b}
v_lshl_add_u32 {b}, {a}, 10, {b}
v_add_u32 v{rOW[0]}, s68, {b}
v_add_u32 v{rOW[1]}, s69, {b}""".split('\n')
    for rho in range(4):
        out += [f"s_add_u32 s69, s71, {rho}", "s_and_b32 s69, s69, 3", "s_add_u32 s69, s69, s70", f"s_lshl_b32 s{WOB[rho]}, s69, 18", f"s_add_u32 s{WOB[rho]}, s{WOB[rho]}, s67"]
    return out
WOB = [50, 56, 57, 58]
def wo_tile(sig):
    rho, dq = step_of(sig)
    dst = WSL[sig % NSL]
    out = []
    for hd in range(2):
        for pos in range(2):
            half = pos ^ hd
            d = dq * 32768 + half * 128 - pos * 1024 + 1024
            pre = [f"s_add_u32 s59, s{WOB[rho]}, {d}"]
            if hd == 0 and pos == 0: pre = [f"s_add_u32 m0, s62, {dst}"] + pre
            out.append((pre, Ins(f"buffer_load_dwordx4 v{rOW[hd]}, s[8:11], s59 offen offset:{hd*2048+pos*1024} lds", lw=[f"W{sig}"])))
    return out
def fin_ops():
    T = [232, 233, 234]
    fin = []
    for t in range(3): fin.append(f"v_mov_b32 v{T[t]}, v{vL[t]}")
    for t in range(3): fin.append(f"v_permlane32_swap_b32 v{T[t]}, v{vL[t]}")
    for t in range(3): fin.append(f"v_add_f32 v{vL[t]}, v{vL[t]}, v{T[t]}")
    for t in range(3): fin.append(f"v_rcp_f32 v{RC[t]}, v{vL[t]}")
    for t in range(3): fin.append(f"v_mov_b32 v{RC[t]+1}, v{RC[t]}")
    return fin
NWPRE = OPT.get('nwpre', 6)

def gen_k1():
    p = Prog(); I = p.I
    vM = [vX, vW0, vW1]; vT = [vOX, vOW, vOX]
    I("s_cmp_ge_u32 s2, 256\ns_cbranch_scc1 L1_end")
    stamp(p, 0)
    I("s_load_dwordx16 s[4:19], s[0:1], 0")
    I(f"""
v_lshrrev_b32 v1, 6, v0
v_min_u32 v{vSY}, 1, v0
v_lshlrev_b32 v{vSY}, 31, v{vSY}
v_and_b32 v0, 63, v0
v_readfirstlane_b32 s3, v1
s_and_b32 s66, s2, 7
s_lshr_b32 s67, s2, 3
s_and_b32 s48, s66, 1
s_lshl_b32 s48, s48, 3
s_lshr_b32 s68, s67, 2
s_add_u32 s48, s48, s68
s_lshr_b32 s49, s66, 1
s_lshl_b32 s49, s49, 2
s_and_b32 s69, s67, 3
s_add_u32 s49, s49, s69
s_lshl_b32 s65, s66, 3
s_add_u32 s65, s65, s68
s_mul_i32 s52, s69, {OPT['rh']}
s_mul_i32 s68, s68, {OPT['rb']}
s_add_u32 s52, s52, s68
s_and_b32 s52, s52, {OPT['rmask']}
v_lshrrev_b32 v2, 3, v0
v_and_b32 v3, 7, v0
v_bfe_u32 v4, v0, 4, 1
v_xor_b32 v5, v3, v4
v_lshlrev_b32 v5, 4, v5
v_lshlrev_b32 v6, 2, v4
v_xor_b32 v6, v3, v6
v_lshlrev_b32 v6, 4, v6
v_lshl_add_u32 v{vOX}, v2, 10, v5
v_lshl_add_u32 v{vOW}, v2, 13, v6
s_mul_i32 s50, s48, {192*1024}
s_mul_i32 s66, s3, {48*1024}
s_add_u32 s50, s50, s66
s_lshl_b32 s51, s49, 9
s_lshl_b32 s66, s3, 7
s_add_u32 s51, s51, s66
s_mul_i32 s57, s3, {6*XBLK}
s_lshl_b32 s58, s3, 10
s_waitcnt lgkmcnt(0)
""")
    srd(p, 20, 4, 5, 16 * 192 * 1024 * OPT['xw'])
    srd(p, 24, 10, 11, 512 * 8192 * OPT['xw'])
    def stage_dma(st):
        buf = BUFA + (st & 1) * BUFSZ
        pre0 = ["s_lshl_b32 s54, s52, 7", "s_add_u32 s54, s54, s50", "s_lshl_b32 s55, s52, 19", "s_add_u32 s55, s55, s51",
                "s_add_u32 s52, s52, 1", "s_and_b32 s52, s52, 7"]
        out = []
        for j in range(6):
            out.append(([f"s_add_u32 m0, s57, {buf + j*XBLK}", f"s_add_u32 s56, s54, {j*8192}"],
                        Ins(f"buffer_load_dwordx4 v{vOX}, s[20:23], s56 offen lds", lw=[f"Q{st}"])))
        for rg in range(8):
            out.append(([f"s_add_u32 m0, s58, {buf + XSZ + rg*4096}", f"s_add_u32 s56, s55, {rg*65536}"],
                        Ins(f"buffer_load_dwordx4 v{vOW}, s[24:27], s56 offen lds", lw=[f"Q{st}"])))
        out[0] = (pre0 + out[0][0], out[0][1])
        return out
    def emit_vm(lst):
        for pre, x in lst:
            for y in pre: I(y)
            em(p, x)
    def touch(st_ahead):
        if not OPT['la']: return []
        return [([f"s_add_u32 s66, s52, {st_ahead}", "s_and_b32 s66, s66, 7", "s_lshl_b32 s67, s66, 7", "s_lshl_b32 s66, s66, 19"],
                 f"buffer_load_dword a{TCH[0] % 8 + 98}, v228, s[20:23], s67 offen"),
                ([], f"buffer_load_dword a{(TCH[0] + 1) % 8 + 98}, v229, s[24:27], s66 offen")] + [TCH.__setitem__(0, TCH[0] + 2)][:0]
    TCH = [0]
    if OPT['la']:
        I(f"""
v_min_u32 v228, 11, v0
v_lshlrev_b32 v228, 10, v228
s_mul_i32 s66, s48, {192*1024}
s_and_b32 s67, s49, 3
s_mul_i32 s67, s67, {48*1024}
s_add_u32 s66, s66, s67
s_mul_i32 s67, s3, {12*1024}
s_add_u32 s66, s66, s67
v_add_u32 v228, s66, v228
v_bfe_u32 v229, v0, 2, 1
v_lshlrev_b32 v229, 13, v229
v_and_b32 v7, 3, v0
v_lshl_add_u32 v229, v7, 7, v229
s_and_b32 s66, s48, 7
s_lshl_b32 s66, s66, 2
s_add_u32 s66, s66, s3
s_lshl_b32 s66, s66, 14
s_lshl_b32 s67, s49, 9
s_add_u32 s66, s66, s67
v_add_u32 v229, s66, v229
""")
        for a_ in range(1, OPT['la'] + 1): emit_vm(touch(a_))
    emit_vm(stage_dma(0))
    if OPT['ctouch']:
        I(f"""
s_getpc_b64 s[68:69]
L1_pc:
s_lshr_b32 s66, s2, 3
s_lshl_b32 s66, s66, 2
s_add_u32 s66, s66, s3
s_lshl_b32 s66, s66, 9
s_min_u32 s66, s66, L1_code_end-L1_pc-512
s_add_u32 s68, s68, s66
s_addc_u32 s69, s69, 0
v_lshlrev_b32 v7, 3, v0
global_load_dword a255, v7, s[68:69]
""")
    for x in kv_addr_setup("v0", 2): I(x)
    ksz = (131072 + 3072) * OPT['kvsz']
    I(f"""
s_lshl_b32 s66, s48, 5
s_lshl_b32 s67, s49, 1
s_add_u32 s66, s66, s67
s_lshl_b32 s66, s66, 17
s_add_u32 s28, s6, s66
s_addc_u32 s29, s7, 0
s_sub_u32 s28, s28, 1024
s_subb_u32 s29, s29, 0
s_and_b32 s29, s29, 0xffff
s_add_u32 s32, s28, {0x20000 - 2048}
s_addc_u32 s33, s29, 0
s_add_u32 s36, s8, s66
s_addc_u32 s37, s9, 0
s_sub_u32 s36, s36, 1024
s_subb_u32 s37, s37, 0
s_and_b32 s37, s37, 0xffff
s_add_u32 s40, s36, {0x20000 - 2048}
s_addc_u32 s41, s37, 0
s_mov_b32 s30, {(131072 + 1024) * OPT['kvsz']}
s_mov_b32 s34, {ksz}
s_mov_b32 s38, {(131072 + 1024) * OPT['kvsz']}
s_mov_b32 s42, {ksz}
s_mov_b32 s31, 0x00020000
s_mov_b32 s35, 0x00020000
s_mov_b32 s39, 0x00020000
s_mov_b32 s43, 0x00020000
s_add_u32 s44, s18, {O_WS_OFF}
s_addc_u32 s45, s19, 0
s_and_b32 s45, s45, 0xffff
s_mov_b32 s46, {P_WS_OFF - O_WS_OFF + P_BYTES}
s_mov_b32 s47, 0x00020000
s_mov_b32 s72, s16
s_and_b32 s73, s17, 0xffff
s_mov_b32 s74, 256
s_mov_b32 s75, 0x00020000
s_mov_b32 s64, {f2u(SCALE):#x}
s_add_u32 s4, s18, {FLAG_OFF}
s_addc_u32 s5, s19, 0
s_and_b32 s5, s5, 0xffff
s_mov_b32 s6, 8192
s_mov_b32 s7, 0x00020000
s_lshl_b32 s53, s65, 7
s_lshl_b32 s65, s65, 2
s_sub_u32 s8, s12, 1024
s_subb_u32 s9, s13, 0
s_and_b32 s9, s9, 0xffff
s_mov_b32 s10, {4096*1024+1024}
s_mov_b32 s11, 0x00020000
s_lshr_b32 s63, s49, 2
s_lshl_b32 s63, s63, 5
s_lshr_b32 s66, s2, 3
s_add_u32 s63, s63, s66
s_lshl_b32 s63, s63, 2
s_add_u32 s63, s63, s3
s_lshl_b32 s63, s63, 13
s_lshr_b32 s66, s3, 1
s_and_b32 s67, s3, 1
v_bfe_u32 v3, v0, 3, 2
v_mul_u32_u24 v3, {XBLK}, v3
v_and_b32 v4, 7, v0
v_lshl_add_u32 v3, v4, 7, v3
v_lshrrev_b32 v4, 5, v0
v_bfe_u32 v5, v0, 1, 1
v_xor_b32 v5, v4, v5
v_lshl_add_u32 v3, v5, 4, v3
s_mul_i32 s68, s67, {12*XBLK}
s_add_u32 s68, s68, {BUFA}
v_add_u32 v{vX}, s68, v3
v_bfe_u32 v2, v0, 2, 2
v_lshlrev_b32 v2, 7, v2
v_bfe_u32 v3, v0, 3, 1
v_lshl_add_u32 v2, v3, 6, v2
v_bfe_u32 v3, v0, 4, 1
v_lshl_add_u32 v2, v3, 5, v2
v_and_b32 v3, 1, v0
v_lshl_add_u32 v2, v3, 4, v2
v_bfe_u32 v3, v0, 1, 1
v_lshl_add_u32 v2, v3, 3, v2
v_lshl_add_u32 v2, v4, 12, v2
s_lshl_b32 s68, s66, 11
s_add_u32 s68, s68, {BUFA + XSZ}
v_add_u32 v{vW0}, s68, v2
v_xor_b32 v{vW1}, 64, v{vW0}
""")
    for r in vL: I(f"v_mov_b32 v{r}, 0")
    if OPT['tlb']:
        I(f"""
s_mul_i32 s66, s48, {2*786432}
s_lshr_b32 s67, s49, 2
s_mul_i32 s68, s67, {8*24576}
s_add_u32 s66, s66, s68
s_lshl_b32 s67, s67, 4
s_add_u32 s67, s67, s48
s_mul_i32 s67, s67, {6*32768}
s_add_u32 s67, s67, {P_WS_OFF - O_WS_OFF}
s_add_u32 s68, s66, 786432
s_add_u32 s69, s67, {6*32768 - 4}
buffer_load_dword a186, v{vSY}, s[28:31], 0 offen offset:1024
buffer_load_dword a187, v{vSY}, s[36:39], 0 offen offset:1024
buffer_load_dword a188, v{vSY}, s[8:11], s63 offen offset:1024
buffer_load_dword a189, v{vSY}, s[44:47], s66 offen
buffer_load_dword a190, v{vSY}, s[44:47], s68 offen
buffer_load_dword a191, v{vSY}, s[44:47], s67 offen
buffer_load_dword a106, v{vSY}, s[44:47], s69 offen
buffer_load_dword a107, v{vSY}, s[4:7], s53 offen
buffer_load_dword a108, v{vSY}, s[72:75], s65 offen
""")
    st1 = stage_dma(1)
    emit_vm(st1[:OPT['pre1']])
    PFT = [('K', 1, 0), ('V', 1, 16), ('K', 2, 32), ('V', 2, 48), ('K', 3, 64), ('V', 3, 80)]
    def pf_load(kind, n, base):
        out = []
        for hd in range(2):
            for half in range(2):
                r = base + 4 * (hd * 2 + half)
                sr = (28 if kind == 'K' else 36) + 4 * hd
                v = (vOK if kind == 'K' else vOV)[half]
                out.append(([f"s_mov_b32 s60, {n*8192}"] if hd + half == 0 else [],
                            f"buffer_load_dwordx4 a[{r}:{r+3}], v{v}, s[{sr}:{sr+3}], s60 offen offset:{hd*2048+half*1024} nt"))
        return out
    def pf_write(kind, base, areg, off):
        return [f"ds_write_b128 v{areg}, a[{base+4*i}:{base+4*i+3}] offset:{off + i*1024}" for i in range(4)]
    def tile_vm(kind, n, dst):
        pre, dm = kv_tile(kind, n, dst)
        return [(pre if i == 0 else [], d) for i, d in enumerate(dm)]
    NA, NB = 112, 144
    def a_read(ks, dt, sec, dst): return f"ds_read_b64_tr_b16 a[{dst+2*sec}:{dst+2*sec+1}], v{vW1 if dt & 1 else vW0} offset:{ks*8192 + (dt>>1)*1024 + sec*512}"
    def b_read(ks, t, dst): return f"ds_read_b128 a[{dst}:{dst+3}], v{vX} offset:{t*4*XBLK + ks*32}"
    def qp_reads(ks):
        par = ks & 1
        A = [a_read(ks, dt, sec, NA + 16 * par + 4 * dt) for dt in range(4) for sec in range(2)]
        B = [b_read(ks, t, NB + 12 * par + 4 * t) for t in range(3)]
        return A[:2] + B + A[2:]
    def qp_mfmas(first):
        ms = []
        for ks in range(4):
            par = ks & 1
            for dt in range(4):
                for t in range(3):
                    d = f"v[{acc(t,dt)}:{acc(t,dt)+15}]"
                    a = NA + 16 * par + 4 * dt; b = NB + 12 * par + 4 * t
                    ms.append(f"v_mfma_f32_32x32x16_bf16 {d}, a[{a}:{a+3}], a[{b}:{b+3}], {'0' if first and ks == 0 else d}")
        return ms
    A7 = [112, 168, 128, 144]; B7 = [192, 208, 192]
    def put_vm(sl, gaps, lst):
        for g, (pre, x) in zip(gaps, lst):
            sl.put(g - 1, list(pre))
            sl.setdefault(g, []).insert(0, x)
        assert len(gaps) >= len(lst), (len(gaps), len(lst))
    def qp_stage(s, carry):
        sl = Slots()
        def put_reads(g0, rs):
            for i, r in enumerate(rs): sl.put(g0 + 2 * (i // 2), r)
        for ks in range(3): put_reads(ks * 12, qp_reads(ks + 1))
        put_vm(sl, list(range(1, 35, 2)), carry)
        d = BUFSZ if s % 2 == 0 else -BUFSZ
        op = (lambda r: f"v_add_u32 v{r}, {d}, v{r}") if d > 0 else (lambda r: f"v_subrev_u32 v{r}, {-d}, v{r}")
        sl.put(35, [op(vX), op(vW0), op(vW1), "s_waitcnt lgkmcnt(0)", Ins("s_barrier", lr=[f"Q{s+1}"] + (["K0", "V0"] if s == 6 else []))])
        left = []
        if s == 6:
            sl.put(27, ["s_mov_b32 s12, 1", "v_readfirstlane_b32 s14, v224", "v_readfirstlane_b32 s15, v225", "v_readfirstlane_b32 s16, v226", "v_readfirstlane_b32 s17, v227"])
            for i_, r_ in enumerate((14, 15, 16, 17)):
                sl.put(28 + i_, [f"s_min_u32 s13, s{r_}, 31", "s_bitset1_b32 s12, s13", f"s_sub_u32 s{r_}, s{r_}, 8", f"s_min_u32 s13, s{r_}, 31", "s_bitset1_b32 s12, s13"])
            sl.put(33, ["s_ff0_i32_b32 s12, s12"])
        if s < 6:
            put_reads(36, qp_reads(0))
            post = stage_dma(s + 2)
            put_vm(sl, list(range(37, 48, 2)), post[:6])
            left = post[6:]
        else:
            rs = [a_read(0, dt, sec, A7[0] + 4 * dt) for dt in range(4) for sec in range(2)]
            rs = rs[:2] + [b_read(0, 0, B7[0])] + rs[2:] + [a_read(1, dt, sec, A7[1] + 4 * dt) for dt in range(4) for sec in range(2)] + [b_read(ks, 0, B7[0] + 4 * ks) for ks in (1, 2, 3)]
            for i, r in enumerate(rs): sl.put(36 + (i * 12) // len(rs), r)
        schedule(p, qp_mfmas(s == 0), sl)
        return left
    p.add(Ins("s_barrier", lr=["Q0"]))
    stamp(p, 2)
    for r in qp_reads(0): I(r)
    PFL = []
    for t_ in PFT + ([('K', 4, 96)] if OPT['xreg'] >= 2 else []): PFL += pf_load(*t_)
    def la(s): return touch(OPT['la'] - 1) if (OPT['la'] and s + 1 + OPT['la'] < 8) else []
    carry = qp_stage(0, st1[OPT['pre1']:] + la(0) + tile_vm('K', 0, KS[0]) + tile_vm('V', 0, VS[0]))
    stamp(p, 3)
    for s in range(1, 7):
        ex = [([], f"buffer_load_dwordx4 v[224:227], v{vSY}, s[4:7], s53 offen sc1")] if s == 4 else []
        pfl = PFL[(s - 1) * len(PFL) // 6: s * len(PFL) // 6]
        carry = qp_stage(s, carry + la(s) + pfl + ex)
    stamp(p, 4)
    ms = []
    for t in range(3):
        for ks in range(4):
            for dt in range(4):
                d = f"v[{acc(t,dt)}:{acc(t,dt)+15}]"
                a = A7[ks] + 4 * dt; b = B7[t] + 4 * ks
                ms.append(f"v_mfma_f32_32x32x16_bf16 {d}, a[{a}:{a+3}], a[{b}:{b+3}], {d}")
    ms += [s_mfma(S[0], t, ks, True) for t in range(3) for ks in range(8)]
    I0 = 72
    def IT(i, g=0): return I0 + 48 * i + g
    ms += [s_mfma(S[1], t, ks) for t in range(3) for ks in range(8)]
    ms += [pv_mfma(S[0], j, t, True) for j in range(8) for t in range(3)]
    for i in range(1, 15):
        ms += [s_mfma(S[(i + 1) & 1], t, ks) for ks in range(8) for t in range(3)]
        ms += [pv_mfma(S[i & 1], j, t) for j in range(8) for t in range(3)]
    TL = IT(15)
    ms += [pv_mfma(S[1], j, t) for j in range(8) for t in range(3)]
    sl = Slots()
    rs = [a_read(ks, dt, sec, A7[ks] + 4 * dt) for ks in (2, 3) for dt in range(4) for sec in range(2)]
    for i, r in enumerate(rs): sl.put(i // 2, r)
    for ks in range(4): sl.put(8 + ks, b_read(ks, 1, B7[1] + 4 * ks))
    for ks in range(4): sl.put(17 + ks, b_read(ks, 2, B7[2] + 4 * ks))
    sl.put(-1, [f"v_mbcnt_lo_u32_b32 v{vOX}, -1, 0", f"v_mbcnt_hi_u32_b32 v{vOX}, -1, v{vOX}", f"v_lshlrev_b32 v{vOX}, 4, v{vOX}",
                f"v_add_u32 v{vOW}, s62, v{vOX}", f"v_add_u32 v{vOX}, s61, v{vOX}"])
    w1 = pf_write('K', 0, vOX, KS[1]) + pf_write('V', 16, vOW, VS[1])
    WS2 = OPT['ws2']
    for i, x in enumerate(w1): sl.put(WS2 * i, x)
    sl.put(WS2 * 8 - 1, [f"v_add_u32 v{vOX}, {WIN}, v{vOX}", f"v_add_u32 v{vOW}, {WIN}, v{vOW}"])
    w2 = pf_write('K', 32, vOX, KS[2] - WIN) + pf_write('V', 48, vOW, VS[2] - WIN)
    for i, x in enumerate(w2): sl.put(WS2 * (8 + i), x)
    sl.put(25, ["s_waitcnt lgkmcnt(1)", "s_barrier"])
    w3 = pf_write('K', 64, vOX, KS[3] - WIN) + pf_write('V', 80, vOW, VS[3] - WIN)
    for i, x in enumerate(w3): sl.put(max(WS2 * 16, 26) + 2 * i, x)
    for ks in range(8): sl.put(33 + 2 * ks, k_read(ks, KS[0]))
    sl.put(52, ["s_waitcnt lgkmcnt(0)", "s_barrier"])
    for ks in range(8): sl.put(65 + ks, k_read(ks, KS[1]))
    kwin = 0; vwin = 0
    def win_move(regs, d): return [(f"v_add_u32 v{r}, {d}, v{r}" if d > 0 else f"v_subrev_u32 v{r}, {-d}, v{r}") for r in regs]
    for i in range(0, 16):
        va = VS[i % 4]; w = (va // WIN) * WIN
        if w != vwin:
            sl.put(IT(i, 10) if i < 15 else IT(14, 41), win_move([vV0, vV1], w - vwin)); vwin = w
        for j in range(8):
            if i == 0: g0 = max(89 + j, IT(0, 15 + 3 * j)); g1 = g0 + (0 if j < 2 else 1)
            elif i < 15: g0 = IT(i, 15 + 3 * j); g1 = g0 + 1
            else: g0 = max(IT(14, 42 + 2 * j), TL + 3 * j - 9); g1 = g0 + 1
            sl.put(g0, v_read(j, 0, va - vwin)); sl.put(g1, v_read(j, 1, va - vwin))
        if i == 15: break
        need = [f"V{i+1}"] + ([f"K{i+2}"] if i + 2 < 16 else [])
        sl.put(IT(i, 40), ["s_waitcnt lgkmcnt(0)", Ins("s_barrier", lr=need)])
        n = i + 2
        if n < 16:
            ka = KS[n % 5]; w = (ka // WIN) * WIN
            if w != kwin:
                sl.put(IT(i, 38), win_move([vK], w - kwin)); kwin = w
            for ks, g in enumerate([IT(i, 42), IT(i, 44), IT(i, 46), IT(i + 1, 1), IT(i + 1, 4), IT(i + 1, 7), IT(i + 1, 10), IT(i + 1, 13)]):
                sl.put(g, k_read(ks, ka - kwin))
    XR = OPT['xreg']
    tiles = []
    def add_tile(kind, n, ear):
        dst = KS[n % 5] if kind == 'K' else VS[n % 4]
        tiles.append((IT(n - 2, 40) if kind == 'K' else IT(n - 1, 40) - 1, ear, tile_vm(kind, n, dst)))
    if XR < 2: add_tile('K', 4, 27)
    add_tile('K', 5, 54)
    for n in range(6, 16): add_tile('K', n, IT(n - 6, 42))
    for n in range(4 + min(XR, 2), 16): add_tile('V', n, IT(n - 4, 42))
    if XR:
        tiles.append((IT(2, 40), 49, pf_load('V', 4, 192)))
        sl.put(IT(2, 14), [f"v_mbcnt_lo_u32_b32 v{vOW}, -1, 0", f"v_mbcnt_hi_u32_b32 v{vOW}, -1, v{vOW}"])
        sl.put(IT(2, 16), [f"v_lshlrev_b32 v{vOW}, 4, v{vOW}", f"v_add_u32 v{vOW}, s62, v{vOW}"])
        for i, x in enumerate(pf_write('V', 192, vOW, VS[0])): sl.put(IT(2, 18) + 2 * i, x)
    if XR >= 2:
        tiles.append((IT(2, 39), 33, pf_load('V', 5, 208)))
        for i, x in enumerate(pf_write('V', 208, vOW, VS[1])): sl.put(IT(3, 18) + 2 * i, x)
        sl.put(47, [f"v_add_u32 v{vOX}, {WIN}, v{vOX}"])
        for i, x in enumerate(pf_write('K', 96, vOX, KS[4] - 2 * WIN)): sl.put(48 + i, x)
    g_first, g_last = OPT['dfirst'], I0 + OPT['dlast']
    nops = sum(len(t[2]) for t in tiles)
    gaps = []; vm = []; g = g_first - 2.0
    while tiles:
        step = max(2.0, (g_last - g) / (nops - len(gaps)))
        av = [t for t in tiles if t[1] <= g + step]
        t = min(av, key=lambda t: t[0]) if av else min(tiles, key=lambda t: t[1])
        tiles.remove(t)
        for pre, d in t[2]:
            step = max(2.0, (g_last - g) / (nops - len(gaps)))
            g = max(g + step, t[1])
            gi = int(round(g))
            while gi in gaps or (gi - 1) in gaps or any(txt(x).startswith('s_barrier') for x in sl.get(gi, [])): gi += 1
            gaps.append(gi); g = max(g, gi); vm.append((pre, d, t[1]))
        assert gaps[-1] + OPT['kmar'] <= t[0], (txt(t[2][0][1]), gaps[-1], t[0])
    put_vm(sl, gaps, [(a, b) for a, b, _ in vm])
    if OPT.get('verbose'):
        last = {}
        for gi, (pre, d, ear) in zip(gaps, vm):
            if isinstance(d, Ins): last[d.lw[0]] = gi
        for k_, gi in last.items():
            n = int(k_[1:]); nb = IT(n - 2, 40) if k_[0] == 'K' else IT(n - 1, 40)
            sys.stderr.write(f"{k_}: last issue {gi} (iter {(gi-I0)/48:.2f}) margin {nb-gi}\n")
    used_vm = set(gaps)
    def free_gap(g):
        while g in used_vm or (g - 1) in used_vm or (g + 1) in used_vm: g += 1
        used_vm.add(g); return g
    sl.put(-1, ["v_mbcnt_lo_u32_b32 v237, -1, 0", "v_mbcnt_hi_u32_b32 v237, -1, v237", "v_lshlrev_b32 v237, 7, v237"])
    sl.put(free_gap(12), "buffer_load_dword a184, v237, s[8:11], s63 offen offset:1024")
    sl.put(free_gap(14), "buffer_load_dword a185, v237, s[8:11], s63 offen offset:1088")
    if XR < 2:
        sl.put(32, ["v_accvgpr_write_b32 a208, s12", "v_accvgpr_write_b32 a209, 0"])
        sl.put(free_gap(34), f"buffer_atomic_cmpswap a[208:209], v{vSY}, s[72:75], s65 offen sc0 sc1")
        sl.put(IT(8, 6), [f"v_accvgpr_read_b32 v{vX}, a208"])
        sl.put(IT(8, 8), [f"v_readfirstlane_b32 s13, v{vX}"])
        sl.put(IT(8, 10), ["s_cmp_eq_u32 s13, 0", "s_cselect_b32 s13, s12, s13"])
    else:
        sl.put(14, ["v_mov_b32 v238, s12", "v_mov_b32 v239, 0"])
        sl.put(free_gap(16), f"buffer_atomic_cmpswap v[238:239], v{vSY}, s[72:75], s65 offen sc1")
        sl.put(free_gap(IT(4, 20)), f"buffer_load_dword v{vX}, v{vSY}, s[72:75], s65 offen sc1")
        sl.put(IT(8, 8), [f"v_readfirstlane_b32 s13, v{vX}"])
    for i, x in enumerate(wo_setup()): sl.put(IT(9, 2) + i, x)
    wear = [IT(10, 42), IT(11, 42), IT(12, 42), IT(12, 42), IT(13, 42), IT(13, 42)]
    g = max(max(gaps) + 2, IT(13, 10))
    wg_, wl_ = [], []
    for sig in range(NWPRE):
        for pre, d in wo_tile(sig):
            g = free_gap(max(g, wear[sig]))
            while any(txt(x).startswith('s_barrier') for x in sl.get(g, [])): g = free_gap(g + 1)
            wg_.append(g); wl_.append((pre, d)); g += OPT.get('wps', 3)
    put_vm(sl, wg_, wl_)
    conv = []
    for t in range(3):
        for dt in range(4):
            a = acc(t, dt)
            ear = 16 * t + 12 + dt + 3
            for k2 in range(2):
                dl = 48 + 8 * t + 2 * dt + k2 - 2
                if t == 1 and dt < 3: dl = min(dl, 48 + 8 * dt - 2)
                for pr in range(4):
                    r = a + 8 * k2 + 2 * pr
                    conv.append((f"v_mul_f32 v{r}, s64, v{r}", ear, dl))
                    conv.append((f"v_mul_f32 v{r+1}, s64, v{r+1}", ear, dl))
                for pr in range(4):
                    r = a + 8 * k2 + 2 * pr
                    conv.append((f"v_cvt_pk_bf16_f32 v{QB[t] + 4*(2*dt+k2) + pr}, v{r}, v{r+1}", ear, dl))
    mx = []
    for t in range(3):
        b = S[0] + t * 16
        ear0 = 48 + 8 * t + 7 + 3
        ear = ear0 if t == 0 else max(ear0, 71)
        dl = 72 + 8 * t - 2
        ops = [f"v_max3_f32 v{vM[t]}, v{b}, v{b+1}, v{b+2}"]
        ops += [f"v_max3_f32 v{vM[t]}, v{vM[t]}, v{b+r}, v{b+r+1}" for r in range(3, 15, 2)]
        ops += [f"v_max_f32 v{vM[t]}, v{vM[t]}, v{b+15}", f"v_mov_b32 v{vT[t]}, v{vM[t]}", "s_nop 1", f"v_permlane32_swap_b32 v{vT[t]}, v{vM[t]}",
                f"v_max_f32 v{vM[t]}, v{vM[t]}, v{vT[t]}"]
        mx += [(o, ear0, dl) for o in ops]
        mx += [(f"v_sub_f32 v{NEGM[t]+r}, 0, v{vM[t]}", ear, dl) for r in range(16)]
    sm = []
    for n in range(16):
        buf = S[n & 1]
        pv0 = IT(n, 24) if n < 15 else TL
        def dl_of(e): return pv0 + (0 if e < 24 else 12) + (e % 24) // 8 - 2
        for e in range(49):
            t = (min(e, 47) % 24) // 8
            if n == 0: ear = 72 + 8 * t - 1
            elif n == 1: ear = IT(0, 8 * t + 7 + 4)
            else: ear = IT(n - 1, 21 + t + 4)
            if n == 0 and e < 48:
                r, t = ereg(buf, e)
                sm.append((f"v_sub_f32 v{r}, v{r}, v{vM[t]}", ear, dl_of(e) - 1))
            for o in sm_ops(buf, e):
                sm.append((o, ear, dl_of(e) - 1 if o.startswith('v_exp') else dl_of(e - 1)))
    fin = fin_ops()
    vote = [f"s_mov_b32 s66, {f2u(OPT['thr']):#x}",
            f"v_max3_f32 v232, v{vL[0]}, v{vL[1]}, v{vL[2]}", f"v_add_f32 v233, v{vL[0]}, v{vL[1]}", f"v_add_f32 v233, v233, v{vL[2]}",
            f"v_cmp_nge_f32 vcc, s66, v233", f"v_mov_b32 v234, {SPARE}", "s_lshl_b32 s67, s3, 2", "s_cmp_lg_u64 vcc, 0\ns_cselect_b32 s66, 1, 0",
            "v_add_u32 v235, s67, v234", "v_mov_b32 v236, s66", "ds_write_b32 v235, v236"]
    vote = [x for x in vote if 'max3' not in x]
    sm += [(o, TL + 10, TL + 17) for o in fin[:9] + vote]
    sl.put(TL + 19, ["s_waitcnt lgkmcnt(0)", Ins("s_barrier", lr=[f"W{i}" for i in range(4)]), "ds_read_b128 v[236:239], v234"])
    sm += [(o, TL + 18, TL + 22) for o in fin[9:]]
    if OPT['stamp']:
        sl.put(IT(1, 0) - 1, stamp_ops(5)); sl.put(TL - 1, stamp_ops(6))
    def bud(g):
        if g < IT(1): return OPT['tbud']
        return OPT['bud'] - (4 if (g - I0) % 3 == 2 else 0)
    schedule(p, ms, sl, [conv, mx, sm], budget=bud)
    I("""
v_or3_b32 v236, v236, v237, v238
v_or_b32 v236, v236, v239
v_readfirstlane_b32 s66, v236
s_cmp_lg_u32 s66, 0
s_cbranch_scc1 L1_slow
L1_norm:
""")
    stamp(p, 7)
    OXS = [63, 64, 65, 70]
    I(f"""
s_lshl_b32 s68, s48, 1
s_and_b32 s69, s3, 1
s_add_u32 s68, s68, s69
s_lshl_b32 s68, s68, 5
s_lshr_b32 s69, s3, 1
s_add_u32 s68, s68, s69
s_lshl_b32 s69, s70, 1
s_add_u32 s68, s68, s69
""")
    for rho in range(4):
        I(f"s_add_u32 s69, s71, {rho}\ns_and_b32 s69, s69, 3\ns_lshl_b32 s69, s69, 1\ns_add_u32 s69, s69, s68\ns_mul_i32 s{OXS[rho]}, s69, 24576")
    I(f"""
v_bfe_u32 v232, v{rLn}, 2, 2
v_lshlrev_b32 v232, 7, v232
v_lshrrev_b32 v233, 5, v{rLn}
v_lshl_add_u32 v232, v233, 9, v232
v_bfe_u32 v233, v{rLn}, 3, 1
v_lshl_add_u32 v232, v233, 6, v232
v_bfe_u32 v233, v{rLn}, 4, 1
v_lshl_add_u32 v232, v233, 5, v232
v_and_b32 v233, 1, v{rLn}
v_lshl_add_u32 v232, v233, 4, v232
v_bfe_u32 v233, v{rLn}, 1, 1
v_lshl_add_u32 v232, v233, 3, v232
s_lshr_b32 s69, s3, 1
s_lshl_b32 s69, s69, 11
v_add_u32 v240, s69, v232
v_xor_b32 v241, 64, v240
v_add_u32 v242, {WIN}, v240
v_add_u32 v243, {WIN}, v241
v_add_u32 v244, {2*WIN}, v240
v_add_u32 v245, {2*WIN}, v241
v_lshlrev_b32 v246, 4, v{rLn}
s_lshl_b32 s69, s71, 2
s_add_u32 s52, s53, s69
""")
    rL16 = 246
    NBR = 5
    def bfr(sig, ks, t): return (sig % NBR) * 24 + (ks * 3 + t) * 4
    def oacc(n, t):
        return (f"v[{120+(n*3+t)*16}:{135+(n*3+t)*16}]" if n < 2 else f"a[{((n-2)*3+t)*16}:{((n-2)*3+t)*16+15}]")
    RD = 4
    GR = [(0, ks, n) for ks in range(2) for n in range(3)] + [(0, 0, 3), (0, 1, 3)]
    for sig in range(1, 14): GR += [(sig, ks, n) for ks in range(2) for n in range(4)]
    GR += [(sig, ks, n) for sig in (14, 15) for ks in range(2) for n in (2, 3)] + [(sig, ks, n) for sig in (14, 15) for ks in range(2) for n in (0, 1)]
    def a_rd(k, sec):
        sig, ks, n = GR[k]
        b = fr(k) + 2 * sec
        a = WSL[sig % NSL]; w = a // WIN
        return f"ds_read_b64_tr_b16 a[{b}:{b+1}], v{240 + 2*w + (n & 1)} offset:{a - w*WIN + (2*ks + sec)*4096 + (n>>1)*1024}"
    def op_mfma(k, t):
        sig, ks, n = GR[k]
        b = bfr(sig, ks, t); d = oacc(n, t)
        return f"v_mfma_f32_32x32x16_bf16 {d}, a[{fr(k)}:{fr(k)+3}], v[{b}:{b+3}], {'0' if (sig == 0 and ks == 0) else d}"
    for k in range(RD):
        I(a_rd(k, 0)); I(a_rd(k, 1))
    def norm_unit(dt, pk):
        out = []
        for t in range(3):
            for k2 in range(2):
                o = (dt * 3 + t) * 16 + 8 * k2
                tb = 216 if k2 == 0 else 230
                out += [f"v_accvgpr_read_b32 v{tb+r}, a{o+r}" for r in range(8)]
                if pk: out += [f"v_pk_mul_f32 v[{tb+2*pr}:{tb+2*pr+1}], v[{tb+2*pr}:{tb+2*pr+1}], v[{RC[t]}:{RC[t]+1}]" for pr in range(4)]
                else: out += [f"v_mul_f32 v{tb+r}, v{RC[t]}, v{tb+r}" for r in range(8)]
                b = bfr(dt, k2, t)
                out += [f"v_cvt_pk_bf16_f32 v{b+pr}, v{tb+2*pr}, v{tb+2*pr+1}" for pr in range(4)]
                out.append(f"s_add_u32 s67, s63, {(2*dt+k2)*3072}")
                out.append(Ins(f"buffer_store_dwordx4 v[{b}:{b+3}], v{rL16}, s[44:47], s67 offen offset:{t*1024} {OPT['ost']}", lw=["OA" if dt < 2 else "OB"]))
        return out
    for x in norm_unit(0, True): em(p, x)
    stamp(p, 8)
    nrm = []
    for dt, dl in ((1, 18), (2, 48), (3, 72)):
        nrm += [(x, 0, dl - 2) for x in norm_unit(dt, OPT['npk'])]
    def ox_load(sig):
        rho, dq = step_of(sig)
        out = []
        for ks in range(2):
            for t in range(3):
                b = bfr(sig, ks, t)
                out.append(([f"s_add_u32 s60, s{OXS[rho]}, {(2*dq+ks)*3072}"] if t == 0 else [],
                            f"buffer_load_dwordx4 v[{b}:{b+3}], v{rL16}, s[44:47], s60 offen offset:{t*1024} {OPT['oxl']}"))
        return out
    al = Slots()
    for k in range(len(GR)):
        kn = k + RD
        if kn < len(GR):
            nxt = (kn >> 3) != (k >> 3)
            g0 = 3 * k + (2 if nxt else 0)
            al.put(g0, a_rd(kn, 0)); al.put(min(g0 + 1, (k >> 3) * 24 + 23), a_rd(kn, 1))
    def bar(g, need, extra=()):
        al.put(g, ["s_waitcnt lgkmcnt(0)", Ins("s_barrier", lr=list(need))] + list(extra))
    PA, PL, PB, PL2 = OPT['pa'], OPT['pl'], 3 * 24 + 13, OPT['pl2']
    al.put(PA, [Ins("s_barrier", lr=["OA"]), "v_mov_b32 v247, s13", f"buffer_store_dword v247, v{vSY}, s[4:7], s52 offen sc1"])
    for s_ in (3, 5, 7, 9, 11, 13):
        ex = ["s_add_u32 s66, s13, 8", "v_mov_b32 v247, s66", f"buffer_store_dword v247, v{vSY}, s[4:7], s52 offen sc1"] if s_ == OPT['pbs'] else []
        bar(s_ * 24 + 13, [f"W{s_+1}", f"W{s_+2}"] + (["OB"] if s_ == OPT['pbs'] else []), ex)
    used = set([PA, OPT['pbs'] * 24 + 13])
    def place(g0, lst, stride):
        gs = []; g = g0
        for _ in lst:
            while g in used or g in (PL, PL2): g += 1
            gs.append(g); used.add(g); g += stride
        put_vm(al, gs, lst); return g
    for pl_ in (PL, PL2):
        al.put(pl_ - OPT['pe'], f"buffer_load_dwordx4 a[208:211], v{vSY}, s[4:7], s53 offen sc1"); used.add(pl_ - OPT['pe'])
    def chk(tl, g):
        nb = (tl - 1 if tl % 2 == 0 else tl - 2) * 24 + 13
        assert g + OPT['wmar'] <= nb, f"wo tile {tl} issued at {g}, needed by barrier {nb}"
    g = OPT['w6']
    for tl in range(NWPRE, NSL):
        g = place(g, wo_tile(tl), OPT['w6s']); chk(tl, g)
    for tl in range(NSL, 16):
        st = tl - NSL
        sb = 3 if st <= 3 else (st if st % 2 else st + 1)
        g = place(max(g, sb * 24 + 16), wo_tile(tl), OPT['wls']); chk(tl, g)
    g = PL + 1
    for sig in range(4, 16):
        g = max(g, (sig - NBR + 1) * 24 + 1)
        if sig >= 10: g = max(g, PL2 + 1)
        g = place(g, ox_load(sig), OPT['oxs'] if sig < 4 + OPT['oxn'] else OPT['oxt'])
        if OPT.get('verbose'): sys.stderr.write(f"ox {sig}: end gap {g} need {sig*24}\n")
        assert g <= min(sig * 24, 14 * 24 + 12)
    XREG = [16512, 65792, 65792 + 24576, 65792 + 2 * 24576]
    fs = """s_cmp_eq_u32 s3, 0\ns_cselect_b32 s66, X0, X1
s_cmp_eq_u32 s3, 2\ns_cselect_b32 s66, X2, s66
s_cmp_eq_u32 s3, 3\ns_cselect_b32 s66, X3, s66""".split('\n')
    setup = [f"s_mul_i32 s66, s3, 24576", f"s_add_u32 s66, s66, {65792 - 24576}", f"s_cmp_eq_u32 s3, 0\ns_cselect_b32 s66, 16512, s66", f"v_add_u32 v248, s66, v{rL16}",
             "s_xor_b32 s67, s3, 2", "s_mul_i32 s66, s67, 24576", f"s_add_u32 s66, s66, {65792 - 24576}", "s_cmp_eq_u32 s67, 0\ns_cselect_b32 s66, 16512, s66", f"v_add_u32 v249, s66, v{rL16}",
             f"s_add_u32 s28, s18, {P_WS_OFF}\ns_addc_u32 s29, s19, 0", "s_and_b32 s29, s29, 0xffff", f"s_mov_b32 s30, {P_BYTES}",
             "s_lshr_b32 s66, s49, 2", "s_lshl_b32 s66, s66, 4", "s_add_u32 s66, s66, s48", "s_mul_i32 s66, s66, 6", "s_and_b32 s67, s3, 1", "s_mul_i32 s67, s67, 3",
             "s_add_u32 s66, s66, s67", "s_lshl_b32 s66, s66, 15", "s_lshl_b32 s67, s71, 13", "s_add_u32 s66, s66, s67", "s_lshr_b32 s67, s3, 1", "s_lshl_b32 s67, s67, 12",
             "s_add_u32 s66, s66, s67"]
    for i, x in enumerate(setup): al.put(12 * 24 + i, x)
    E0 = 15 * 24
    for i in range(24): al.put(E0 + 1 + i // 2 + (0 if i < 12 else 1), f"ds_write_b128 v248, a[{4*i}:{4*i+3}] offset:{i*1024}")
    al.put(E0 + 17, ["s_waitcnt lgkmcnt(0)", "s_barrier"])
    def xr(i): return 24 + 4 * i if i < 18 else 216 + 4 * (i - 18)
    for i in range(24): al.put(E0 + 18 + i // 4, f"ds_read_b128 v[{xr(i)}:{xr(i)+3}], v249 offset:{i*1024}")
    if OPT['st2']:
        for idx, s_ in ((2, 8), (3, 12)): al.put(s_ * 24 - 1, stamp_ops(idx))
    allm = [op_mfma(k, t) for k in range(len(GR)) for t in range(3)]
    def seg(g0, g1, streams=(), budget=None):
        r = Slots()
        for k_, v_ in al.items():
            if g0 <= k_ < g1: r[k_ - g0] = list(v_)
        schedule(p, allm[g0:g1], r, streams, budget)
    def poll(tag, full):
        chk = "\n".join(f"s_or_b32 s{r}, s{r}, 8" for r in (66, 67, 68, 69)) if not full else ""
        p.raw(f"""
s_mov_b32 s51, 0
s_add_u32 s14, s13, 8
s_cmp_lg_u32 s3, 0
s_cbranch_scc1 L1_go{tag}
L1_poll{tag}:
s_waitcnt vmcnt(0)
v_accvgpr_read_b32 v253, a208
v_accvgpr_read_b32 v254, a209
s_nop 0
v_readfirstlane_b32 s66, v253
v_readfirstlane_b32 s67, v254
v_accvgpr_read_b32 v253, a210
v_accvgpr_read_b32 v254, a211
s_nop 0
v_readfirstlane_b32 s68, v253
v_readfirstlane_b32 s69, v254
s_nop 1
{chk}
s_xor_b32 s66, s66, s14
s_xor_b32 s67, s67, s14
s_xor_b32 s68, s68, s14
s_xor_b32 s69, s69, s14
s_or_b32 s66, s66, s67
s_or_b32 s68, s68, s69
s_or_b32 s66, s66, s68
s_cbranch_scc0 L1_go{tag}
s_sleep 2
buffer_load_dwordx4 a[208:211], v{vSY}, s[4:7], s53 offen sc1
s_add_u32 s51, s51, 1
s_cmp_lt_u32 s51, 0x40000
s_cbranch_scc1 L1_poll{tag}
L1_go{tag}:
""")
        I("s_barrier")
    assert PL >= 72
    seg(0, PL, [nrm], lambda g: OPT['nbud'])
    poll("a", False)
    stamp(p, 9)
    seg(PL, PL2)
    poll("b", True)
    seg(PL2, len(allm))
    if OPT['st2']: stamp(p, 4)
    for n in range(2):
        for t in range(3):
            o = 120 + (n * 3 + t) * 16
            for q4 in range(4):
                x = xr((n * 3 + t) * 4 + q4)
                I(f"v_pk_add_f32 v[{o+4*q4}:{o+4*q4+1}], v[{o+4*q4}:{o+4*q4+1}], v[{x}:{x+1}]")
                I(f"v_pk_add_f32 v[{o+4*q4+2}:{o+4*q4+3}], v[{o+4*q4+2}:{o+4*q4+3}], v[{x+2}:{x+3}]")
            for pr in range(8): I(f"v_cvt_pk_bf16_f32 v{o+pr}, v{o+2*pr}, v{o+2*pr+1}")
            I(f"s_add_u32 s67, s66, {t*32768}")
            for s2 in range(2):
                I(f"buffer_store_dwordx4 v[{o+4*s2}:{o+4*s2+3}], v{rL16}, s[28:31], s67 offen offset:{(n*2+s2)*1024} {OPT['pst']}")
    if OPT['stamp']:
        I("s_waitcnt vmcnt(0)")
        stamp(p, 1)
        stamp_out(p, 10, 0)
    I("L1_end:\ns_endpgm\nL1_code_end:")
    return p

def gen_slow():
    p = Prog(); I = p.I
    M = [232, 233, 234]; T = [235, 236, 237]
    M = [S[1], S[1] + 1, S[1] + 2]; T = [S[1] + 3, S[1] + 4, S[1] + 5]
    I("L1_slow:\ns_nop 15\ns_waitcnt vmcnt(0) lgkmcnt(0)\ns_barrier")
    I(f"v_mbcnt_lo_u32_b32 v{S[1]+8}, -1, 0\nv_mbcnt_hi_u32_b32 v{S[1]+8}, -1, v{S[1]+8}")
    for x in kv_addr_setup(f"v{S[1]+8}", S[1] + 9): I(x)
    for t in range(3): I(f"v_mov_b32 v{M[t]}, 0xff800000")
    def load(kinds):
        for kind in kinds:
            pre, dm = kv_tile(kind, 0, KS[0] if kind == 'K' else VS[0], soff="s60", tag=False)
            for x in pre: I(x)
            for d in dm: p.add(d)
        I("s_waitcnt vmcnt(0)\ns_barrier")
    I("s_mov_b32 s60, 0\nL1_s1:")
    p.loop_begin(2)
    load("K")
    for ks in range(8): I(k_read(ks, KS[0]))
    for ks in range(8):
        for t in range(3): I(s_mfma(S[0], t, ks, True))
    for t in range(3):
        b = S[0] + 16 * t
        for r in range(0, 16, 2): I(f"v_max3_f32 v{M[t]}, v{M[t]}, v{b+r}, v{b+r+1}")
    I("s_barrier\ns_add_u32 s60, s60, 8192\ns_cmp_lt_u32 s60, 131072\ns_cbranch_scc1 L1_s1")
    p.loop_end()
    for t in range(3): I(f"v_mov_b32 v{T[t]}, v{M[t]}")
    for t in range(3): I(f"v_permlane32_swap_b32 v{T[t]}, v{M[t]}")
    for t in range(3): I(f"v_max_f32 v{M[t]}, v{M[t]}, v{T[t]}")
    for t in range(3):
        for r in range(16): I(f"v_sub_f32 v{NEGM[t]+r}, 0, v{M[t]}")
        I(f"v_mov_b32 v{vL[t]}, 0")
    for r in range(192): I(f"v_accvgpr_write_b32 a{r}, 0")
    I("s_mov_b32 s60, 0\nL1_s2:")
    p.loop_begin(2)
    load("KV")
    for ks in range(8): I(k_read(ks, KS[0]))
    for ks in range(8):
        for t in range(3): I(s_mfma(S[0], t, ks))
    for j in range(8):
        I(v_read(j, 0, VS[0])); I(v_read(j, 1, VS[0]))
    for e in range(49):
        for x in sm_ops(S[0], e): I(x)
    for j in range(8):
        for t in range(3): I(pv_mfma(S[0], j, t))
    I("s_barrier\ns_add_u32 s60, s60, 8192\ns_cmp_lt_u32 s60, 131072\ns_cbranch_scc1 L1_s2")
    p.loop_end()
    for x in fin_ops(): I(x)
    for sig in range(NWPRE):
        for pre, d in wo_tile(sig):
            for x in pre: I(x)
            p.add(d)
    I("s_waitcnt vmcnt(0)\ns_barrier\ns_nop 15\ns_branch L1_norm")
    return p

def gen_red():
    p = Prog(); I = p.I
    I("s_cmp_ge_u32 s2, 768\ns_cbranch_scc1 L2_end")
    I("s_load_dwordx2 s[14:15], s[0:1], 40\ns_load_dwordx2 s[18:19], s[0:1], 56")
    stamp(p, 0)
    I(f"""
v_lshrrev_b32 v1, 6, v0
v_and_b32 v0, 63, v0
v_readfirstlane_b32 s3, v1
v_lshrrev_b32 v2, 3, v0
v_and_b32 v3, 7, v0
v_lshlrev_b32 v4, 9, v2
v_lshl_add_u32 v4, v3, 4, v4
v_lshlrev_b32 v5, 4, v2
v_lshl_add_u32 v5, v3, 10, v5
s_lshl_b32 s4, s2, 2
s_add_u32 s4, s4, s3
s_lshr_b32 s5, s4, 5
s_bfe_u32 s6, s4, 0x20003
s_and_b32 s7, s4, 7
s_lshl_b32 s8, s5, 15
s_lshl_b32 s9, s7, 12
s_add_u32 s9, s9, s8
s_lshl_b32 s10, s6, 7
s_add_u32 s9, s9, s10
s_lshl_b32 s10, s6, 13
s_add_u32 s8, s8, s10
s_lshl_b32 s10, s7, 7
s_add_u32 s8, s8, s10
s_waitcnt lgkmcnt(0)
s_add_u32 s20, s18, {P_WS_OFF}
s_addc_u32 s21, s19, 0
s_and_b32 s21, s21, 0xffff
s_mov_b32 s22, {P_BYTES}
s_mov_b32 s23, 0x00020000
""")
    for g in range(4):
        I(f"buffer_load_dwordx4 v[{8+4*g}:{11+4*g}], v4, s[20:23], s9 offen {OPT['rld']}")
        if g < 3: I(f"s_add_u32 s9, s9, {16*192*1024}")
    srd(p, 24, 14, 15, 16 * 192 * 1024)
    for d in range(4):
        for g in range(4):
            r = 8 + 4 * g + d
            I(f"v_lshlrev_b32 v{24+2*g}, 16, v{r}\nv_and_b32 v{25+2*g}, 0xffff0000, v{r}")
        I(f"v_pk_add_f32 v[24:25], v[24:25], v[26:27]\nv_pk_add_f32 v[28:29], v[28:29], v[30:31]\nv_pk_add_f32 v[24:25], v[24:25], v[28:29]")
        I(f"v_cvt_pk_bf16_f32 v{32+d}, v24, v25")
    I("buffer_store_dwordx4 v[32:35], v5, s[24:27], s8 offen")
    if OPT['stamp']:
        I("s_waitcnt vmcnt(0)")
        stamp(p, 1)
        I("s_cmp_ge_u32 s2, 256\ns_cbranch_scc1 L2_end\ns_mul_i32 s2, s2, 1")
        stamp_out(p, 2, 0x20000)
    I("L2_end:\ns_endpgm")
    return p

def kd(name, vg, acc, sg=102):
    return f""".p2align 6
.amdhsa_kernel {name}
  .amdhsa_next_free_vgpr {vg}
  .amdhsa_next_free_sgpr {sg}
  .amdhsa_accum_offset {acc}
  .amdhsa_group_segment_fixed_size 0
  .amdhsa_kernarg_size 64
  .amdhsa_user_sgpr_count 2
  .amdhsa_user_sgpr_kernarg_segment_ptr 1
  .amdhsa_system_sgpr_workgroup_id_x 1
  .amdhsa_float_denorm_mode_32 3
.end_amdhsa_kernel
"""

def main():
    k1 = gen_k1(); k1.resolve(); t1, s1 = k1.emit()
    ks = gen_slow(); ks.resolve(); ts, _ = ks.emit(); t1 += ts
    k2 = gen_red(); k2.resolve(); t2, s2 = k2.emit()
    sys.stderr.write(f"k1 {s1}  k2 {s2}\n")
    hdr = open('cdna_kernels/' + NAME + '.s.ref').read().split('\n')
    top = [l for l in hdr if l.startswith(';') and '@launch' not in l and 'Override' not in l and 'grid=ceil' not in l]
    out = '\n'.join(top) + f"""
; @launch kernel=attn_kernel grid=(256,1,1) block=(256,1,1) lds=163840
; @launch kernel=reduce_kernel grid=(768,1,1) block=(256,1,1) lds=0
.amdgcn_target "amdgcn-amd-amdhsa--gfx950"
.text
.globl attn_kernel
.p2align 8
.type attn_kernel,@function
attn_kernel:
{t1}
.globl reduce_kernel
.p2align 8
.type reduce_kernel,@function
reduce_kernel:
{t2}
.section .rodata,"a"
{kd('attn_kernel', 512, 256)}{kd('reduce_kernel', 40, 40, 102 if OPT['stamp'] else 32)}"""
    open(sys.argv[1], 'w').write(out)
main()
```

```python
import sys, math, struct
from asmlib import *
NAME = "standalone__mha_block_cached__near_ridge"
OPT = dict(stamp=0, tlb=0, dfirst=26, kmar=24, la=0, ws2=2, npk=1, pa=44, pl=72, pl2=144, pbs=3, nbud=32, w6=59, w6s=2, wmar=20, oxt=4, st2=0, kvsz=1, xw=1, rh=2, rb=1, rmask=7, pre1=8, bud=24, tbud=28, dcost=12,
           ost='sc1', oxl='sc1', pst='sc1', rld='', pub=13, pol=3, pe=12, oxs=1, oxn=2, wls=6, ctouch=1,
           dlast=640, thr=2.0**40, xreg=1)
for a in sys.argv[2:]:
    k, v = a.split('=')
    try: OPT[k] = int(v, 0)
    except ValueError:
        try: OPT[k] = float(v)
        except ValueError: OPT[k] = v.replace('+', ' ')

def f2u(x): return struct.unpack('<I', struct.pack('<f', x))[0]
SCALE = math.log2(math.e) / math.sqrt(128.0)

XBLK = 1056; XSZ = 24 * XBLK
WQSZ = 32768
BUFSZ = XSZ + WQSZ
BUFA = 163840 - 2 * BUFSZ
KRG = 4128
KSZ = 4 * KRG; VSZ = 16384
KS = [0, 32896, 65792, 98688, 131584]
VS = [16512, 49408, 82304, 115200]
SPARE = 148096
WIN = 65792
O_WS_OFF = 0x1000000; O_BYTES = 16 * 192 * 4096 * 2
FLAG_OFF = 0x800000
P_WS_OFF = 0x4000000; P_BYTES = 4 * 16 * 192 * 512 * 2

def srd(p, d, lo, hi, size):
    p.I(f"s_mov_b32 s{d}, s{lo}\ns_and_b32 s{d+1}, s{hi}, 0xffff\ns_mov_b32 s{d+2}, {size}\ns_mov_b32 s{d+3}, 0x00020000")
def stamp_ops(idx):
    if not OPT['stamp']: return []
    return ["s_memrealtime s[78:79]", "s_memtime s[76:77]", "s_waitcnt lgkmcnt(0)", f"s_mov_b32 s{80+idx}, s78", f"s_mov_b32 s{90+idx}, s76"]
def stamp(p, idx):
    for x in stamp_ops(idx): p.I(x)
def stamp_out(p, nst, base_off):
    if not OPT['stamp']: return
    p.I(f"""
s_mov_b32 s72, s18
s_and_b32 s73, s19, 0xffff
s_mov_b32 s74, 0x1000000
s_mov_b32 s75, 0x00020000
s_lshl_b32 s76, s2, 2
s_add_u32 s76, s76, s3
s_lshl_b32 s76, s76, 7
s_add_u32 s76, s76, {base_off}
v_mov_b32 v1, 0
""")
    for i in range(nst):
        p.I(f"v_mov_b32 v2, s{80+i}\nbuffer_store_dword v2, v1, s[72:75], s76 offen offset:{4*i}")
        p.I(f"v_mov_b32 v2, s{90+i}\nbuffer_store_dword v2, v1, s[72:75], s76 offen offset:{64+4*i}")

def txt(x): return x.text if isinstance(x, Ins) else x
def cost(x):
    mn = txt(x).split()[0]
    if mn.startswith('v_exp') or mn.startswith('v_rcp'): return 8
    if mn.startswith('ds_write'): return 8
    if mn.startswith('buffer_') or mn.startswith('global_'): return OPT['dcost']
    if mn.startswith('v_pk_'): return 8
    return 4
class Slots(dict):
    def put(self, g, x): self.setdefault(g, []).extend(x if isinstance(x, list) else [x])
def em(p, x):
    if isinstance(x, Ins): p.add(x)
    else: p.I(x)
def schedule(p, mfmas, fixed, streams=(), budget=None):
    streams = [list(s) for s in streams]
    for x in fixed.get(-1, []): em(p, x)
    for g, m in enumerate(mfmas):
        p.I(m)
        used = 0
        for f in fixed.get(g, []):
            em(p, f); used += cost(f)
        b = budget(g) if budget else OPT['bud']
        while True:
            c = [s for s in streams if s and s[0][1] <= g]
            if not c: break
            fs = [s for s in c if any(x[2] <= g for x in s[:200])]
            s = fs[0] if fs else min(c, key=lambda s: min(x[2] for x in s[:8]))
            if fs or used + cost(s[0][0]) <= b:
                op = s.pop(0)[0]; em(p, op); used += cost(op)
            else: break
    for s in streams:
        for op, _, _ in s: em(p, op)
    for g in fixed:
        assert g < len(mfmas), f"fixed slot {g} beyond region {len(mfmas)}: {fixed[g]}"

vK, vV0, vV1 = 240, 241, 242
vOK = [243, 244]; vOV = [245, 246]
vL = [247, 248, 249]
vX, vW0, vW1, vOX, vOW = 250, 251, 252, 253, 254
vSY = 255
S = [64, 112]; NEGM = [224, 160, 176]; QB = [192, 0, 32]
FR = 224
def fr(n): return FR + (n % 8) * 4
def qfrag(t, ksd): b = QB[t] + 4 * ksd; return f"v[{b}:{b+3}]"
def acc(t, dt): return (t * 4 + dt) * 16

def kv_addr_setup(lane, t0):
    a, b, c, d, e = [f"v{t0+i}" for i in range(5)]
    return f"""v_lshrrev_b32 {a}, 3, {lane}
v_and_b32 {b}, 7, {lane}
v_bfe_u32 {c}, {lane}, 4, 1
v_xor_b32 {d}, {b}, {c}
v_lshlrev_b32 {d}, 4, {d}
v_lshlrev_b32 {e}, 2, {c}
v_xor_b32 {e}, {b}, {e}
v_lshlrev_b32 {e}, 4, {e}
v_lshl_add_u32 {d}, {a}, 8, {d}
v_lshl_add_u32 {e}, {a}, 8, {e}
s_lshl_b32 s66, s3, 11
s_add_u32 s67, s66, 128
s_add_u32 s66, s66, 1024
v_add_u32 v{vOK[0]}, s66, {d}
v_add_u32 v{vOK[1]}, s67, {d}
v_add_u32 v{vOV[0]}, s66, {e}
v_add_u32 v{vOV[1]}, s67, {e}
s_lshr_b32 s66, s3, 1
s_lshl_b32 s66, s66, 11
v_bfe_u32 {a}, {lane}, 3, 2
v_mul_u32_u24 {a}, {KRG}, {a}
v_lshl_add_u32 {a}, {b}, 7, {a}
v_lshrrev_b32 {c}, 5, {lane}
v_bfe_u32 {d}, {lane}, 1, 1
v_xor_b32 {d}, {c}, {d}
v_lshl_add_u32 {a}, {d}, 4, {a}
v_add_u32 v{vK}, s66, {a}
v_bfe_u32 {a}, {lane}, 2, 2
v_lshlrev_b32 {a}, 7, {a}
v_lshl_add_u32 {a}, {c}, 9, {a}
v_bfe_u32 {d}, {lane}, 3, 1
v_lshl_add_u32 {a}, {d}, 6, {a}
v_bfe_u32 {d}, {lane}, 4, 1
v_lshl_add_u32 {a}, {d}, 5, {a}
v_and_b32 {d}, 3, {lane}
v_lshl_add_u32 {a}, {d}, 3, {a}
v_add_u32 v{vV0}, s66, {a}
v_xor_b32 v{vV1}, 64, v{vV0}
s_mul_i32 s61, s3, {KRG}
s_lshl_b32 s62, s3, 12""".split('\n')

def kv_tile(kind, n, dst, soff=None, tag=True):
    pre = [f"s_add_u32 m0, s{61 if kind == 'K' else 62}, {dst}"]
    if soff is None:
        pre.append(f"s_mov_b32 s59, {n*8192}"); soff = "s59"
    dm = []
    for hd in range(2):
        for half in range(2):
            sr = (28 if kind == 'K' else 36) + 4 * hd
            v = (vOK if kind == 'K' else vOV)[half]
            dm.append(Ins(f"buffer_load_dwordx4 v{v}, s[{sr}:{sr+3}], {soff} offen offset:{hd*2048+half*1024} nt lds", lw=[f"{kind}{n}"] if tag else []))
    return pre, dm
def k_read(ks, off): b = fr(ks); return f"ds_read_b128 a[{b}:{b+3}], v{vK} offset:{off + (ks>>2)*1024 + (ks&3)*32}"
def v_read(j, sec, off):
    ks, dt = j >> 2, j & 3
    b = fr(8 + j) + 2 * sec
    return f"ds_read_b64_tr_b16 a[{b}:{b+1}], v{vV1 if dt & 1 else vV0} offset:{off + (2*ks + sec)*4096 + (dt>>1)*1024}"
def s_mfma(buf, t, ks, czero=False):
    d = f"v[{buf+t*16}:{buf+t*16+15}]"
    c = d if ks else ("0" if czero else f"v[{NEGM[t]}:{NEGM[t]+15}]")
    return f"v_mfma_f32_32x32x16_bf16 {d}, a[{fr(ks)}:{fr(ks)+3}], {qfrag(t, ks)}, {c}"
def pv_mfma(buf, j, t, czero=False):
    ks, dt = j >> 2, j & 3
    o = (dt * 3 + t) * 16
    b = buf + t * 16 + 8 * ks
    c = "0" if (czero and ks == 0) else f"a[{o}:{o+15}]"
    return f"v_mfma_f32_32x32x16_bf16 a[{o}:{o+15}], a[{fr(8+j)}:{fr(8+j)+3}], v[{b}:{b+3}], {c}"
def ereg(buf, e):
    h, t, j = e // 24, (e % 24) // 8, e % 8
    return buf + t * 16 + 8 * h + j, t
def sm_ops(buf, e):
    out = []
    if e < 48:
        r, t = ereg(buf, e); out.append(f"v_exp_f32 v{r}, v{r}")
    if 1 <= e <= 48:
        r, t = ereg(buf, e - 1); out.append(f"v_add_f32 v{vL[t]}, v{vL[t]}, v{r}")
    if e >= 2 and e % 2 == 0 and e <= 48:
        r, t = ereg(buf, e - 2); base = r - ((e - 2) % 8)
        out.append(f"v_cvt_pk_bf16_f32 v{base + ((e-2) % 8)//2}, v{r}, v{r+1}")
    return out

rOW = [250, 251]; rLn = 252
rA = [240, 241]
RC = [224, 226, 228]
WSL = [KS[1], KS[2], KS[3], VS[0], KS[4], VS[1], KS[0], VS[2], VS[3]]
NSL = len(WSL)
def step_of(sig): return (0, sig) if sig < 4 else (1 + (sig - 4) % 3, (sig - 4) // 3)
def wo_setup():
    a, b, c = "v253", "v254", f"v{rOW[1]}"
    out = f"""v_mbcnt_lo_u32_b32 v{rLn}, -1, 0
v_mbcnt_hi_u32_b32 v{rLn}, -1, v{rLn}
s_and_b32 s71, s49, 3
s_andn2_b32 s70, s49, 3
s_lshl_b32 s67, s71, 8
s_lshl_b32 s68, s3, 13
s_add_u32 s69, s68, {0x20000 - 2048}
v_lshrrev_b32 {a}, 3, v{rLn}
v_and_b32 {b}, 7, v{rLn}
v_bfe_u32 {c}, v{rLn}, 4, 1
v_lshlrev_b32 {c}, 2, {c}
v_xor_b32 {b}, {b}, {c}
v_lshlrev_b32 {b}, 4, {b}
v_lshl_add_u32 {b}, {a}, 10, {b}
v_add_u32 v{rOW[0]}, s68, {b}
v_add_u32 v{rOW[1]}, s69, {b}""".split('\n')
    for rho in range(4):
        out += [f"s_add_u32 s69, s71, {rho}", "s_and_b32 s69, s69, 3", "s_add_u32 s69, s69, s70", f"s_lshl_b32 s{WOB[rho]}, s69, 18", f"s_add_u32 s{WOB[rho]}, s{WOB[rho]}, s67"]
    return out
WOB = [50, 56, 57, 58]
def wo_tile(sig):
    rho, dq = step_of(sig)
    dst = WSL[sig % NSL]
    out = []
    for hd in range(2):
        for pos in range(2):
            half = pos ^ hd
            d = dq * 32768 + half * 128 - pos * 1024 + 1024
            pre = [f"s_add_u32 s59, s{WOB[rho]}, {d}"]
            if hd == 0 and pos == 0: pre = [f"s_add_u32 m0, s62, {dst}"] + pre
            out.append((pre, Ins(f"buffer_load_dwordx4 v{rOW[hd]}, s[8:11], s59 offen offset:{hd*2048+pos*1024} lds", lw=[f"W{sig}"])))
    return out
def fin_ops():
    T = [232, 233, 234]
    fin = []
    for t in range(3): fin.append(f"v_mov_b32 v{T[t]}, v{vL[t]}")
    for t in range(3): fin.append(f"v_permlane32_swap_b32 v{T[t]}, v{vL[t]}")
    for t in range(3): fin.append(f"v_add_f32 v{vL[t]}, v{vL[t]}, v{T[t]}")
    for t in range(3): fin.append(f"v_rcp_f32 v{RC[t]}, v{vL[t]}")
    for t in range(3): fin.append(f"v_mov_b32 v{RC[t]+1}, v{RC[t]}")
    return fin
NWPRE = OPT.get('nwpre', 6)

def gen_k1():
    p = Prog(); I = p.I
    vM = [vX, vW0, vW1]; vT = [vOX, vOW, vOX]
    I("s_cmp_ge_u32 s2, 256\ns_cbranch_scc1 L1_end")
    stamp(p, 0)
    I("s_load_dwordx16 s[4:19], s[0:1], 0")
    I(f"""
v_lshrrev_b32 v1, 6, v0
v_min_u32 v{vSY}, 1, v0
v_lshlrev_b32 v{vSY}, 31, v{vSY}
v_lshrrev_b32 v230, 4, v0
v_min_u32 v230, 1, v230
v_lshlrev_b32 v230, 31, v230
v_lshl_add_u32 v230, v0, 2, v230
v_and_b32 v0, 63, v0
v_readfirstlane_b32 s3, v1
s_and_b32 s66, s2, 7
s_lshr_b32 s67, s2, 3
s_and_b32 s48, s66, 1
s_lshl_b32 s48, s48, 3
s_lshr_b32 s68, s67, 2
s_add_u32 s48, s48, s68
s_lshr_b32 s49, s66, 1
s_lshl_b32 s49, s49, 2
s_and_b32 s69, s67, 3
s_add_u32 s49, s49, s69
s_lshl_b32 s65, s66, 3
s_add_u32 s65, s65, s68
s_mul_i32 s52, s69, {OPT['rh']}
s_mul_i32 s68, s68, {OPT['rb']}
s_add_u32 s52, s52, s68
s_and_b32 s52, s52, {OPT['rmask']}
v_lshrrev_b32 v2, 3, v0
v_and_b32 v3, 7, v0
v_bfe_u32 v4, v0, 4, 1
v_xor_b32 v5, v3, v4
v_lshlrev_b32 v5, 4, v5
v_lshlrev_b32 v6, 2, v4
v_xor_b32 v6, v3, v6
v_lshlrev_b32 v6, 4, v6
v_lshl_add_u32 v{vOX}, v2, 10, v5
v_lshl_add_u32 v{vOW}, v2, 13, v6
s_mul_i32 s50, s48, {192*1024}
s_mul_i32 s66, s3, {48*1024}
s_add_u32 s50, s50, s66
s_lshl_b32 s51, s49, 9
s_lshl_b32 s66, s3, 7
s_add_u32 s51, s51, s66
s_mul_i32 s57, s3, {6*XBLK}
s_lshl_b32 s58, s3, 10
s_waitcnt lgkmcnt(0)
""")
    srd(p, 20, 4, 5, 16 * 192 * 1024 * OPT['xw'])
    srd(p, 24, 10, 11, 512 * 8192 * OPT['xw'])
    def stage_dma(st):
        buf = BUFA + (st & 1) * BUFSZ
        pre0 = ["s_lshl_b32 s54, s52, 7", "s_add_u32 s54, s54, s50", "s_lshl_b32 s55, s52, 19", "s_add_u32 s55, s55, s51",
                "s_add_u32 s52, s52, 1", "s_and_b32 s52, s52, 7"]
        out = []
        for j in range(6):
            out.append(([f"s_add_u32 m0, s57, {buf + j*XBLK}", f"s_add_u32 s56, s54, {j*8192}"],
                        Ins(f"buffer_load_dwordx4 v{vOX}, s[20:23], s56 offen lds", lw=[f"Q{st}"])))
        for rg in range(8):
            out.append(([f"s_add_u32 m0, s58, {buf + XSZ + rg*4096}", f"s_add_u32 s56, s55, {rg*65536}"],
                        Ins(f"buffer_load_dwordx4 v{vOW}, s[24:27], s56 offen lds", lw=[f"Q{st}"])))
        out[0] = (pre0 + out[0][0], out[0][1])
        return out
    def emit_vm(lst):
        for pre, x in lst:
            for y in pre: I(y)
            em(p, x)
    def touch(st_ahead):
        if not OPT['la']: return []
        return [([f"s_add_u32 s66, s52, {st_ahead}", "s_and_b32 s66, s66, 7", "s_lshl_b32 s67, s66, 7", "s_lshl_b32 s66, s66, 19"],
                 f"buffer_load_dword a{TCH[0] % 8 + 98}, v228, s[20:23], s67 offen"),
                ([], f"buffer_load_dword a{(TCH[0] + 1) % 8 + 98}, v229, s[24:27], s66 offen")] + [TCH.__setitem__(0, TCH[0] + 2)][:0]
    TCH = [0]
    if OPT['la']:
        I(f"""
v_min_u32 v228, 11, v0
v_lshlrev_b32 v228, 10, v228
s_mul_i32 s66, s48, {192*1024}
s_and_b32 s67, s49, 3
s_mul_i32 s67, s67, {48*1024}
s_add_u32 s66, s66, s67
s_mul_i32 s67, s3, {12*1024}
s_add_u32 s66, s66, s67
v_add_u32 v228, s66, v228
v_bfe_u32 v229, v0, 2, 1
v_lshlrev_b32 v229, 13, v229
v_and_b32 v7, 3, v0
v_lshl_add_u32 v229, v7, 7, v229
s_and_b32 s66, s48, 7
s_lshl_b32 s66, s66, 2
s_add_u32 s66, s66, s3
s_lshl_b32 s66, s66, 14
s_lshl_b32 s67, s49, 9
s_add_u32 s66, s66, s67
v_add_u32 v229, s66, v229
""")
        for a_ in range(1, OPT['la'] + 1): emit_vm(touch(a_))
    emit_vm(stage_dma(0))
    if OPT['ctouch']:
        I(f"""
s_getpc_b64 s[68:69]
L1_pc:
s_lshr_b32 s66, s2, 3
s_lshl_b32 s66, s66, 2
s_add_u32 s66, s66, s3
s_lshl_b32 s66, s66, 9
s_min_u32 s66, s66, L1_code_end-L1_pc-512
s_add_u32 s68, s68, s66
s_addc_u32 s69, s69, 0
v_lshlrev_b32 v7, 3, v0
global_load_dword a255, v7, s[68:69]
""")
    for x in kv_addr_setup("v0", 2): I(x)
    ksz = (131072 + 3072) * OPT['kvsz']
    I(f"""
s_lshl_b32 s66, s48, 5
s_lshl_b32 s67, s49, 1
s_add_u32 s66, s66, s67
s_lshl_b32 s66, s66, 17
s_add_u32 s28, s6, s66
s_addc_u32 s29, s7, 0
s_sub_u32 s28, s28, 1024
s_subb_u32 s29, s29, 0
s_and_b32 s29, s29, 0xffff
s_add_u32 s32, s28, {0x20000 - 2048}
s_addc_u32 s33, s29, 0
s_add_u32 s36, s8, s66
s_addc_u32 s37, s9, 0
s_sub_u32 s36, s36, 1024
s_subb_u32 s37, s37, 0
s_and_b32 s37, s37, 0xffff
s_add_u32 s40, s36, {0x20000 - 2048}
s_addc_u32 s41, s37, 0
s_mov_b32 s30, {(131072 + 1024) * OPT['kvsz']}
s_mov_b32 s34, {ksz}
s_mov_b32 s38, {(131072 + 1024) * OPT['kvsz']}
s_mov_b32 s42, {ksz}
s_mov_b32 s31, 0x00020000
s_mov_b32 s35, 0x00020000
s_mov_b32 s39, 0x00020000
s_mov_b32 s43, 0x00020000
s_add_u32 s44, s18, {O_WS_OFF}
s_addc_u32 s45, s19, 0
s_and_b32 s45, s45, 0xffff
s_mov_b32 s46, {P_WS_OFF - O_WS_OFF + P_BYTES}
s_mov_b32 s47, 0x00020000
s_mov_b32 s72, s16
s_and_b32 s73, s17, 0xffff
s_mov_b32 s74, 256
s_mov_b32 s75, 0x00020000
s_mov_b32 s64, {f2u(SCALE):#x}
s_add_u32 s4, s18, {FLAG_OFF}
s_addc_u32 s5, s19, 0
s_and_b32 s5, s5, 0xffff
s_mov_b32 s6, 8192
s_mov_b32 s7, 0x00020000
s_lshl_b32 s53, s48, 7
s_lshl_b32 s65, s48, 2
s_sub_u32 s8, s12, 1024
s_subb_u32 s9, s13, 0
s_and_b32 s9, s9, 0xffff
s_mov_b32 s10, {4096*1024+1024}
s_mov_b32 s11, 0x00020000
s_lshr_b32 s63, s49, 2
s_lshl_b32 s63, s63, 5
s_lshr_b32 s66, s2, 3
s_add_u32 s63, s63, s66
s_lshl_b32 s63, s63, 2
s_add_u32 s63, s63, s3
s_lshl_b32 s63, s63, 13
s_lshr_b32 s66, s3, 1
s_and_b32 s67, s3, 1
v_bfe_u32 v3, v0, 3, 2
v_mul_u32_u24 v3, {XBLK}, v3
v_and_b32 v4, 7, v0
v_lshl_add_u32 v3, v4, 7, v3
v_lshrrev_b32 v4, 5, v0
v_bfe_u32 v5, v0, 1, 1
v_xor_b32 v5, v4, v5
v_lshl_add_u32 v3, v5, 4, v3
s_mul_i32 s68, s67, {12*XBLK}
s_add_u32 s68, s68, {BUFA}
v_add_u32 v{vX}, s68, v3
v_bfe_u32 v2, v0, 2, 2
v_lshlrev_b32 v2, 7, v2
v_bfe_u32 v3, v0, 3, 1
v_lshl_add_u32 v2, v3, 6, v2
v_bfe_u32 v3, v0, 4, 1
v_lshl_add_u32 v2, v3, 5, v2
v_and_b32 v3, 1, v0
v_lshl_add_u32 v2, v3, 4, v2
v_bfe_u32 v3, v0, 1, 1
v_lshl_add_u32 v2, v3, 3, v2
v_lshl_add_u32 v2, v4, 12, v2
s_lshl_b32 s68, s66, 11
s_add_u32 s68, s68, {BUFA + XSZ}
v_add_u32 v{vW0}, s68, v2
v_xor_b32 v{vW1}, 64, v{vW0}
""")
    for r in vL: I(f"v_mov_b32 v{r}, 0")
    if OPT['tlb']:
        I(f"""
s_mul_i32 s66, s48, {2*786432}
s_lshr_b32 s67, s49, 2
s_mul_i32 s68, s67, {8*24576}
s_add_u32 s66, s66, s68
s_lshl_b32 s67, s67, 4
s_add_u32 s67, s67, s48
s_mul_i32 s67, s67, {6*32768}
s_add_u32 s67, s67, {P_WS_OFF - O_WS_OFF}
s_add_u32 s68, s66, 786432
s_add_u32 s69, s67, {6*32768 - 4}
buffer_load_dword a186, v{vSY}, s[28:31], 0 offen offset:1024
buffer_load_dword a187, v{vSY}, s[36:39], 0 offen offset:1024
buffer_load_dword a188, v{vSY}, s[8:11], s63 offen offset:1024
buffer_load_dword a189, v{vSY}, s[44:47], s66 offen
buffer_load_dword a190, v{vSY}, s[44:47], s68 offen
buffer_load_dword a191, v{vSY}, s[44:47], s67 offen
buffer_load_dword a106, v{vSY}, s[44:47], s69 offen
buffer_load_dword a107, v{vSY}, s[4:7], s53 offen
buffer_load_dword a108, v{vSY}, s[72:75], s65 offen
""")
    st1 = stage_dma(1)
    emit_vm(st1[:OPT['pre1']])
    PFT = [('K', 1, 0), ('V', 1, 16), ('K', 2, 32), ('V', 2, 48), ('K', 3, 64), ('V', 3, 80)]
    def pf_load(kind, n, base):
        out = []
        for hd in range(2):
            for half in range(2):
                r = base + 4 * (hd * 2 + half)
                sr = (28 if kind == 'K' else 36) + 4 * hd
                v = (vOK if kind == 'K' else vOV)[half]
                out.append(([f"s_mov_b32 s60, {n*8192}"] if hd + half == 0 else [],
                            f"buffer_load_dwordx4 a[{r}:{r+3}], v{v}, s[{sr}:{sr+3}], s60 offen offset:{hd*2048+half*1024} nt"))
        return out
    def pf_write(kind, base, areg, off):
        return [f"ds_write_b128 v{areg}, a[{base+4*i}:{base+4*i+3}] offset:{off + i*1024}" for i in range(4)]
    def tile_vm(kind, n, dst):
        pre, dm = kv_tile(kind, n, dst)
        return [(pre if i == 0 else [], d) for i, d in enumerate(dm)]
    NA, NB = 112, 144
    def a_read(ks, dt, sec, dst): return f"ds_read_b64_tr_b16 a[{dst+2*sec}:{dst+2*sec+1}], v{vW1 if dt & 1 else vW0} offset:{ks*8192 + (dt>>1)*1024 + sec*512}"
    def b_read(ks, t, dst): return f"ds_read_b128 a[{dst}:{dst+3}], v{vX} offset:{t*4*XBLK + ks*32}"
    def qp_reads(ks):
        par = ks & 1
        A = [a_read(ks, dt, sec, NA + 16 * par + 4 * dt) for dt in range(4) for sec in range(2)]
        B = [b_read(ks, t, NB + 12 * par + 4 * t) for t in range(3)]
        return A[:2] + B + A[2:]
    def qp_mfmas(first):
        ms = []
        for ks in range(4):
            par = ks & 1
            for dt in range(4):
                for t in range(3):
                    d = f"v[{acc(t,dt)}:{acc(t,dt)+15}]"
                    a = NA + 16 * par + 4 * dt; b = NB + 12 * par + 4 * t
                    ms.append(f"v_mfma_f32_32x32x16_bf16 {d}, a[{a}:{a+3}], a[{b}:{b+3}], {'0' if first and ks == 0 else d}")
        return ms
    A7 = [112, 168, 128, 144]; B7 = [192, 208, 192]
    def put_vm(sl, gaps, lst):
        for g, (pre, x) in zip(gaps, lst):
            sl.put(g - 1, list(pre))
            sl.setdefault(g, []).insert(0, x)
        assert len(gaps) >= len(lst), (len(gaps), len(lst))
    def qp_stage(s, carry):
        sl = Slots()
        def put_reads(g0, rs):
            for i, r in enumerate(rs): sl.put(g0 + 2 * (i // 2), r)
        for ks in range(3): put_reads(ks * 12, qp_reads(ks + 1))
        put_vm(sl, list(range(1, 35, 2)), carry)
        d = BUFSZ if s % 2 == 0 else -BUFSZ
        op = (lambda r: f"v_add_u32 v{r}, {d}, v{r}") if d > 0 else (lambda r: f"v_subrev_u32 v{r}, {-d}, v{r}")
        sl.put(35, [op(vX), op(vW0), op(vW1), "s_waitcnt lgkmcnt(0)", Ins("s_barrier", lr=[f"Q{s+1}"] + (["K0", "V0"] if s == 6 else []))])
        left = []
        if s == 6:
            sl.put(1, ["s_mov_b32 s12, 1", "v_and_b32 v225, 31, v224", "v_lshlrev_b32 v225, v225, 1"])
            sl.put(3, ["v_cmp_gt_u32 vcc, 0x100, v224"])
            sl.put(5, ["v_cndmask_b32 v225, 0, v225, vcc"])
            for i_ in range(16):
                sl.put(7 + i_, [f"v_readlane_b32 s{14 + (i_ & 1)}, v225, {i_}"] + ([f"s_or_b32 s12, s12, s{14 + ((i_ - 1) & 1)}"] if i_ else []))
            sl.put(24, ["s_or_b32 s12, s12, s15"])
            sl.put(26, ["s_ff0_i32_b32 s12, s12"])
        if s < 6:
            put_reads(36, qp_reads(0))
            post = stage_dma(s + 2)
            put_vm(sl, list(range(37, 48, 2)), post[:6])
            left = post[6:]
        else:
            rs = [a_read(0, dt, sec, A7[0] + 4 * dt) for dt in range(4) for sec in range(2)]
            rs = rs[:2] + [b_read(0, 0, B7[0])] + rs[2:] + [a_read(1, dt, sec, A7[1] + 4 * dt) for dt in range(4) for sec in range(2)] + [b_read(ks, 0, B7[0] + 4 * ks) for ks in (1, 2, 3)]
            for i, r in enumerate(rs): sl.put(36 + (i * 12) // len(rs), r)
        schedule(p, qp_mfmas(s == 0), sl)
        return left
    p.add(Ins("s_barrier", lr=["Q0"]))
    stamp(p, 2)
    for r in qp_reads(0): I(r)
    PFL = []
    for t_ in PFT + ([('K', 4, 96)] if OPT['xreg'] >= 2 else []): PFL += pf_load(*t_)
    def la(s): return touch(OPT['la'] - 1) if (OPT['la'] and s + 1 + OPT['la'] < 8) else []
    carry = qp_stage(0, st1[OPT['pre1']:] + la(0) + tile_vm('K', 0, KS[0]) + tile_vm('V', 0, VS[0]))
    stamp(p, 3)
    for s in range(1, 7):
        ex = [([], f"buffer_load_dword v224, v230, s[4:7], s53 offen sc1")] if s == 4 else []
        pfl = PFL[(s - 1) * len(PFL) // 6: s * len(PFL) // 6]
        carry = qp_stage(s, carry + la(s) + pfl + ex)
    stamp(p, 4)
    ms = []
    for t in range(3):
        for ks in range(4):
            for dt in range(4):
                d = f"v[{acc(t,dt)}:{acc(t,dt)+15}]"
                a = A7[ks] + 4 * dt; b = B7[t] + 4 * ks
                ms.append(f"v_mfma_f32_32x32x16_bf16 {d}, a[{a}:{a+3}], a[{b}:{b+3}], {d}")
    ms += [s_mfma(S[0], t, ks, True) for t in range(3) for ks in range(8)]
    I0 = 72
    def IT(i, g=0): return I0 + 48 * i + g
    ms += [s_mfma(S[1], t, ks) for t in range(3) for ks in range(8)]
    ms += [pv_mfma(S[0], j, t, True) for j in range(8) for t in range(3)]
    for i in range(1, 15):
        ms += [s_mfma(S[(i + 1) & 1], t, ks) for ks in range(8) for t in range(3)]
        ms += [pv_mfma(S[i & 1], j, t) for j in range(8) for t in range(3)]
    TL = IT(15)
    ms += [pv_mfma(S[1], j, t) for j in range(8) for t in range(3)]
    sl = Slots()
    rs = [a_read(ks, dt, sec, A7[ks] + 4 * dt) for ks in (2, 3) for dt in range(4) for sec in range(2)]
    for i, r in enumerate(rs): sl.put(i // 2, r)
    for ks in range(4): sl.put(8 + ks, b_read(ks, 1, B7[1] + 4 * ks))
    for ks in range(4): sl.put(17 + ks, b_read(ks, 2, B7[2] + 4 * ks))
    sl.put(-1, [f"v_mbcnt_lo_u32_b32 v{vOX}, -1, 0", f"v_mbcnt_hi_u32_b32 v{vOX}, -1, v{vOX}", f"v_lshlrev_b32 v{vOX}, 4, v{vOX}",
                f"v_add_u32 v{vOW}, s62, v{vOX}", f"v_add_u32 v{vOX}, s61, v{vOX}"])
    w1 = pf_write('K', 0, vOX, KS[1]) + pf_write('V', 16, vOW, VS[1])
    WS2 = OPT['ws2']
    for i, x in enumerate(w1): sl.put(WS2 * i, x)
    sl.put(WS2 * 8 - 1, [f"v_add_u32 v{vOX}, {WIN}, v{vOX}", f"v_add_u32 v{vOW}, {WIN}, v{vOW}"])
    w2 = pf_write('K', 32, vOX, KS[2] - WIN) + pf_write('V', 48, vOW, VS[2] - WIN)
    for i, x in enumerate(w2): sl.put(WS2 * (8 + i), x)
    sl.put(25, ["s_waitcnt lgkmcnt(1)", "s_barrier"])
    w3 = pf_write('K', 64, vOX, KS[3] - WIN) + pf_write('V', 80, vOW, VS[3] - WIN)
    for i, x in enumerate(w3): sl.put(max(WS2 * 16, 26) + 2 * i, x)
    for ks in range(8): sl.put(33 + 2 * ks, k_read(ks, KS[0]))
    sl.put(52, ["s_waitcnt lgkmcnt(0)", "s_barrier"])
    for ks in range(8): sl.put(65 + ks, k_read(ks, KS[1]))
    kwin = 0; vwin = 0
    def win_move(regs, d): return [(f"v_add_u32 v{r}, {d}, v{r}" if d > 0 else f"v_subrev_u32 v{r}, {-d}, v{r}") for r in regs]
    for i in range(0, 16):
        va = VS[i % 4]; w = (va // WIN) * WIN
        if w != vwin:
            sl.put(IT(i, 10) if i < 15 else IT(14, 41), win_move([vV0, vV1], w - vwin)); vwin = w
        for j in range(8):
            if i == 0: g0 = max(89 + j, IT(0, 15 + 3 * j)); g1 = g0 + (0 if j < 2 else 1)
            elif i < 15: g0 = IT(i, 15 + 3 * j); g1 = g0 + 1
            else: g0 = max(IT(14, 42 + 2 * j), TL + 3 * j - 9); g1 = g0 + 1
            sl.put(g0, v_read(j, 0, va - vwin)); sl.put(g1, v_read(j, 1, va - vwin))
        if i == 15: break
        need = [f"V{i+1}"] + ([f"K{i+2}"] if i + 2 < 16 else [])
        sl.put(IT(i, 40), ["s_waitcnt lgkmcnt(0)", Ins("s_barrier", lr=need)])
        n = i + 2
        if n < 16:
            ka = KS[n % 5]; w = (ka // WIN) * WIN
            if w != kwin:
                sl.put(IT(i, 38), win_move([vK], w - kwin)); kwin = w
            for ks, g in enumerate([IT(i, 42), IT(i, 44), IT(i, 46), IT(i + 1, 1), IT(i + 1, 4), IT(i + 1, 7), IT(i + 1, 10), IT(i + 1, 13)]):
                sl.put(g, k_read(ks, ka - kwin))
    XR = OPT['xreg']
    tiles = []
    def add_tile(kind, n, ear):
        dst = KS[n % 5] if kind == 'K' else VS[n % 4]
        tiles.append((IT(n - 2, 40) if kind == 'K' else IT(n - 1, 40) - 1, ear, tile_vm(kind, n, dst)))
    if XR < 2: add_tile('K', 4, 27)
    add_tile('K', 5, 54)
    for n in range(6, 16): add_tile('K', n, IT(n - 6, 42))
    for n in range(4 + min(XR, 2), 16): add_tile('V', n, IT(n - 4, 42))
    if XR:
        tiles.append((IT(2, 40), 49, pf_load('V', 4, 192)))
        sl.put(IT(2, 14), [f"v_mbcnt_lo_u32_b32 v{vOW}, -1, 0", f"v_mbcnt_hi_u32_b32 v{vOW}, -1, v{vOW}"])
        sl.put(IT(2, 16), [f"v_lshlrev_b32 v{vOW}, 4, v{vOW}", f"v_add_u32 v{vOW}, s62, v{vOW}"])
        for i, x in enumerate(pf_write('V', 192, vOW, VS[0])): sl.put(IT(2, 18) + 2 * i, x)
    if XR >= 2:
        tiles.append((IT(2, 39), 33, pf_load('V', 5, 208)))
        for i, x in enumerate(pf_write('V', 208, vOW, VS[1])): sl.put(IT(3, 18) + 2 * i, x)
        sl.put(47, [f"v_add_u32 v{vOX}, {WIN}, v{vOX}"])
        for i, x in enumerate(pf_write('K', 96, vOX, KS[4] - 2 * WIN)): sl.put(48 + i, x)
    g_first, g_last = OPT['dfirst'], I0 + OPT['dlast']
    nops = sum(len(t[2]) for t in tiles)
    gaps = []; vm = []; g = g_first - 2.0
    while tiles:
        step = max(2.0, (g_last - g) / (nops - len(gaps)))
        av = [t for t in tiles if t[1] <= g + step]
        t = min(av, key=lambda t: t[0]) if av else min(tiles, key=lambda t: t[1])
        tiles.remove(t)
        for pre, d in t[2]:
            step = max(2.0, (g_last - g) / (nops - len(gaps)))
            g = max(g + step, t[1])
            gi = int(round(g))
            while gi in gaps or (gi - 1) in gaps or any(txt(x).startswith('s_barrier') for x in sl.get(gi, [])): gi += 1
            gaps.append(gi); g = max(g, gi); vm.append((pre, d, t[1]))
        assert gaps[-1] + OPT['kmar'] <= t[0], (txt(t[2][0][1]), gaps[-1], t[0])
    put_vm(sl, gaps, [(a, b) for a, b, _ in vm])
    if OPT.get('verbose'):
        last = {}
        for gi, (pre, d, ear) in zip(gaps, vm):
            if isinstance(d, Ins): last[d.lw[0]] = gi
        for k_, gi in last.items():
            n = int(k_[1:]); nb = IT(n - 2, 40) if k_[0] == 'K' else IT(n - 1, 40)
            sys.stderr.write(f"{k_}: last issue {gi} (iter {(gi-I0)/48:.2f}) margin {nb-gi}\n")
    used_vm = set(gaps)
    def free_gap(g):
        while g in used_vm or (g - 1) in used_vm or (g + 1) in used_vm: g += 1
        used_vm.add(g); return g
    sl.put(-1, ["v_mbcnt_lo_u32_b32 v237, -1, 0", "v_mbcnt_hi_u32_b32 v237, -1, v237", "v_lshlrev_b32 v237, 7, v237"])
    sl.put(free_gap(12), "buffer_load_dword a184, v237, s[8:11], s63 offen offset:1024")
    sl.put(free_gap(14), "buffer_load_dword a185, v237, s[8:11], s63 offen offset:1088")
    if XR < 2:
        sl.put(32, ["v_accvgpr_write_b32 a208, s12", "v_accvgpr_write_b32 a209, 0"])
        sl.put(free_gap(34), f"buffer_atomic_cmpswap a[208:209], v{vSY}, s[72:75], s65 offen sc0 sc1")
        sl.put(IT(8, 6), [f"v_accvgpr_read_b32 v{vX}, a208"])
        sl.put(IT(8, 8), [f"v_readfirstlane_b32 s13, v{vX}"])
        sl.put(IT(8, 10), ["s_cmp_eq_u32 s13, 0", "s_cselect_b32 s13, s12, s13"])
    else:
        sl.put(14, ["v_mov_b32 v238, s12", "v_mov_b32 v239, 0"])
        sl.put(free_gap(16), f"buffer_atomic_cmpswap v[238:239], v{vSY}, s[72:75], s65 offen sc1")
        sl.put(free_gap(IT(4, 20)), f"buffer_load_dword v{vX}, v{vSY}, s[72:75], s65 offen sc1")
        sl.put(IT(8, 8), [f"v_readfirstlane_b32 s13, v{vX}"])
    for i, x in enumerate(wo_setup()): sl.put(IT(9, 2) + i, x)
    wear = [IT(10, 42), IT(11, 42), IT(12, 42), IT(12, 42), IT(13, 42), IT(13, 42)]
    g = max(max(gaps) + 2, IT(13, 10))
    wg_, wl_ = [], []
    for sig in range(NWPRE):
        for pre, d in wo_tile(sig):
            g = free_gap(max(g, wear[sig]))
            while any(txt(x).startswith('s_barrier') for x in sl.get(g, [])): g = free_gap(g + 1)
            wg_.append(g); wl_.append((pre, d)); g += OPT.get('wps', 3)
    put_vm(sl, wg_, wl_)
    conv = []
    for t in range(3):
        for dt in range(4):
            a = acc(t, dt)
            ear = 16 * t + 12 + dt + 3
            for k2 in range(2):
                dl = 48 + 8 * t + 2 * dt + k2 - 2
                if t == 1 and dt < 3: dl = min(dl, 48 + 8 * dt - 2)
                for pr in range(4):
                    r = a + 8 * k2 + 2 * pr
                    conv.append((f"v_mul_f32 v{r}, s64, v{r}", ear, dl))
                    conv.append((f"v_mul_f32 v{r+1}, s64, v{r+1}", ear, dl))
                for pr in range(4):
                    r = a + 8 * k2 + 2 * pr
                    conv.append((f"v_cvt_pk_bf16_f32 v{QB[t] + 4*(2*dt+k2) + pr}, v{r}, v{r+1}", ear, dl))
    mx = []
    for t in range(3):
        b = S[0] + t * 16
        ear0 = 48 + 8 * t + 7 + 3
        ear = ear0 if t == 0 else max(ear0, 71)
        dl = 72 + 8 * t - 2
        ops = [f"v_max3_f32 v{vM[t]}, v{b}, v{b+1}, v{b+2}"]
        ops += [f"v_max3_f32 v{vM[t]}, v{vM[t]}, v{b+r}, v{b+r+1}" for r in range(3, 15, 2)]
        ops += [f"v_max_f32 v{vM[t]}, v{vM[t]}, v{b+15}", f"v_mov_b32 v{vT[t]}, v{vM[t]}", "s_nop 1", f"v_permlane32_swap_b32 v{vT[t]}, v{vM[t]}",
                f"v_max_f32 v{vM[t]}, v{vM[t]}, v{vT[t]}"]
        mx += [(o, ear0, dl) for o in ops]
        mx += [(f"v_sub_f32 v{NEGM[t]+r}, 0, v{vM[t]}", ear, dl) for r in range(16)]
    sm = []
    for n in range(16):
        buf = S[n & 1]
        pv0 = IT(n, 24) if n < 15 else TL
        def dl_of(e): return pv0 + (0 if e < 24 else 12) + (e % 24) // 8 - 2
        for e in range(49):
            t = (min(e, 47) % 24) // 8
            if n == 0: ear = 72 + 8 * t - 1
            elif n == 1: ear = IT(0, 8 * t + 7 + 4)
            else: ear = IT(n - 1, 21 + t + 4)
            if n == 0 and e < 48:
                r, t = ereg(buf, e)
                sm.append((f"v_sub_f32 v{r}, v{r}, v{vM[t]}", ear, dl_of(e) - 1))
            for o in sm_ops(buf, e):
                sm.append((o, ear, dl_of(e) - 1 if o.startswith('v_exp') else dl_of(e - 1)))
    fin = fin_ops()
    vote = [f"s_mov_b32 s66, {f2u(OPT['thr']):#x}",
            f"v_max3_f32 v232, v{vL[0]}, v{vL[1]}, v{vL[2]}", f"v_add_f32 v233, v{vL[0]}, v{vL[1]}", f"v_add_f32 v233, v233, v{vL[2]}",
            f"v_cmp_nge_f32 vcc, s66, v233", f"v_mov_b32 v234, {SPARE}", "s_lshl_b32 s67, s3, 2", "s_cmp_lg_u64 vcc, 0\ns_cselect_b32 s66, 1, 0",
            "v_add_u32 v235, s67, v234", "v_mov_b32 v236, s66", "ds_write_b32 v235, v236"]
    vote = [x for x in vote if 'max3' not in x]
    sm += [(o, TL + 10, TL + 17) for o in fin[:9] + vote]
    sl.put(TL + 19, ["s_waitcnt lgkmcnt(0)", Ins("s_barrier", lr=[f"W{i}" for i in range(4)]), "ds_read_b128 v[236:239], v234"])
    sm += [(o, TL + 18, TL + 22) for o in fin[9:]]
    if OPT['stamp']:
        sl.put(IT(1, 0) - 1, stamp_ops(5)); sl.put(TL - 1, stamp_ops(6))
    def bud(g):
        if g < IT(1): return OPT['tbud']
        return OPT['bud'] - (4 if (g - I0) % 3 == 2 else 0)
    schedule(p, ms, sl, [conv, mx, sm], budget=bud)
    I("""
v_or3_b32 v236, v236, v237, v238
v_or_b32 v236, v236, v239
v_readfirstlane_b32 s66, v236
s_cmp_lg_u32 s66, 0
s_cbranch_scc1 L1_slow
L1_norm:
""")
    stamp(p, 7)
    OXS = [63, 64, 65, 70]
    I(f"""
s_lshl_b32 s68, s48, 1
s_and_b32 s69, s3, 1
s_add_u32 s68, s68, s69
s_lshl_b32 s68, s68, 5
s_lshr_b32 s69, s3, 1
s_add_u32 s68, s68, s69
s_lshl_b32 s69, s70, 1
s_add_u32 s68, s68, s69
""")
    for rho in range(4):
        I(f"s_add_u32 s69, s71, {rho}\ns_and_b32 s69, s69, 3\ns_lshl_b32 s69, s69, 1\ns_add_u32 s69, s69, s68\ns_mul_i32 s{OXS[rho]}, s69, 24576")
    I(f"""
v_bfe_u32 v232, v{rLn}, 2, 2
v_lshlrev_b32 v232, 7, v232
v_lshrrev_b32 v233, 5, v{rLn}
v_lshl_add_u32 v232, v233, 9, v232
v_bfe_u32 v233, v{rLn}, 3, 1
v_lshl_add_u32 v232, v233, 6, v232
v_bfe_u32 v233, v{rLn}, 4, 1
v_lshl_add_u32 v232, v233, 5, v232
v_and_b32 v233, 1, v{rLn}
v_lshl_add_u32 v232, v233, 4, v232
v_bfe_u32 v233, v{rLn}, 1, 1
v_lshl_add_u32 v232, v233, 3, v232
s_lshr_b32 s69, s3, 1
s_lshl_b32 s69, s69, 11
v_add_u32 v240, s69, v232
v_xor_b32 v241, 64, v240
v_add_u32 v242, {WIN}, v240
v_add_u32 v243, {WIN}, v241
v_add_u32 v244, {2*WIN}, v240
v_add_u32 v245, {2*WIN}, v241
v_lshlrev_b32 v246, 4, v{rLn}
s_lshl_b32 s69, s49, 2
s_add_u32 s52, s53, s69
v_cmp_gt_u32 vcc, 16, v{rLn}
v_lshlrev_b32 v253, 2, v{rLn}
s_cmp_eq_u32 s3, 0
s_cselect_b64 vcc, vcc, 0
v_mov_b32 v254, 0x80000000
s_andn2_b32 s15, s49, 3
s_lshl_b32 s15, 15, s15
v_cndmask_b32 v253, v254, v253, vcc
s_lshl_b32 s16, 0x1111, s71
""")
    rL16 = 246
    NBR = 5
    def bfr(sig, ks, t): return (sig % NBR) * 24 + (ks * 3 + t) * 4
    def oacc(n, t):
        return (f"v[{120+(n*3+t)*16}:{135+(n*3+t)*16}]" if n < 2 else f"a[{((n-2)*3+t)*16}:{((n-2)*3+t)*16+15}]")
    RD = 4
    GR = [(0, ks, n) for ks in range(2) for n in range(3)] + [(0, 0, 3), (0, 1, 3)]
    for sig in range(1, 14): GR += [(sig, ks, n) for ks in range(2) for n in range(4)]
    GR += [(sig, ks, n) for sig in (14, 15) for ks in range(2) for n in (2, 3)] + [(sig, ks, n) for sig in (14, 15) for ks in range(2) for n in (0, 1)]
    def a_rd(k, sec):
        sig, ks, n = GR[k]
        b = fr(k) + 2 * sec
        a = WSL[sig % NSL]; w = a // WIN
        return f"ds_read_b64_tr_b16 a[{b}:{b+1}], v{240 + 2*w + (n & 1)} offset:{a - w*WIN + (2*ks + sec)*4096 + (n>>1)*1024}"
    def op_mfma(k, t):
        sig, ks, n = GR[k]
        b = bfr(sig, ks, t); d = oacc(n, t)
        return f"v_mfma_f32_32x32x16_bf16 {d}, a[{fr(k)}:{fr(k)+3}], v[{b}:{b+3}], {'0' if (sig == 0 and ks == 0) else d}"
    for k in range(RD):
        I(a_rd(k, 0)); I(a_rd(k, 1))
    def norm_unit(dt, pk):
        out = []
        for t in range(3):
            for k2 in range(2):
                o = (dt * 3 + t) * 16 + 8 * k2
                tb = 216 if k2 == 0 else 230
                out += [f"v_accvgpr_read_b32 v{tb+r}, a{o+r}" for r in range(8)]
                if pk: out += [f"v_pk_mul_f32 v[{tb+2*pr}:{tb+2*pr+1}], v[{tb+2*pr}:{tb+2*pr+1}], v[{RC[t]}:{RC[t]+1}]" for pr in range(4)]
                else: out += [f"v_mul_f32 v{tb+r}, v{RC[t]}, v{tb+r}" for r in range(8)]
                b = bfr(dt, k2, t)
                out += [f"v_cvt_pk_bf16_f32 v{b+pr}, v{tb+2*pr}, v{tb+2*pr+1}" for pr in range(4)]
                out.append(f"s_add_u32 s67, s63, {(2*dt+k2)*3072}")
                out.append(Ins(f"buffer_store_dwordx4 v[{b}:{b+3}], v{rL16}, s[44:47], s67 offen offset:{t*1024} {OPT['ost']}", lw=["OA" if dt < 2 else "OB"]))
        return out
    for x in norm_unit(0, True): em(p, x)
    stamp(p, 8)
    nrm = []
    for dt, dl in ((1, 18), (2, 48), (3, 72)):
        nrm += [(x, 0, dl - 2) for x in norm_unit(dt, OPT['npk'])]
    def ox_load(sig):
        rho, dq = step_of(sig)
        out = []
        for ks in range(2):
            for t in range(3):
                b = bfr(sig, ks, t)
                out.append(([f"s_add_u32 s60, s{OXS[rho]}, {(2*dq+ks)*3072}"] if t == 0 else [],
                            f"buffer_load_dwordx4 v[{b}:{b+3}], v{rL16}, s[44:47], s60 offen offset:{t*1024} {OPT['oxl']}"))
        return out
    al = Slots()
    for k in range(len(GR)):
        kn = k + RD
        if kn < len(GR):
            nxt = (kn >> 3) != (k >> 3)
            g0 = 3 * k + (2 if nxt else 0)
            al.put(g0, a_rd(kn, 0)); al.put(min(g0 + 1, (k >> 3) * 24 + 23), a_rd(kn, 1))
    def bar(g, need, extra=()):
        al.put(g, ["s_waitcnt lgkmcnt(0)", Ins("s_barrier", lr=list(need))] + list(extra))
    PA, PL, PB, PL2 = OPT['pa'], OPT['pl'], 3 * 24 + 13, OPT['pl2']
    al.put(PA, [Ins("s_barrier", lr=["OA"]), "s_or_b32 s66, s13, 0x20", "v_mov_b32 v247, s66", f"buffer_store_dword v247, v{vSY}, s[4:7], s52 offen sc1"])
    for s_ in (3, 5, 7, 9, 11, 13):
        ex = ["s_or_b32 s66, s13, 0x60", "v_mov_b32 v247, s66", f"buffer_store_dword v247, v{vSY}, s[4:7], s52 offen sc1"] if s_ == OPT['pbs'] else []
        bar(s_ * 24 + 13, [f"W{s_+1}", f"W{s_+2}"] + (["OB"] if s_ == OPT['pbs'] else []), ex)
    used = set([PA, OPT['pbs'] * 24 + 13])
    def place(g0, lst, stride):
        gs = []; g = g0
        for _ in lst:
            while g in used or g in (PL, PL2): g += 1
            gs.append(g); used.add(g); g += stride
        put_vm(al, gs, lst); return g
    for pl_ in (PL, PL2):
        al.put(pl_ - OPT['pe'], f"buffer_load_dword v254, v253, s[4:7], s53 offen sc1"); used.add(pl_ - OPT['pe'])
    def chk(tl, g):
        nb = (tl - 1 if tl % 2 == 0 else tl - 2) * 24 + 13
        assert g + OPT['wmar'] <= nb, f"wo tile {tl} issued at {g}, needed by barrier {nb}"
    g = OPT['w6']
    for tl in range(NWPRE, NSL):
        g = place(g, wo_tile(tl), OPT['w6s']); chk(tl, g)
    for tl in range(NSL, 16):
        st = tl - NSL
        sb = 3 if st <= 3 else (st if st % 2 else st + 1)
        g = place(max(g, sb * 24 + 16), wo_tile(tl), OPT['wls']); chk(tl, g)
    g = PL + 1
    for sig in range(4, 16):
        g = max(g, (sig - NBR + 1) * 24 + 1)
        if sig >= 10: g = max(g, PL2 + 1)
        g = place(g, ox_load(sig), OPT['oxs'] if sig < 4 + OPT['oxn'] else OPT['oxt'])
        if OPT.get('verbose'): sys.stderr.write(f"ox {sig}: end gap {g} need {sig*24}\n")
        assert g <= min(sig * 24, 14 * 24 + 12)
    XREG = [16512, 65792, 65792 + 24576, 65792 + 2 * 24576]
    fs = """s_cmp_eq_u32 s3, 0\ns_cselect_b32 s66, X0, X1
s_cmp_eq_u32 s3, 2\ns_cselect_b32 s66, X2, s66
s_cmp_eq_u32 s3, 3\ns_cselect_b32 s66, X3, s66""".split('\n')
    setup = [f"s_mul_i32 s66, s3, 24576", f"s_add_u32 s66, s66, {65792 - 24576}", f"s_cmp_eq_u32 s3, 0\ns_cselect_b32 s66, 16512, s66", f"v_add_u32 v248, s66, v{rL16}",
             "s_xor_b32 s67, s3, 2", "s_mul_i32 s66, s67, 24576", f"s_add_u32 s66, s66, {65792 - 24576}", "s_cmp_eq_u32 s67, 0\ns_cselect_b32 s66, 16512, s66", f"v_add_u32 v249, s66, v{rL16}",
             f"s_add_u32 s28, s18, {P_WS_OFF}\ns_addc_u32 s29, s19, 0", "s_and_b32 s29, s29, 0xffff", f"s_mov_b32 s30, {P_BYTES}",
             "s_lshr_b32 s66, s49, 2", "s_lshl_b32 s66, s66, 4", "s_add_u32 s66, s66, s48", "s_mul_i32 s66, s66, 6", "s_and_b32 s67, s3, 1", "s_mul_i32 s67, s67, 3",
             "s_add_u32 s66, s66, s67", "s_lshl_b32 s66, s66, 15", "s_lshl_b32 s67, s71, 13", "s_add_u32 s66, s66, s67", "s_lshr_b32 s67, s3, 1", "s_lshl_b32 s67, s67, 12",
             "s_add_u32 s66, s66, s67"]
    for i, x in enumerate(setup): al.put(12 * 24 + i, x)
    E0 = 15 * 24
    for i in range(24): al.put(E0 + 1 + i // 2 + (0 if i < 12 else 1), f"ds_write_b128 v248, a[{4*i}:{4*i+3}] offset:{i*1024}")
    al.put(E0 + 17, ["s_waitcnt lgkmcnt(0)", "s_barrier"])
    def xr(i): return 24 + 4 * i if i < 18 else 216 + 4 * (i - 18)
    for i in range(24): al.put(E0 + 18 + i // 4, f"ds_read_b128 v[{xr(i)}:{xr(i)+3}], v249 offset:{i*1024}")
    if OPT['st2']:
        for idx, s_ in ((2, 8), (3, 12)): al.put(s_ * 24 - 1, stamp_ops(idx))
    allm = [op_mfma(k, t) for k in range(len(GR)) for t in range(3)]
    def seg(g0, g1, streams=(), budget=None):
        r = Slots()
        for k_, v_ in al.items():
            if g0 <= k_ < g1: r[k_ - g0] = list(v_)
        schedule(p, allm[g0:g1], r, streams, budget)
    def poll(tag, bit, mask):
        p.raw(f"""
s_mov_b32 s51, 0
s_cmp_lg_u32 s3, 0
s_cbranch_scc1 L1_go{tag}
L1_poll{tag}:
s_waitcnt vmcnt(0)
v_xor_b32 v254, s13, v254
v_and_b32 v254, {(~(0xE0 & ~bit)) & 0xffffffff:#x}, v254
v_cmp_eq_u32 vcc, {bit}, v254
s_nop 3
s_and_b32 s68, vcc_lo, {mask}
s_cmp_eq_u32 s68, {mask}
s_cbranch_scc1 L1_go{tag}
s_sleep 1
buffer_load_dword v254, v253, s[4:7], s53 offen sc1
s_add_u32 s51, s51, 1
s_cmp_lt_u32 s51, 0x40000
s_cbranch_scc1 L1_poll{tag}
L1_go{tag}:
""")
        I("s_barrier")
    assert PL >= 72
    seg(0, PL, [nrm], lambda g: OPT['nbud'])
    poll("a", 0x20, "s15")
    stamp(p, 9)
    seg(PL, PL2)
    poll("b", 0x40, "s15")
    seg(PL2, len(allm))
    if OPT['st2']: stamp(p, 4)
    for n in range(2):
        for t in range(3):
            o = 120 + (n * 3 + t) * 16
            for q4 in range(4):
                x = xr((n * 3 + t) * 4 + q4)
                I(f"v_pk_add_f32 v[{o+4*q4}:{o+4*q4+1}], v[{o+4*q4}:{o+4*q4+1}], v[{x}:{x+1}]")
                I(f"v_pk_add_f32 v[{o+4*q4+2}:{o+4*q4+3}], v[{o+4*q4+2}:{o+4*q4+3}], v[{x+2}:{x+3}]")
            for pr in range(8): I(f"v_cvt_pk_bf16_f32 v{o+pr}, v{o+2*pr}, v{o+2*pr+1}")
            I(f"s_add_u32 s67, s66, {t*32768}")
            for s2 in range(2):
                I(f"buffer_store_dwordx4 v[{o+4*s2}:{o+4*s2+3}], v{rL16}, s[28:31], s67 offen offset:{(n*2+s2)*1024} {OPT['pst']}")
    I(f"""
v_lshrrev_b32 v2, 3, v{rLn}
v_and_b32 v3, 7, v{rLn}
v_lshlrev_b32 v4, 9, v2
v_lshl_add_u32 v4, v3, 4, v4
v_lshlrev_b32 v5, 4, v2
v_lshl_add_u32 v5, v3, 10, v5
s_load_dwordx2 s[20:21], s[0:1], 40
s_lshr_b32 s66, s49, 2
s_mul_i32 s66, s66, 12
s_mul_i32 s67, s3, 3
s_add_u32 s66, s66, s67
s_mul_i32 s60, s48, {6*32768}
s_lshl_b32 s67, s71, 13
s_add_u32 s61, s60, s67
s_lshl_b32 s67, s71, 8
s_add_u32 s60, s60, s67
""")
    for i in range(3):
        I(f"""
s_add_u32 s67, s66, {i}
s_lshr_b32 s68, s67, 3
s_lshl_b32 s68, s68, 15
s_bfe_u32 s69, s67, 0x20001
s_lshl_b32 s59, s69, 7
s_add_u32 s{32+i}, s61, s68
s_add_u32 s{32+i}, s{32+i}, s59
s_and_b32 s59, s67, 1
s_lshl_b32 s62, s59, 12
s_add_u32 s{32+i}, s{32+i}, s62
s_lshl_b32 s69, s69, 13
s_add_u32 s{36+i}, s60, s68
s_add_u32 s{36+i}, s{36+i}, s69
s_lshl_b32 s59, s59, 7
s_add_u32 s{36+i}, s{36+i}, s59
""")
    I(f"""
s_or_b32 s66, s13, 0xe0
v_mov_b32 v247, s66
s_waitcnt vmcnt(0) lgkmcnt(0)
s_barrier
buffer_store_dword v247, v{vSY}, s[4:7], s52 offen sc1
buffer_load_dword v254, v253, s[4:7], s53 offen sc1
s_and_b32 s21, s21, 0xffff
s_mov_b32 s22, {16*192*1024}
s_mov_b32 s23, 0x00020000
""")
    if OPT['st2']: stamp(p, 5)
    poll("c", 0x80, "s16")
    if OPT['st2']: stamp(p, 6)
    for i in range(3):
        for g_ in range(4):
            I(f"buffer_load_dwordx4 v[{8+16*i+4*g_}:{11+16*i+4*g_}], v4, s[28:31], s{32+i} offen sc1")
            if g_ < 3: I(f"s_add_u32 s{32+i}, s{32+i}, {16*192*1024}")
    for i in range(3):
        for d in range(4):
            for g_ in range(4):
                r = 8 + 16 * i + 4 * g_ + d
                I(f"v_lshlrev_b32 v{64+2*g_}, 16, v{r}\nv_and_b32 v{65+2*g_}, 0xffff0000, v{r}")
            I(f"v_pk_add_f32 v[64:65], v[64:65], v[66:67]\nv_pk_add_f32 v[68:69], v[68:69], v[70:71]\nv_pk_add_f32 v[64:65], v[64:65], v[68:69]")
            I(f"v_cvt_pk_bf16_f32 v{72+4*i+d}, v64, v65")
        I(f"buffer_store_dwordx4 v[{72+4*i}:{75+4*i}], v5, s[20:23], s{36+i} offen")
    if OPT['stamp']:
        I("s_waitcnt vmcnt(0)")
        stamp(p, 1)
        stamp_out(p, 10, 0)
    I("L1_end:\ns_endpgm\nL1_code_end:")
    return p

def gen_slow():
    p = Prog(); I = p.I
    M = [232, 233, 234]; T = [235, 236, 237]
    M = [S[1], S[1] + 1, S[1] + 2]; T = [S[1] + 3, S[1] + 4, S[1] + 5]
    I("L1_slow:\ns_nop 15\ns_waitcnt vmcnt(0) lgkmcnt(0)\ns_barrier")
    I(f"v_mbcnt_lo_u32_b32 v{S[1]+8}, -1, 0\nv_mbcnt_hi_u32_b32 v{S[1]+8}, -1, v{S[1]+8}")
    for x in kv_addr_setup(f"v{S[1]+8}", S[1] + 9): I(x)
    for t in range(3): I(f"v_mov_b32 v{M[t]}, 0xff800000")
    def load(kinds):
        for kind in kinds:
            pre, dm = kv_tile(kind, 0, KS[0] if kind == 'K' else VS[0], soff="s60", tag=False)
            for x in pre: I(x)
            for d in dm: p.add(d)
        I("s_waitcnt vmcnt(0)\ns_barrier")
    I("s_mov_b32 s60, 0\nL1_s1:")
    p.loop_begin(2)
    load("K")
    for ks in range(8): I(k_read(ks, KS[0]))
    for ks in range(8):
        for t in range(3): I(s_mfma(S[0], t, ks, True))
    for t in range(3):
        b = S[0] + 16 * t
        for r in range(0, 16, 2): I(f"v_max3_f32 v{M[t]}, v{M[t]}, v{b+r}, v{b+r+1}")
    I("s_barrier\ns_add_u32 s60, s60, 8192\ns_cmp_lt_u32 s60, 131072\ns_cbranch_scc1 L1_s1")
    p.loop_end()
    for t in range(3): I(f"v_mov_b32 v{T[t]}, v{M[t]}")
    for t in range(3): I(f"v_permlane32_swap_b32 v{T[t]}, v{M[t]}")
    for t in range(3): I(f"v_max_f32 v{M[t]}, v{M[t]}, v{T[t]}")
    for t in range(3):
        for r in range(16): I(f"v_sub_f32 v{NEGM[t]+r}, 0, v{M[t]}")
        I(f"v_mov_b32 v{vL[t]}, 0")
    for r in range(192): I(f"v_accvgpr_write_b32 a{r}, 0")
    I("s_mov_b32 s60, 0\nL1_s2:")
    p.loop_begin(2)
    load("KV")
    for ks in range(8): I(k_read(ks, KS[0]))
    for ks in range(8):
        for t in range(3): I(s_mfma(S[0], t, ks))
    for j in range(8):
        I(v_read(j, 0, VS[0])); I(v_read(j, 1, VS[0]))
    for e in range(49):
        for x in sm_ops(S[0], e): I(x)
    for j in range(8):
        for t in range(3): I(pv_mfma(S[0], j, t))
    I("s_barrier\ns_add_u32 s60, s60, 8192\ns_cmp_lt_u32 s60, 131072\ns_cbranch_scc1 L1_s2")
    p.loop_end()
    for x in fin_ops(): I(x)
    for sig in range(NWPRE):
        for pre, d in wo_tile(sig):
            for x in pre: I(x)
            p.add(d)
    I("s_waitcnt vmcnt(0)\ns_barrier\ns_nop 15\ns_branch L1_norm")
    return p

def gen_red():
    p = Prog(); I = p.I
    I("s_cmp_ge_u32 s2, 768\ns_cbranch_scc1 L2_end")
    I("s_load_dwordx2 s[14:15], s[0:1], 40\ns_load_dwordx2 s[18:19], s[0:1], 56")
    stamp(p, 0)
    I(f"""
v_lshrrev_b32 v1, 6, v0
v_and_b32 v0, 63, v0
v_readfirstlane_b32 s3, v1
v_lshrrev_b32 v2, 3, v0
v_and_b32 v3, 7, v0
v_lshlrev_b32 v4, 9, v2
v_lshl_add_u32 v4, v3, 4, v4
v_lshlrev_b32 v5, 4, v2
v_lshl_add_u32 v5, v3, 10, v5
s_lshl_b32 s4, s2, 2
s_add_u32 s4, s4, s3
s_lshr_b32 s5, s4, 5
s_bfe_u32 s6, s4, 0x20003
s_and_b32 s7, s4, 7
s_lshl_b32 s8, s5, 15
s_lshl_b32 s9, s7, 12
s_add_u32 s9, s9, s8
s_lshl_b32 s10, s6, 7
s_add_u32 s9, s9, s10
s_lshl_b32 s10, s6, 13
s_add_u32 s8, s8, s10
s_lshl_b32 s10, s7, 7
s_add_u32 s8, s8, s10
s_waitcnt lgkmcnt(0)
s_add_u32 s20, s18, {P_WS_OFF}
s_addc_u32 s21, s19, 0
s_and_b32 s21, s21, 0xffff
s_mov_b32 s22, {P_BYTES}
s_mov_b32 s23, 0x00020000
""")
    for g in range(4):
        I(f"buffer_load_dwordx4 v[{8+4*g}:{11+4*g}], v4, s[20:23], s9 offen {OPT['rld']}")
        if g < 3: I(f"s_add_u32 s9, s9, {16*192*1024}")
    srd(p, 24, 14, 15, 16 * 192 * 1024)
    for d in range(4):
        for g in range(4):
            r = 8 + 4 * g + d
            I(f"v_lshlrev_b32 v{24+2*g}, 16, v{r}\nv_and_b32 v{25+2*g}, 0xffff0000, v{r}")
        I(f"v_pk_add_f32 v[24:25], v[24:25], v[26:27]\nv_pk_add_f32 v[28:29], v[28:29], v[30:31]\nv_pk_add_f32 v[24:25], v[24:25], v[28:29]")
        I(f"v_cvt_pk_bf16_f32 v{32+d}, v24, v25")
    I("buffer_store_dwordx4 v[32:35], v5, s[24:27], s8 offen")
    if OPT['stamp']:
        I("s_waitcnt vmcnt(0)")
        stamp(p, 1)
        I("s_cmp_ge_u32 s2, 256\ns_cbranch_scc1 L2_end\ns_mul_i32 s2, s2, 1")
        stamp_out(p, 2, 0x20000)
    I("L2_end:\ns_endpgm")
    return p

def kd(name, vg, acc, sg=102):
    return f""".p2align 6
.amdhsa_kernel {name}
  .amdhsa_next_free_vgpr {vg}
  .amdhsa_next_free_sgpr {sg}
  .amdhsa_accum_offset {acc}
  .amdhsa_group_segment_fixed_size 0
  .amdhsa_kernarg_size 64
  .amdhsa_user_sgpr_count 2
  .amdhsa_user_sgpr_kernarg_segment_ptr 1
  .amdhsa_system_sgpr_workgroup_id_x 1
  .amdhsa_float_denorm_mode_32 3
.end_amdhsa_kernel
"""

def main():
    k1 = gen_k1(); k1.resolve(); t1, s1 = k1.emit()
    ks = gen_slow(); ks.resolve(); ts, _ = ks.emit(); t1 += ts
    sys.stderr.write(f"k1 {s1}\n")
    hdr = open('cdna_kernels/' + NAME + '.s.ref').read().split('\n')
    top = [l for l in hdr if l.startswith(';') and '@launch' not in l]
    out = '\n'.join(top) + f"""
; @launch grid=(256,1,1) block=(256,1,1) lds=163840
.amdgcn_target "amdgcn-amd-amdhsa--gfx950"
.text
.globl {NAME}_kernel
.p2align 8
.type {NAME}_kernel,@function
{NAME}_kernel:
{t1}
.section .rodata,"a"
{kd(NAME + '_kernel', 512, 256)}"""
    open(sys.argv[1], 'w').write(out)
main()
```

```python
import sys, math, struct
from asmlib import *
NAME = "standalone__mha_block_cached__near_ridge"
OPT = dict(stamp=0, kfl='nt', vfl='nt', ldt=3, lat=6, lst=2, tlb=0, dfirst=26, kmar=24, la=0, ws2=2, npk=1, pa=40, pl=72, pl2=168, pbs=5, nbud=32, w6=59, w6s=2, wmar=20, oxt=3, st2=0, kvsz=1, xw=1, rh=2, rb=1, rmask=7, pre1=8, bud=24, tbud=28, dcost=12,
           ost='sc1', oxl='sc1', pst='sc1', rld='', pub=13, pol=3, pe=12, oxs=1, oxn=2, wls=6, ctouch=1,
           dlast=664, thr=2.0**40, xreg=1)
for a in sys.argv[2:]:
    k, v = a.split('=')
    try: OPT[k] = int(v, 0)
    except ValueError:
        try: OPT[k] = float(v)
        except ValueError: OPT[k] = v.replace('+', ' ')

def f2u(x): return struct.unpack('<I', struct.pack('<f', x))[0]
SCALE = math.log2(math.e) / math.sqrt(128.0)

XBLK = 1056; XSZ = 24 * XBLK
WQSZ = 32768
BUFSZ = XSZ + WQSZ
BUFA = 163840 - 2 * BUFSZ
KRG = 4128
KSZ = 4 * KRG; VSZ = 16384
KS = [0, 32896, 65792, 98688, 131584]
VS = [16512, 49408, 82304, 115200]
SPARE = 148096
WIN = 65792
O_WS_OFF = 0x1000000; O_BYTES = 16 * 192 * 4096 * 2
FLAG_OFF = 0x800000
P_WS_OFF = 0x4000000; P_BYTES = 4 * 16 * 192 * 512 * 2

def srd(p, d, lo, hi, size):
    p.I(f"s_mov_b32 s{d}, s{lo}\ns_and_b32 s{d+1}, s{hi}, 0xffff\ns_mov_b32 s{d+2}, {size}\ns_mov_b32 s{d+3}, 0x00020000")
def stamp_ops(idx):
    if not OPT['stamp'] or (OPT['stamp'] == 3 and idx > 1): return []
    return ["s_memrealtime s[78:79]", "s_memtime s[76:77]", "s_waitcnt lgkmcnt(0)", f"s_mov_b32 s{80+idx}, s78", f"s_mov_b32 s{90+idx}, s76"]
def stamp(p, idx):
    for x in stamp_ops(idx): p.I(x)
def stamp_out(p, nst, base_off):
    if not OPT['stamp']: return
    p.I(f"""
s_mov_b32 s72, s18
s_and_b32 s73, s19, 0xffff
s_mov_b32 s74, 0x1000000
s_mov_b32 s75, 0x00020000
s_lshl_b32 s76, s2, 2
s_add_u32 s76, s76, s3
s_lshl_b32 s76, s76, 7
s_add_u32 s76, s76, {base_off}
v_mov_b32 v1, 0
""")
    for i in range(nst):
        p.I(f"v_mov_b32 v2, s{80+i}\nbuffer_store_dword v2, v1, s[72:75], s76 offen offset:{4*i}")
        p.I(f"v_mov_b32 v2, s{90+i}\nbuffer_store_dword v2, v1, s[72:75], s76 offen offset:{64+4*i}")

def txt(x): return x.text if isinstance(x, Ins) else x
def cost(x):
    mn = txt(x).split()[0]
    if mn.startswith('v_exp') or mn.startswith('v_rcp'): return 8
    if mn.startswith('ds_write'): return 8
    if mn.startswith('buffer_') or mn.startswith('global_'): return OPT['dcost']
    if mn.startswith('v_pk_'): return 8
    return 4
class Slots(dict):
    def put(self, g, x): self.setdefault(g, []).extend(x if isinstance(x, list) else [x])
def em(p, x):
    if isinstance(x, Ins): p.add(x)
    else: p.I(x)
def schedule(p, mfmas, fixed, streams=(), budget=None):
    streams = [list(s) for s in streams]
    for x in fixed.get(-1, []): em(p, x)
    for g, m in enumerate(mfmas):
        p.I(m)
        used = 0
        for f in fixed.get(g, []):
            em(p, f); used += cost(f)
        b = budget(g) if budget else OPT['bud']
        while True:
            c = [s for s in streams if s and s[0][1] <= g]
            if not c: break
            fs = [s for s in c if any(x[2] <= g for x in s[:200])]
            s = fs[0] if fs else min(c, key=lambda s: min(x[2] for x in s[:8]))
            if fs or used + cost(s[0][0]) <= b:
                op = s.pop(0)[0]; em(p, op); used += cost(op)
            else: break
    for s in streams:
        for op, _, _ in s: em(p, op)
    for g in fixed:
        assert g < len(mfmas), f"fixed slot {g} beyond region {len(mfmas)}: {fixed[g]}"

vK, vV0, vV1 = 240, 241, 242
vOK = [243, 244]; vOV = [245, 246]
vL = [247, 248, 249]
vX, vW0, vW1, vOX, vOW = 250, 251, 252, 253, 254
vSY = 255
S = [64, 112]; NEGM = [224, 160, 176]; QB = [192, 0, 32]
FR = 224
def fr(n): return FR + (n % 8) * 4
def qfrag(t, ksd): b = QB[t] + 4 * ksd; return f"v[{b}:{b+3}]"
def acc(t, dt): return (t * 4 + dt) * 16

def kv_addr_setup(lane, t0):
    a, b, c, d, e = [f"v{t0+i}" for i in range(5)]
    return f"""v_lshrrev_b32 {a}, 3, {lane}
v_and_b32 {b}, 7, {lane}
v_bfe_u32 {c}, {lane}, 4, 1
v_xor_b32 {d}, {b}, {c}
v_lshlrev_b32 {d}, 4, {d}
v_lshlrev_b32 {e}, 2, {c}
v_xor_b32 {e}, {b}, {e}
v_lshlrev_b32 {e}, 4, {e}
v_lshl_add_u32 {d}, {a}, 8, {d}
v_lshl_add_u32 {e}, {a}, 8, {e}
s_lshl_b32 s66, s3, 11
s_add_u32 s67, s66, 128
s_add_u32 s66, s66, 1024
v_add_u32 v{vOK[0]}, s66, {d}
v_add_u32 v{vOK[1]}, s67, {d}
v_add_u32 v{vOV[0]}, s66, {e}
v_add_u32 v{vOV[1]}, s67, {e}
s_lshr_b32 s66, s3, 1
s_lshl_b32 s66, s66, 11
v_bfe_u32 {a}, {lane}, 3, 2
v_mul_u32_u24 {a}, {KRG}, {a}
v_lshl_add_u32 {a}, {b}, 7, {a}
v_lshrrev_b32 {c}, 5, {lane}
v_bfe_u32 {d}, {lane}, 1, 1
v_xor_b32 {d}, {c}, {d}
v_lshl_add_u32 {a}, {d}, 4, {a}
v_add_u32 v{vK}, s66, {a}
v_bfe_u32 {a}, {lane}, 2, 2
v_lshlrev_b32 {a}, 7, {a}
v_lshl_add_u32 {a}, {c}, 9, {a}
v_bfe_u32 {d}, {lane}, 3, 1
v_lshl_add_u32 {a}, {d}, 6, {a}
v_bfe_u32 {d}, {lane}, 4, 1
v_lshl_add_u32 {a}, {d}, 5, {a}
v_and_b32 {d}, 3, {lane}
v_lshl_add_u32 {a}, {d}, 3, {a}
v_add_u32 v{vV0}, s66, {a}
v_xor_b32 v{vV1}, 64, v{vV0}
s_mul_i32 s61, s3, {KRG}
s_lshl_b32 s62, s3, 12""".split('\n')

def kv_tile(kind, n, dst, soff=None, tag=True):
    pre = [f"s_add_u32 m0, s{61 if kind == 'K' else 62}, {dst}"]
    if soff is None:
        pre.append(f"s_mov_b32 s59, {n*8192}"); soff = "s59"
    dm = []
    for hd in range(2):
        for half in range(2):
            sr = (28 if kind == 'K' else 36) + 4 * hd
            v = (vOK if kind == 'K' else vOV)[half]
            dm.append(Ins(f"buffer_load_dwordx4 v{v}, s[{sr}:{sr+3}], {soff} offen offset:{hd*2048+half*1024} {OPT['kfl'] if kind == 'K' else OPT['vfl']} lds", lw=[f"{kind}{n}"] if tag else []))
    return pre, dm
def k_read(ks, off): b = fr(ks); return f"ds_read_b128 a[{b}:{b+3}], v{vK} offset:{off + (ks>>2)*1024 + (ks&3)*32}"
def v_read(j, sec, off):
    ks, dt = j >> 2, j & 3
    b = fr(8 + j) + 2 * sec
    return f"ds_read_b64_tr_b16 a[{b}:{b+1}], v{vV1 if dt & 1 else vV0} offset:{off + (2*ks + sec)*4096 + (dt>>1)*1024}"
def s_mfma(buf, t, ks, czero=False):
    d = f"v[{buf+t*16}:{buf+t*16+15}]"
    c = d if ks else ("0" if czero else f"v[{NEGM[t]}:{NEGM[t]+15}]")
    return f"v_mfma_f32_32x32x16_bf16 {d}, a[{fr(ks)}:{fr(ks)+3}], {qfrag(t, ks)}, {c}"
def pv_mfma(buf, j, t, czero=False):
    ks, dt = j >> 2, j & 3
    o = (dt * 3 + t) * 16
    b = buf + t * 16 + 8 * ks
    c = "0" if (czero and ks == 0) else f"a[{o}:{o+15}]"
    return f"v_mfma_f32_32x32x16_bf16 a[{o}:{o+15}], a[{fr(8+j)}:{fr(8+j)+3}], v[{b}:{b+3}], {c}"
def ereg(buf, e):
    h, t, j = e // 24, (e % 24) // 8, e % 8
    return buf + t * 16 + 8 * h + j, t
def sm_ops(buf, e):
    out = []
    if e < 48:
        r, t = ereg(buf, e); out.append(f"v_exp_f32 v{r}, v{r}")
    if 1 <= e <= 48:
        r, t = ereg(buf, e - 1); out.append(f"v_add_f32 v{vL[t]}, v{vL[t]}, v{r}")
    if e >= 2 and e % 2 == 0 and e <= 48:
        r, t = ereg(buf, e - 2); base = r - ((e - 2) % 8)
        out.append(f"v_cvt_pk_bf16_f32 v{base + ((e-2) % 8)//2}, v{r}, v{r+1}")
    return out

rOW = [250, 251]; rLn = 252
rA = [240, 241]
RC = [224, 226, 228]
WSL = [KS[1], KS[2], KS[3], VS[0], KS[4], VS[1], KS[0], VS[2], VS[3]]
NSL = len(WSL)
def step_of(sig): return (0, sig) if sig < 4 else (1 + (sig - 4) % 3, (sig - 4) // 3)
def wo_setup():
    a, b, c = "v253", "v254", f"v{rOW[1]}"
    out = f"""v_mbcnt_lo_u32_b32 v{rLn}, -1, 0
v_mbcnt_hi_u32_b32 v{rLn}, -1, v{rLn}
s_and_b32 s71, s49, 3
s_andn2_b32 s70, s49, 3
s_lshl_b32 s67, s71, 8
s_lshl_b32 s68, s3, 13
s_add_u32 s69, s68, {0x20000 - 2048}
v_lshrrev_b32 {a}, 3, v{rLn}
v_and_b32 {b}, 7, v{rLn}
v_bfe_u32 {c}, v{rLn}, 4, 1
v_lshlrev_b32 {c}, 2, {c}
v_xor_b32 {b}, {b}, {c}
v_lshlrev_b32 {b}, 4, {b}
v_lshl_add_u32 {b}, {a}, 10, {b}
v_add_u32 v{rOW[0]}, s68, {b}
v_add_u32 v{rOW[1]}, s69, {b}""".split('\n')
    for rho in range(4):
        out += [f"s_add_u32 s69, s71, {rho}", "s_and_b32 s69, s69, 3", "s_add_u32 s69, s69, s70", f"s_lshl_b32 s{WOB[rho]}, s69, 18", f"s_add_u32 s{WOB[rho]}, s{WOB[rho]}, s67"]
    return out
WOB = [50, 56, 57, 58]
def wo_tile(sig):
    rho, dq = step_of(sig)
    dst = WSL[sig % NSL]
    out = []
    for hd in range(2):
        for pos in range(2):
            half = pos ^ hd
            d = dq * 32768 + half * 128 - pos * 1024 + 1024
            pre = [f"s_add_u32 s59, s{WOB[rho]}, {d}"]
            if hd == 0 and pos == 0: pre = [f"s_add_u32 m0, s62, {dst}"] + pre
            out.append((pre, Ins(f"buffer_load_dwordx4 v{rOW[hd]}, s[8:11], s59 offen offset:{hd*2048+pos*1024} lds", lw=[f"W{sig}"])))
    return out
def fin_ops():
    T = [232, 233, 234]
    fin = []
    for t in range(3): fin.append(f"v_mov_b32 v{T[t]}, v{vL[t]}")
    for t in range(3): fin.append(f"v_permlane32_swap_b32 v{T[t]}, v{vL[t]}")
    for t in range(3): fin.append(f"v_add_f32 v{vL[t]}, v{vL[t]}, v{T[t]}")
    for t in range(3): fin.append(f"v_rcp_f32 v{RC[t]}, v{vL[t]}")
    for t in range(3): fin.append(f"v_mov_b32 v{RC[t]+1}, v{RC[t]}")
    return fin
NWPRE = OPT.get('nwpre', 6)

OXS = [63, 64, 65, 70]
rL16 = 252
RAW = [[253, 240], [243, 244], [245, 246]]
vPA, vPD, vFD = 254, 241, 242
NBR = 5
RD = 4
def bfr(sig, ks, t): return ((sig + 3) % NBR) * 24 + (ks * 3 + t) * 4
GR = [(0, ks, n) for ks in range(2) for n in range(3)] + [(0, 0, 3), (0, 1, 3)]
for _sig in range(1, 13): GR += [(_sig, ks, n) for ks in range(2) for n in range(4)]
GR += [(_sig, ks, n) for n in (2, 3, 0, 1) for _sig in (13, 14, 15) for ks in range(2)]
def a_rd(k, sec):
    sig, ks, n = GR[k]
    b = fr(k) + 2 * sec
    a = WSL[sig % NSL]; w = a // WIN
    return f"ds_read_b64_tr_b16 a[{b}:{b+1}], v{RAW[w][n & 1]} offset:{a - w*WIN + (2*ks + sec)*4096 + (n>>1)*1024}"
def op_setup():
    out = f"""s_lshl_b32 s68, s48, 1
s_and_b32 s69, s3, 1
s_add_u32 s68, s68, s69
s_lshl_b32 s68, s68, 5
s_lshr_b32 s69, s3, 1
s_add_u32 s68, s68, s69
s_lshl_b32 s69, s70, 1
s_add_u32 s68, s68, s69
s_lshl_b32 s15, 15, s70
s_lshl_b32 s16, 0x1111, s71""".split('\n')
    for rho in range(4):
        out += [f"s_add_u32 s69, s71, {rho}", "s_and_b32 s69, s69, 3", "s_lshl_b32 s69, s69, 1", "s_add_u32 s69, s69, s68", f"s_mul_i32 s{OXS[rho]}, s69, 24576"]
    out += f"""v_bfe_u32 v253, v{rLn}, 2, 2
v_lshlrev_b32 v253, 7, v253
v_lshrrev_b32 v254, 5, v{rLn}
v_lshl_add_u32 v253, v254, 9, v253
v_bfe_u32 v254, v{rLn}, 3, 1
v_lshl_add_u32 v253, v254, 6, v253
v_bfe_u32 v254, v{rLn}, 4, 1
v_lshl_add_u32 v253, v254, 5, v253
v_and_b32 v254, 1, v{rLn}
v_lshl_add_u32 v253, v254, 4, v253
v_bfe_u32 v254, v{rLn}, 1, 1
v_lshl_add_u32 v253, v254, 3, v253
s_lshr_b32 s69, s3, 1
s_lshl_b32 s69, s69, 11
v_add_u32 v253, s69, v253
s_lshl_b32 s69, s49, 2
s_add_u32 s52, s53, s69
v_lshrrev_b32 v254, 4, v{rLn}
v_add_u32 v254, s3, v254
v_min_u32 v254, 1, v254
v_lshlrev_b32 v254, 31, v254
v_lshl_add_u32 v254, v{rLn}, 2, v254
v_lshlrev_b32 v{rL16}, 4, v{rLn}""".split('\n')
    return out
def win_regs():
    return ["v_xor_b32 v240, 64, v253", f"v_add_u32 v243, {WIN}, v253", f"v_add_u32 v244, {WIN}, v240", f"v_add_u32 v245, {2*WIN}, v253", f"v_add_u32 v246, {2*WIN}, v240"]
def norm_unit(dt, pk, tbs=(216, 230)):
    out = []
    for t in range(3):
        for k2 in range(2):
            o = (dt * 3 + t) * 16 + 8 * k2
            tb = tbs[k2]
            out += [f"v_accvgpr_read_b32 v{tb+r}, a{o+r}" for r in range(8)]
            if pk: out += [f"v_pk_mul_f32 v[{tb+2*pr}:{tb+2*pr+1}], v[{tb+2*pr}:{tb+2*pr+1}], v[{RC[t]}:{RC[t]+1}]" for pr in range(4)]
            else: out += [f"v_mul_f32 v{tb+r}, v{RC[t]}, v{tb+r}" for r in range(8)]
            b = bfr(dt, k2, t)
            out += [f"v_cvt_pk_bf16_f32 v{b+pr}, v{tb+2*pr}, v{tb+2*pr+1}" for pr in range(4)]
            out.append(f"s_add_u32 s67, s63, {(2*dt+k2)*3072}")
            out.append(Ins(f"buffer_store_dwordx4 v[{b}:{b+3}], v{rL16}, s[44:47], s67 offen offset:{t*1024} {OPT['ost']}", lw=["OA" if dt < 2 else "OB"]))
    return out

def gen_k1():
    p = Prog(); I = p.I
    vM = [vX, vW0, vW1]; vT = [vOX, vOW, vOX]
    I("s_cmp_ge_u32 s2, 256\ns_cbranch_scc1 L1_end")
    stamp(p, 0)
    I("s_load_dwordx16 s[4:19], s[0:1], 0")
    I(f"""
v_lshrrev_b32 v1, 6, v0
v_min_u32 v{vSY}, 1, v0
v_lshlrev_b32 v{vSY}, 31, v{vSY}
v_lshrrev_b32 v230, 4, v0
v_min_u32 v230, 1, v230
v_lshlrev_b32 v230, 31, v230
v_lshl_add_u32 v230, v0, 2, v230
v_and_b32 v0, 63, v0
v_readfirstlane_b32 s3, v1
s_and_b32 s66, s2, 7
s_lshr_b32 s67, s2, 3
s_and_b32 s48, s66, 1
s_lshl_b32 s48, s48, 3
s_lshr_b32 s68, s67, 2
s_add_u32 s48, s48, s68
s_lshr_b32 s49, s66, 1
s_lshl_b32 s49, s49, 2
s_and_b32 s69, s67, 3
s_add_u32 s49, s49, s69
s_lshl_b32 s65, s66, 3
s_add_u32 s65, s65, s68
s_mul_i32 s52, s69, {OPT['rh']}
s_mul_i32 s68, s68, {OPT['rb']}
s_add_u32 s52, s52, s68
s_and_b32 s52, s52, {OPT['rmask']}
v_lshrrev_b32 v2, 3, v0
v_and_b32 v3, 7, v0
v_bfe_u32 v4, v0, 4, 1
v_xor_b32 v5, v3, v4
v_lshlrev_b32 v5, 4, v5
v_lshlrev_b32 v6, 2, v4
v_xor_b32 v6, v3, v6
v_lshlrev_b32 v6, 4, v6
v_lshl_add_u32 v{vOX}, v2, 10, v5
v_lshl_add_u32 v{vOW}, v2, 13, v6
s_mul_i32 s50, s48, {192*1024}
s_mul_i32 s66, s3, {48*1024}
s_add_u32 s50, s50, s66
s_lshl_b32 s51, s49, 9
s_lshl_b32 s66, s3, 7
s_add_u32 s51, s51, s66
s_mul_i32 s57, s3, {6*XBLK}
s_lshl_b32 s58, s3, 10
s_waitcnt lgkmcnt(0)
""")
    srd(p, 20, 4, 5, 16 * 192 * 1024 * OPT['xw'])
    srd(p, 24, 10, 11, 512 * 8192 * OPT['xw'])
    def stage_dma(st):
        buf = BUFA + (st & 1) * BUFSZ
        pre0 = ["s_lshl_b32 s54, s52, 7", "s_add_u32 s54, s54, s50", "s_lshl_b32 s55, s52, 19", "s_add_u32 s55, s55, s51",
                "s_add_u32 s52, s52, 1", "s_and_b32 s52, s52, 7"]
        out = []
        for j in range(6):
            out.append(([f"s_add_u32 m0, s57, {buf + j*XBLK}", f"s_add_u32 s56, s54, {j*8192}"],
                        Ins(f"buffer_load_dwordx4 v{vOX}, s[20:23], s56 offen lds", lw=[f"Q{st}"])))
        for rg in range(8):
            out.append(([f"s_add_u32 m0, s58, {buf + XSZ + rg*4096}", f"s_add_u32 s56, s55, {rg*65536}"],
                        Ins(f"buffer_load_dwordx4 v{vOW}, s[24:27], s56 offen lds", lw=[f"Q{st}"])))
        out[0] = (pre0 + out[0][0], out[0][1])
        return out
    def emit_vm(lst):
        for pre, x in lst:
            for y in pre: I(y)
            em(p, x)
    def touch(st_ahead):
        if not OPT['la']: return []
        return [([f"s_add_u32 s66, s52, {st_ahead}", "s_and_b32 s66, s66, 7", "s_lshl_b32 s67, s66, 7", "s_lshl_b32 s66, s66, 19"],
                 f"buffer_load_dword a{TCH[0] % 8 + 98}, v228, s[20:23], s67 offen"),
                ([], f"buffer_load_dword a{(TCH[0] + 1) % 8 + 98}, v229, s[24:27], s66 offen")] + [TCH.__setitem__(0, TCH[0] + 2)][:0]
    TCH = [0]
    if OPT['la']:
        I(f"""
v_min_u32 v228, 11, v0
v_lshlrev_b32 v228, 10, v228
s_mul_i32 s66, s48, {192*1024}
s_and_b32 s67, s49, 3
s_mul_i32 s67, s67, {48*1024}
s_add_u32 s66, s66, s67
s_mul_i32 s67, s3, {12*1024}
s_add_u32 s66, s66, s67
v_add_u32 v228, s66, v228
v_bfe_u32 v229, v0, 2, 1
v_lshlrev_b32 v229, 13, v229
v_and_b32 v7, 3, v0
v_lshl_add_u32 v229, v7, 7, v229
s_and_b32 s66, s48, 7
s_lshl_b32 s66, s66, 2
s_add_u32 s66, s66, s3
s_lshl_b32 s66, s66, 14
s_lshl_b32 s67, s49, 9
s_add_u32 s66, s66, s67
v_add_u32 v229, s66, v229
""")
        for a_ in range(1, OPT['la'] + 1): emit_vm(touch(a_))
    emit_vm(stage_dma(0))
    if OPT['ctouch']:
        I(f"""
s_getpc_b64 s[68:69]
L1_pc:
s_lshr_b32 s66, s2, 3
s_lshl_b32 s66, s66, 2
s_add_u32 s66, s66, s3
s_lshl_b32 s66, s66, 9
s_min_u32 s66, s66, L1_code_end-L1_pc-512
s_add_u32 s68, s68, s66
s_addc_u32 s69, s69, 0
v_lshlrev_b32 v7, 3, v0
global_load_dword a255, v7, s[68:69]
""")
    for x in kv_addr_setup("v0", 2): I(x)
    ksz = (131072 + 3072) * OPT['kvsz']
    I(f"""
s_lshl_b32 s66, s48, 5
s_lshl_b32 s67, s49, 1
s_add_u32 s66, s66, s67
s_lshl_b32 s66, s66, 17
s_add_u32 s28, s6, s66
s_addc_u32 s29, s7, 0
s_sub_u32 s28, s28, 1024
s_subb_u32 s29, s29, 0
s_and_b32 s29, s29, 0xffff
s_add_u32 s32, s28, {0x20000 - 2048}
s_addc_u32 s33, s29, 0
s_add_u32 s36, s8, s66
s_addc_u32 s37, s9, 0
s_sub_u32 s36, s36, 1024
s_subb_u32 s37, s37, 0
s_and_b32 s37, s37, 0xffff
s_add_u32 s40, s36, {0x20000 - 2048}
s_addc_u32 s41, s37, 0
s_mov_b32 s30, {(131072 + 1024) * OPT['kvsz']}
s_mov_b32 s34, {ksz}
s_mov_b32 s38, {(131072 + 1024) * OPT['kvsz']}
s_mov_b32 s42, {ksz}
s_mov_b32 s31, 0x00020000
s_mov_b32 s35, 0x00020000
s_mov_b32 s39, 0x00020000
s_mov_b32 s43, 0x00020000
s_add_u32 s44, s18, {O_WS_OFF}
s_addc_u32 s45, s19, 0
s_and_b32 s45, s45, 0xffff
s_mov_b32 s46, {P_WS_OFF - O_WS_OFF + P_BYTES}
s_mov_b32 s47, 0x00020000
s_mov_b32 s72, s16
s_and_b32 s73, s17, 0xffff
s_mov_b32 s74, 256
s_mov_b32 s75, 0x00020000
s_mov_b32 s64, {f2u(SCALE):#x}
s_add_u32 s4, s18, {FLAG_OFF}
s_addc_u32 s5, s19, 0
s_and_b32 s5, s5, 0xffff
s_mov_b32 s6, 8192
s_mov_b32 s7, 0x00020000
s_lshl_b32 s53, s48, 7
s_lshl_b32 s65, s48, 2
s_add_u32 s65, s65, 64
s_sub_u32 s8, s12, 1024
s_subb_u32 s9, s13, 0
s_and_b32 s9, s9, 0xffff
s_mov_b32 s10, {4096*1024+1024}
s_mov_b32 s11, 0x00020000
s_lshr_b32 s63, s49, 2
s_lshl_b32 s63, s63, 5
s_lshr_b32 s66, s2, 3
s_add_u32 s63, s63, s66
s_lshl_b32 s63, s63, 2
s_add_u32 s63, s63, s3
s_lshl_b32 s63, s63, 13
s_lshr_b32 s66, s3, 1
s_and_b32 s67, s3, 1
v_bfe_u32 v3, v0, 3, 2
v_mul_u32_u24 v3, {XBLK}, v3
v_and_b32 v4, 7, v0
v_lshl_add_u32 v3, v4, 7, v3
v_lshrrev_b32 v4, 5, v0
v_bfe_u32 v5, v0, 1, 1
v_xor_b32 v5, v4, v5
v_lshl_add_u32 v3, v5, 4, v3
s_mul_i32 s68, s67, {12*XBLK}
s_add_u32 s68, s68, {BUFA}
v_add_u32 v{vX}, s68, v3
v_bfe_u32 v2, v0, 2, 2
v_lshlrev_b32 v2, 7, v2
v_bfe_u32 v3, v0, 3, 1
v_lshl_add_u32 v2, v3, 6, v2
v_bfe_u32 v3, v0, 4, 1
v_lshl_add_u32 v2, v3, 5, v2
v_and_b32 v3, 1, v0
v_lshl_add_u32 v2, v3, 4, v2
v_bfe_u32 v3, v0, 1, 1
v_lshl_add_u32 v2, v3, 3, v2
v_lshl_add_u32 v2, v4, 12, v2
s_lshl_b32 s68, s66, 11
s_add_u32 s68, s68, {BUFA + XSZ}
v_add_u32 v{vW0}, s68, v2
v_xor_b32 v{vW1}, 64, v{vW0}
""")
    for r in vL: I(f"v_mov_b32 v{r}, 0")
    if OPT['tlb']:
        I(f"""
s_mul_i32 s66, s48, {2*786432}
s_lshr_b32 s67, s49, 2
s_mul_i32 s68, s67, {8*24576}
s_add_u32 s66, s66, s68
s_lshl_b32 s67, s67, 4
s_add_u32 s67, s67, s48
s_mul_i32 s67, s67, {6*32768}
s_add_u32 s67, s67, {P_WS_OFF - O_WS_OFF}
s_add_u32 s68, s66, 786432
s_add_u32 s69, s67, {6*32768 - 4}
buffer_load_dword a186, v{vSY}, s[28:31], 0 offen offset:1024
buffer_load_dword a187, v{vSY}, s[36:39], 0 offen offset:1024
buffer_load_dword a188, v{vSY}, s[8:11], s63 offen offset:1024
buffer_load_dword a189, v{vSY}, s[44:47], s66 offen
buffer_load_dword a190, v{vSY}, s[44:47], s68 offen
buffer_load_dword a191, v{vSY}, s[44:47], s67 offen
buffer_load_dword a106, v{vSY}, s[44:47], s69 offen
buffer_load_dword a107, v{vSY}, s[4:7], s53 offen
buffer_load_dword a108, v{vSY}, s[72:75], s65 offen
""")
    st1 = stage_dma(1)
    emit_vm(st1[:OPT['pre1']])
    PFT = [('K', 1, 0), ('V', 1, 16), ('K', 2, 32), ('V', 2, 48), ('K', 3, 64), ('V', 3, 80)]
    def pf_load(kind, n, base):
        out = []
        for hd in range(2):
            for half in range(2):
                r = base + 4 * (hd * 2 + half)
                sr = (28 if kind == 'K' else 36) + 4 * hd
                v = (vOK if kind == 'K' else vOV)[half]
                out.append(([f"s_mov_b32 s60, {n*8192}"] if hd + half == 0 else [],
                            f"buffer_load_dwordx4 a[{r}:{r+3}], v{v}, s[{sr}:{sr+3}], s60 offen offset:{hd*2048+half*1024} {OPT['kfl'] if kind == 'K' else OPT['vfl']}"))
        return out
    def pf_write(kind, base, areg, off):
        return [f"ds_write_b128 v{areg}, a[{base+4*i}:{base+4*i+3}] offset:{off + i*1024}" for i in range(4)]
    def tile_vm(kind, n, dst):
        pre, dm = kv_tile(kind, n, dst)
        return [(pre if i == 0 else [], d) for i, d in enumerate(dm)]
    NA, NB = 112, 144
    def a_read(ks, dt, sec, dst): return f"ds_read_b64_tr_b16 a[{dst+2*sec}:{dst+2*sec+1}], v{vW1 if dt & 1 else vW0} offset:{ks*8192 + (dt>>1)*1024 + sec*512}"
    def b_read(ks, t, dst): return f"ds_read_b128 a[{dst}:{dst+3}], v{vX} offset:{t*4*XBLK + ks*32}"
    def qp_reads(ks):
        par = ks & 1
        A = [a_read(ks, dt, sec, NA + 16 * par + 4 * dt) for dt in range(4) for sec in range(2)]
        B = [b_read(ks, t, NB + 12 * par + 4 * t) for t in range(3)]
        return A[:2] + B + A[2:]
    def qp_mfmas(first):
        ms = []
        for ks in range(4):
            par = ks & 1
            for dt in range(4):
                for t in range(3):
                    d = f"v[{acc(t,dt)}:{acc(t,dt)+15}]"
                    a = NA + 16 * par + 4 * dt; b = NB + 12 * par + 4 * t
                    ms.append(f"v_mfma_f32_32x32x16_bf16 {d}, a[{a}:{a+3}], a[{b}:{b+3}], {'0' if first and ks == 0 else d}")
        return ms
    A7 = [112, 168, 128, 144]; B7 = [192, 208, 192]
    def put_vm(sl, gaps, lst):
        for g, (pre, x) in zip(gaps, lst):
            sl.put(g - 1, list(pre))
            sl.setdefault(g, []).insert(0, x)
        assert len(gaps) >= len(lst), (len(gaps), len(lst))
    def qp_stage(s, carry):
        sl = Slots()
        def put_reads(g0, rs):
            for i, r in enumerate(rs): sl.put(g0 + 2 * (i // 2), r)
        for ks in range(3): put_reads(ks * 12, qp_reads(ks + 1))
        put_vm(sl, list(range(1, 35, 2)), carry)
        d = BUFSZ if s % 2 == 0 else -BUFSZ
        op = (lambda r: f"v_add_u32 v{r}, {d}, v{r}") if d > 0 else (lambda r: f"v_subrev_u32 v{r}, {-d}, v{r}")
        sl.put(35, [op(vX), op(vW0), op(vW1), "s_waitcnt lgkmcnt(0)", Ins("s_barrier", lr=[f"Q{s+1}"] + (["K0", "V0"] if s == 6 else []))])
        left = []
        if s == 6:
            sl.put(1, ["s_mov_b32 s12, 1", "v_and_b32 v225, 31, v224", "v_lshlrev_b32 v225, v225, 1"])
            sl.put(3, ["v_cmp_gt_u32 vcc, 0x100, v224"])
            sl.put(5, ["v_cndmask_b32 v225, 0, v225, vcc"])
            for i_ in range(16):
                sl.put(7 + i_, [f"v_readlane_b32 s{14 + (i_ & 1)}, v225, {i_}"] + ([f"s_or_b32 s12, s12, s{14 + ((i_ - 1) & 1)}"] if i_ else []))
            sl.put(24, ["s_or_b32 s12, s12, s15"])
            sl.put(26, ["s_ff0_i32_b32 s12, s12"])
        if s < 6:
            put_reads(36, qp_reads(0))
            post = stage_dma(s + 2)
            put_vm(sl, list(range(37, 48, 2)), post[:6])
            left = post[6:]
        else:
            rs = [a_read(0, dt, sec, A7[0] + 4 * dt) for dt in range(4) for sec in range(2)]
            rs = rs[:2] + [b_read(0, 0, B7[0])] + rs[2:] + [a_read(1, dt, sec, A7[1] + 4 * dt) for dt in range(4) for sec in range(2)] + [b_read(ks, 0, B7[0] + 4 * ks) for ks in (1, 2, 3)]
            for i, r in enumerate(rs): sl.put(36 + (i * 12) // len(rs), r)
        schedule(p, qp_mfmas(s == 0), sl)
        return left
    p.add(Ins("s_barrier", lr=["Q0"]))
    stamp(p, 2)
    for r in qp_reads(0): I(r)
    PFL = []
    for t_ in PFT + ([('K', 4, 96)] if OPT['xreg'] >= 2 else []): PFL += pf_load(*t_)
    def la(s): return touch(OPT['la'] - 1) if (OPT['la'] and s + 1 + OPT['la'] < 8) else []
    carry = qp_stage(0, st1[OPT['pre1']:] + la(0) + tile_vm('K', 0, KS[0]) + tile_vm('V', 0, VS[0]))
    stamp(p, 3)
    for s in range(1, 7):
        ex = [([], f"buffer_load_dword v224, v230, s[4:7], s53 offen sc1")] if s == 4 else []
        pfl = PFL[(s - 1) * len(PFL) // 6: s * len(PFL) // 6]
        carry = qp_stage(s, carry + la(s) + pfl + ex)
    stamp(p, 4)
    ms = []
    for t in range(3):
        for ks in range(4):
            for dt in range(4):
                d = f"v[{acc(t,dt)}:{acc(t,dt)+15}]"
                a = A7[ks] + 4 * dt; b = B7[t] + 4 * ks
                ms.append(f"v_mfma_f32_32x32x16_bf16 {d}, a[{a}:{a+3}], a[{b}:{b+3}], {d}")
    ms += [s_mfma(S[0], t, ks, True) for t in range(3) for ks in range(8)]
    I0 = 72
    def IT(i, g=0): return I0 + 48 * i + g
    ms += [s_mfma(S[1], t, ks) for t in range(3) for ks in range(8)]
    ms += [pv_mfma(S[0], j, t, True) for j in range(8) for t in range(3)]
    for i in range(1, 15):
        ms += [s_mfma(S[(i + 1) & 1], t, ks) for ks in range(8) for t in range(3)]
        ms += [pv_mfma(S[i & 1], j, t) for j in range(8) for t in range(3)]
    TL = IT(15)
    ms += [pv_mfma(S[1], j, t) for j in range(8) for t in range(3)]
    sl = Slots()
    rs = [a_read(ks, dt, sec, A7[ks] + 4 * dt) for ks in (2, 3) for dt in range(4) for sec in range(2)]
    for i, r in enumerate(rs): sl.put(i // 2, r)
    for ks in range(4): sl.put(8 + ks, b_read(ks, 1, B7[1] + 4 * ks))
    for ks in range(4): sl.put(17 + ks, b_read(ks, 2, B7[2] + 4 * ks))
    sl.put(-1, [f"v_mbcnt_lo_u32_b32 v{vOX}, -1, 0", f"v_mbcnt_hi_u32_b32 v{vOX}, -1, v{vOX}", f"v_lshlrev_b32 v{vOX}, 4, v{vOX}",
                f"v_add_u32 v{vOW}, s62, v{vOX}", f"v_add_u32 v{vOX}, s61, v{vOX}"])
    w1 = pf_write('K', 0, vOX, KS[1]) + pf_write('V', 16, vOW, VS[1])
    WS2 = OPT['ws2']
    for i, x in enumerate(w1): sl.put(WS2 * i, x)
    sl.put(WS2 * 8 - 1, [f"v_add_u32 v{vOX}, {WIN}, v{vOX}", f"v_add_u32 v{vOW}, {WIN}, v{vOW}"])
    w2 = pf_write('K', 32, vOX, KS[2] - WIN) + pf_write('V', 48, vOW, VS[2] - WIN)
    for i, x in enumerate(w2): sl.put(WS2 * (8 + i), x)
    sl.put(25, ["s_waitcnt lgkmcnt(1)", "s_barrier"])
    w3 = pf_write('K', 64, vOX, KS[3] - WIN) + pf_write('V', 80, vOW, VS[3] - WIN)
    for i, x in enumerate(w3): sl.put(max(WS2 * 16, 26) + 2 * i, x)
    for ks in range(8): sl.put(33 + 2 * ks, k_read(ks, KS[0]))
    sl.put(52, ["s_waitcnt lgkmcnt(0)", "s_barrier"])
    for ks in range(8): sl.put(65 + ks, k_read(ks, KS[1]))
    kwin = 0; vwin = 0
    def win_move(regs, d): return [(f"v_add_u32 v{r}, {d}, v{r}" if d > 0 else f"v_subrev_u32 v{r}, {-d}, v{r}") for r in regs]
    for i in range(0, 16):
        va = VS[i % 4]; w = (va // WIN) * WIN
        if w != vwin:
            sl.put(IT(i, 10) if i < 15 else IT(14, 41), win_move([vV0, vV1], w - vwin)); vwin = w
        for j in range(8):
            if i == 0: g0 = max(89 + j, IT(0, 15 + 3 * j)); g1 = g0 + (0 if j < 2 else 1)
            elif i < 15: g0 = IT(i, 15 + 3 * j); g1 = g0 + 1
            else: g0 = max(IT(14, 42 + 2 * j), TL + 3 * j - 9); g1 = g0 + 1
            sl.put(g0, v_read(j, 0, va - vwin)); sl.put(g1, v_read(j, 1, va - vwin))
        if i == 15: break
        need = [f"V{i+1}"] + ([f"K{i+2}"] if i + 2 < 16 else [])
        sl.put(IT(i, 40), ["s_waitcnt lgkmcnt(0)", Ins("s_barrier", lr=need)])
        n = i + 2
        if n < 16:
            ka = KS[n % 5]; w = (ka // WIN) * WIN
            if w != kwin:
                sl.put(IT(i, 38), win_move([vK], w - kwin)); kwin = w
            for ks, g in enumerate([IT(i, 42), IT(i, 44), IT(i, 46), IT(i + 1, 1), IT(i + 1, 4), IT(i + 1, 7), IT(i + 1, 10), IT(i + 1, 13)]):
                sl.put(g, k_read(ks, ka - kwin))
    XR = OPT['xreg']
    tiles = []
    def add_tile(kind, n, ear):
        dst = KS[n % 5] if kind == 'K' else VS[n % 4]
        tiles.append((IT(n - 2, 40) if kind == 'K' else IT(n - 1, 40) - 1, ear, tile_vm(kind, n, dst)))
    if XR < 2: add_tile('K', 4, 27)
    add_tile('K', 5, 54)
    for n in range(6, 16): add_tile('K', n, IT(n - 6, 42))
    for n in range(4 + min(XR, 2), 16): add_tile('V', n, IT(n - 4, 42))
    if XR:
        tiles.append((IT(2, 40), 49, pf_load('V', 4, 192)))
        sl.put(IT(2, 14), [f"v_mbcnt_lo_u32_b32 v{vOW}, -1, 0", f"v_mbcnt_hi_u32_b32 v{vOW}, -1, v{vOW}"])
        sl.put(IT(2, 16), [f"v_lshlrev_b32 v{vOW}, 4, v{vOW}", f"v_add_u32 v{vOW}, s62, v{vOW}"])
        for i, x in enumerate(pf_write('V', 192, vOW, VS[0])): sl.put(IT(2, 18) + 2 * i, x)
    if XR >= 2:
        tiles.append((IT(2, 39), 33, pf_load('V', 5, 208)))
        for i, x in enumerate(pf_write('V', 208, vOW, VS[1])): sl.put(IT(3, 18) + 2 * i, x)
        sl.put(47, [f"v_add_u32 v{vOX}, {WIN}, v{vOX}"])
        for i, x in enumerate(pf_write('K', 96, vOX, KS[4] - 2 * WIN)): sl.put(48 + i, x)
    g_first, g_last = OPT['dfirst'], I0 + OPT['dlast']
    nops = sum(len(t[2]) for t in tiles)
    gaps = []; vm = []; g = g_first - 2.0
    while tiles:
        step = max(2.0, (g_last - g) / (nops - len(gaps)))
        av = [t for t in tiles if t[1] <= g + step]
        t = min(av, key=lambda t: t[0]) if av else min(tiles, key=lambda t: t[1])
        tiles.remove(t)
        for pre, d in t[2]:
            step = max(2.0, (g_last - g) / (nops - len(gaps)))
            g = max(g + step, t[1])
            gi = int(round(g))
            while gi in gaps or (gi - 1) in gaps or any(txt(x).startswith('s_barrier') for x in sl.get(gi, [])): gi += 1
            gaps.append(gi); g = max(g, gi); vm.append((pre, d, t[1]))
        assert gaps[-1] + OPT['kmar'] <= t[0], (txt(t[2][0][1]), gaps[-1], t[0])
    put_vm(sl, gaps, [(a, b) for a, b, _ in vm])
    if OPT.get('verbose'):
        last = {}
        for gi, (pre, d, ear) in zip(gaps, vm):
            if isinstance(d, Ins): last[d.lw[0]] = gi
        for k_, gi in last.items():
            n = int(k_[1:]); nb = IT(n - 2, 40) if k_[0] == 'K' else IT(n - 1, 40)
            sys.stderr.write(f"{k_}: last issue {gi} (iter {(gi-I0)/48:.2f}) margin {nb-gi}\n")
    used_vm = set(gaps)
    def free_gap(g):
        while g in used_vm or (g - 1) in used_vm or (g + 1) in used_vm: g += 1
        used_vm.add(g); return g
    sl.put(-1, ["v_mbcnt_lo_u32_b32 v237, -1, 0", "v_mbcnt_hi_u32_b32 v237, -1, v237", "v_lshlrev_b32 v237, 7, v237"])
    sl.put(free_gap(12), "buffer_load_dword a184, v237, s[8:11], s63 offen offset:1024")
    sl.put(free_gap(14), "buffer_load_dword a185, v237, s[8:11], s63 offen offset:1088")
    if XR < 2:
        sl.put(32, ["v_accvgpr_write_b32 a208, s12", "v_accvgpr_write_b32 a209, 0"])
        sl.put(free_gap(34), f"buffer_atomic_cmpswap a[208:209], v{vSY}, s[72:75], s65 offen sc0 sc1")
        sl.put(IT(8, 6), [f"v_accvgpr_read_b32 v{vX}, a208"])
        sl.put(IT(8, 8), [f"v_readfirstlane_b32 s13, v{vX}"])
        sl.put(IT(8, 10), ["s_cmp_eq_u32 s13, 0", "s_cselect_b32 s13, s12, s13"])
    else:
        sl.put(14, ["v_mov_b32 v238, s12", "v_mov_b32 v239, 0"])
        sl.put(free_gap(16), f"buffer_atomic_cmpswap v[238:239], v{vSY}, s[72:75], s65 offen sc1")
        sl.put(free_gap(IT(4, 20)), f"buffer_load_dword v{vX}, v{vSY}, s[72:75], s65 offen sc1")
        sl.put(IT(8, 8), [f"v_readfirstlane_b32 s13, v{vX}"])
    for i, x in enumerate(wo_setup()): sl.put(IT(9, 2) + i, x)
    wear = [IT(10, 42), IT(11, 42), IT(12, 42), IT(12, 42), IT(13, 42), IT(13, 42)]
    g = max(max(gaps) + 2, IT(13, 10))
    wg_, wl_ = [], []
    for sig in range(NWPRE):
        for pre, d in wo_tile(sig):
            g = free_gap(max(g, wear[sig]))
            while any(txt(x).startswith('s_barrier') for x in sl.get(g, [])): g = free_gap(g + 1)
            wg_.append(g); wl_.append((pre, d)); g += OPT.get('wps', 3)
    put_vm(sl, wg_, wl_)
    conv = []
    for t in range(3):
        for dt in range(4):
            a = acc(t, dt)
            ear = 16 * t + 12 + dt + 3
            for k2 in range(2):
                dl = 48 + 8 * t + 2 * dt + k2 - 2
                if t == 1 and dt < 3: dl = min(dl, 48 + 8 * dt - 2)
                for pr in range(4):
                    r = a + 8 * k2 + 2 * pr
                    conv.append((f"v_mul_f32 v{r}, s64, v{r}", ear, dl))
                    conv.append((f"v_mul_f32 v{r+1}, s64, v{r+1}", ear, dl))
                for pr in range(4):
                    r = a + 8 * k2 + 2 * pr
                    conv.append((f"v_cvt_pk_bf16_f32 v{QB[t] + 4*(2*dt+k2) + pr}, v{r}, v{r+1}", ear, dl))
    mx = []
    for t in range(3):
        b = S[0] + t * 16
        ear0 = 48 + 8 * t + 7 + 3
        ear = ear0 if t == 0 else max(ear0, 71)
        dl = 72 + 8 * t - 2
        ops = [f"v_max3_f32 v{vM[t]}, v{b}, v{b+1}, v{b+2}"]
        ops += [f"v_max3_f32 v{vM[t]}, v{vM[t]}, v{b+r}, v{b+r+1}" for r in range(3, 15, 2)]
        ops += [f"v_max_f32 v{vM[t]}, v{vM[t]}, v{b+15}", f"v_mov_b32 v{vT[t]}, v{vM[t]}", "s_nop 1", f"v_permlane32_swap_b32 v{vT[t]}, v{vM[t]}",
                f"v_max_f32 v{vM[t]}, v{vM[t]}, v{vT[t]}"]
        mx += [(o, ear0, dl) for o in ops]
        mx += [(f"v_sub_f32 v{NEGM[t]+r}, 0, v{vM[t]}", ear, dl) for r in range(16)]
    sm = []
    for n in range(16):
        buf = S[n & 1]
        pv0 = IT(n, 24) if n < 15 else TL
        def dl_of(e): return pv0 + (0 if e < 24 else 12) + (e % 24) // 8 - 2
        for e in range(49):
            t = (min(e, 47) % 24) // 8
            if n == 0: ear = 72 + 8 * t - 1
            elif n == 1: ear = IT(0, 8 * t + 7 + 4)
            else: ear = IT(n - 1, 21 + t + 4)
            if n == 0 and e < 48:
                r, t = ereg(buf, e)
                sm.append((f"v_sub_f32 v{r}, v{r}, v{vM[t]}", ear, dl_of(e) - 1))
            for o in sm_ops(buf, e):
                sm.append((o, ear, dl_of(e) - 1 if o.startswith('v_exp') else dl_of(e - 1)))
    fin = fin_ops()
    vote = [f"s_mov_b32 s66, {f2u(OPT['thr']):#x}",
            f"v_max3_f32 v232, v{vL[0]}, v{vL[1]}, v{vL[2]}", f"v_add_f32 v233, v{vL[0]}, v{vL[1]}", f"v_add_f32 v233, v233, v{vL[2]}",
            f"v_cmp_nge_f32 vcc, s66, v233", f"v_mov_b32 v234, {SPARE}", "s_lshl_b32 s67, s3, 2", "s_cmp_lg_u64 vcc, 0\ns_cselect_b32 s66, 1, 0",
            "v_add_u32 v235, s67, v234", "v_mov_b32 v236, s66", "ds_write_b32 v235, v236"]
    vote = [x for x in vote if 'max3' not in x]
    vote = [x.replace("s67", "s14").replace("s66", "s17") for x in vote]
    sm += [(o, TL + 10, TL + 16) for o in fin + vote]
    sl.put(TL + 18, ["s_waitcnt lgkmcnt(0)", Ins("s_barrier", lr=[f"W{i}" for i in range(4)]), "ds_read_b128 v[236:239], v234"])
    for k in range(RD): sl.put(TL + 19 + k, [a_rd(k, 0), a_rd(k, 1)])
    sm += [(o, TL + 17, TL + 99) for o in norm_unit(0, True, (64, 96))]
    low = [(o, IT(10, 0), IT(13, 0)) for o in op_setup()] + [(o, max(max(gaps) + 1, IT(14, 15)), TL + 10) for o in win_regs()]
    if OPT['stamp']:
        sl.put(IT(1, 0) - 1, stamp_ops(5)); sl.put(TL - 1, stamp_ops(6))
    for i_ in range(1, 15):
        for k_ in range(OPT.get('pad', 0)): sl.put(IT(i_, 5 + 3 * k_), 's_nop 7')
    def bud(g):
        if g < IT(1): return OPT['tbud']
        return OPT['bud'] - (4 if (g - I0) % 3 == 2 else 0)
    schedule(p, ms, sl, [conv, mx, sm, low], budget=bud)
    I("""
v_or3_b32 v236, v236, v237, v238
v_or_b32 v236, v236, v239
v_readfirstlane_b32 s66, v236
s_cmp_lg_u32 s66, 0
s_cbranch_scc1 L1_slow
L1_norm:
""")
    stamp(p, 7)
    def oacc(n, t):
        return (f"v[{120+(n*3+t)*16}:{135+(n*3+t)*16}]" if n < 2 else f"a[{((n-2)*3+t)*16}:{((n-2)*3+t)*16+15}]")
    def op_mfma(k, t):
        sig, ks, n = GR[k]
        b = bfr(sig, ks, t); d = oacc(n, t)
        return f"v_mfma_f32_32x32x16_bf16 {d}, a[{fr(k)}:{fr(k)+3}], v[{b}:{b+3}], {'0' if (sig == 0 and ks == 0) else d}"
    stamp(p, 8)
    nrm = []
    late = []
    for dt, dl in ((1, 18), (2, 48), (3, 72)):
        u = norm_unit(dt, OPT['npk'])
        if dt >= OPT['ldt']:
            for i_, x in enumerate(u):
                if isinstance(x, Ins): late.append(([u[i_ - 1]], x))
            u = [x for i_, x in enumerate(u) if not isinstance(x, Ins) and not (i_ + 1 < len(u) and isinstance(u[i_ + 1], Ins))]
        nrm += [(x, 0, dl - 2) for x in u]
    def ox_load(sig):
        rho, dq = step_of(sig)
        out = []
        for ks in range(2):
            for t in range(3):
                b = bfr(sig, ks, t)
                out.append(([f"s_add_u32 s60, s{OXS[rho]}, {(2*dq+ks)*3072}"] if t == 0 else [],
                            f"buffer_load_dwordx4 v[{b}:{b+3}], v{rL16}, s[44:47], s60 offen offset:{t*1024} {OPT['oxl']}"))
        return out
    al = Slots()
    for k in range(len(GR)):
        kn = k + RD
        if kn < len(GR):
            nxt = (kn >> 3) != (k >> 3)
            g0 = 3 * k + (2 if nxt else 0)
            al.put(g0, a_rd(kn, 0)); al.put(min(g0 + 1, (k >> 3) * 24 + 23), a_rd(kn, 1))
    def bar(g, need, extra=()):
        al.put(g, ["s_waitcnt lgkmcnt(0)", Ins("s_barrier", lr=list(need))] + list(extra))
    PA, PL, PB, PL2 = OPT['pa'], OPT['pl'], 3 * 24 + 13, OPT['pl2']
    al.put(PA, [Ins("s_barrier", lr=["OA"]), "s_or_b32 s66, s13, 0x20", "v_mov_b32 v242, s66", f"buffer_store_dword v242, v{vSY}, s[4:7], s52 offen sc1"])
    bar(12 * 24 + 13, ["W14", "W15"])
    for s_ in (3, 5, 7, 9, 11):
        ex = ["s_or_b32 s66, s13, 0x60", "v_mov_b32 v242, s66", f"buffer_store_dword v242, v{vSY}, s[4:7], s52 offen sc1"] if s_ == OPT['pbs'] else []
        bar(s_ * 24 + 13, [f"W{s_+1}", f"W{s_+2}"] + (["OB"] if s_ == OPT['pbs'] else []), ex)
    used = set([PA, OPT['pbs'] * 24 + 13])
    def place(g0, lst, stride):
        gs = []; g = g0
        for _ in lst:
            while g in used or g in (PL, PL2): g += 1
            gs.append(g); used.add(g); g += stride
        put_vm(al, gs, lst); return g
    for pl_ in (PL, PL2):
        al.put(pl_ - OPT['pe'], f"buffer_load_dword v241, v254, s[4:7], s53 offen sc1"); used.add(pl_ - OPT['pe'])
    def chk(tl, g):
        nb = min(tl - 1 if tl % 2 == 0 else tl - 2, 12) * 24 + 13
        assert g + OPT['wmar'] <= nb, f"wo tile {tl} issued at {g}, needed by barrier {nb}"
    g = OPT['w6']
    for tl in range(NWPRE, NSL):
        g = place(g, wo_tile(tl), OPT['w6s']); chk(tl, g)
    for tl in range(NSL, 16):
        st = tl - NSL
        sb = 3 if st <= 3 else (st if st % 2 else st + 1)
        g = place(max(g, sb * 24 + 16), wo_tile(tl), OPT['wls']); chk(tl, g)
    g = PL + 1
    for sig in range(4, 16):
        if sig == OPT['lat'] and late:
            g = place(g, late, OPT['lst'])
            assert g < OPT['pbs'] * 24 + 13
        g = max(g, (sig - NBR + 1) * 24 + 1)
        if sig >= 10: g = max(g, PL2 + 1)
        g = place(g, ox_load(sig), OPT['oxs'] if sig < 4 + OPT['oxn'] else OPT['oxt'])
        if OPT.get('verbose'): sys.stderr.write(f"ox {sig}: end gap {g} need {sig*24}\n")
        assert g <= min(sig * 24, 13 * 24)
    def h1(dst, w): return [f"s_mul_i32 {dst}, {w}, 12288", f"s_add_u32 {dst}, {dst}, {(16512 - 2*12288) & 0xffffffff:#x}", f"s_cmp_eq_u32 {w}, 0\ns_cselect_b32 {dst}, 114944, {dst}",
                            f"s_cmp_eq_u32 {w}, 1\ns_cselect_b32 {dst}, 148096, {dst}"]
    setup = ["s_mul_i32 s66, s3, 12288", "s_add_u32 s66, s66, 65792", f"v_add_u32 v247, s66, v{rL16}"] + h1("s66", "s3") + [f"v_add_u32 v248, s66, v{rL16}",
             "s_xor_b32 s67, s3, 2", "s_mul_i32 s66, s67, 12288", "s_add_u32 s66, s66, 65792", f"v_add_u32 v249, s66, v{rL16}"] + h1("s66", "s67") + [f"v_add_u32 v250, s66, v{rL16}",
             f"s_add_u32 s28, s18, {P_WS_OFF}\ns_addc_u32 s29, s19, 0", "s_and_b32 s29, s29, 0xffff", f"s_mov_b32 s30, {P_BYTES}",
             "s_lshr_b32 s66, s49, 2", "s_lshl_b32 s66, s66, 4", "s_add_u32 s66, s66, s48", "s_mul_i32 s66, s66, 6", "s_and_b32 s67, s3, 1", "s_mul_i32 s67, s67, 3",
             "s_add_u32 s66, s66, s67", "s_lshl_b32 s66, s66, 15", "s_lshl_b32 s67, s71, 13", "s_add_u32 s66, s66, s67", "s_lshr_b32 s67, s3, 1", "s_lshl_b32 s67, s67, 12",
             "s_add_u32 s14, s66, s67"]
    for i, x in enumerate(setup): al.put(12 * 24 - 6 + i, x)
    E0 = 13 * 24
    for i in range(12): al.put(E0 + 18 + 2 + (i * 4) // 3, f"ds_write_b128 v247, a[{4*i}:{4*i+3}] offset:{i*1024}")
    al.put(E0 + 37, ["s_waitcnt lgkmcnt(0)", "s_barrier"])
    for i in range(12): al.put(E0 + 36 + 2 + (i * 4) // 3, f"ds_write_b128 v248, a[{48+4*i}:{51+4*i}] offset:{i*1024}")
    def xr(i): return [96 + 4 * i, 4 * (i - 6), 216 + 4 * (i - 12), 24 + 4 * (i - 18)][i // 6]
    for i in range(12): al.put(E0 + 39 + i, f"ds_read_b128 v[{xr(i)}:{xr(i)+3}], v249 offset:{i*1024}")
    al.put(E0 + 55, ["s_waitcnt lgkmcnt(0)", "s_barrier"])
    for i in range(12): al.put(E0 + 56 + i, f"ds_read_b128 v[{xr(12+i)}:{xr(12+i)+3}], v250 offset:{i*1024}")
    def fin_tile(n, t, pk):
        o = 120 + (n * 3 + t) * 16
        out = []
        for q4 in range(4):
            x = xr((n * 3 + t) * 4 + q4)
            if pk: out += [f"v_pk_add_f32 v[{o+4*q4+h}:{o+4*q4+h+1}], v[{o+4*q4+h}:{o+4*q4+h+1}], v[{x+h}:{x+h+1}]" for h in (0, 2)]
            else: out += [f"v_add_f32 v{o+4*q4+h}, v{o+4*q4+h}, v{x+h}" for h in range(4)]
        out += [f"v_cvt_pk_bf16_f32 v{o+pr}, v{o+2*pr}, v{o+2*pr+1}" for pr in range(8)]
        out.append(f"s_add_u32 s67, s14, {t*32768}")
        out += [f"buffer_store_dwordx4 v[{o+4*s2}:{o+4*s2+3}], v{rL16}, s[28:31], s67 offen offset:{(n*2+s2)*1024} {OPT['pst']}" for s2 in range(2)]
        return out
    fin0 = [(x, E0 + 56 - OPT['pl2'], 9999) for t in range(3) for x in fin_tile(0, t, False)]
    if OPT['st2']:
        for idx, s_ in ((2, 8), (3, 12)): al.put(s_ * 24 - 1, stamp_ops(idx))
    allm = [op_mfma(k, t) for k in range(len(GR)) for t in range(3)]
    def seg(g0, g1, streams=(), budget=None):
        r = Slots()
        for k_, v_ in al.items():
            if g0 <= k_ < g1: r[k_ - g0] = list(v_)
        schedule(p, allm[g0:g1], r, streams, budget)
    def poll(tag, bit, mask):
        p.raw(f"""
s_mov_b32 s51, 0
s_cmp_lg_u32 s3, 0
s_cbranch_scc1 L1_go{tag}
L1_poll{tag}:
s_waitcnt vmcnt(0)
v_xor_b32 v241, s13, v241
v_and_b32 v241, {(~(0xE0 & ~bit)) & 0xffffffff:#x}, v241
v_cmp_eq_u32 vcc, {bit}, v241
s_nop 3
s_and_b32 s68, vcc_lo, {mask}
s_cmp_eq_u32 s68, {mask}
s_cbranch_scc1 L1_go{tag}
s_sleep 1
buffer_load_dword v241, v254, s[4:7], s53 offen sc1
s_add_u32 s51, s51, 1
s_cmp_lt_u32 s51, 0x40000
s_cbranch_scc1 L1_poll{tag}
L1_go{tag}:
""")
        I("s_barrier")
    assert PL >= 72
    seg(0, PL, [nrm], lambda g: OPT['nbud'])
    poll("a", 0x20, "s15")
    stamp(p, 9)
    seg(PL, PL2)
    poll("b", 0x40, "s15")
    seg(PL2, len(allm), [fin0])
    if OPT['st2']: stamp(p, 4)
    for t in range(3):
        for x in fin_tile(1, t, True): I(x)
    I(f"""
v_lshrrev_b32 v2, 7, v{rL16}
v_bfe_u32 v3, v{rL16}, 4, 3
v_lshlrev_b32 v4, 9, v2
v_lshl_add_u32 v4, v3, 4, v4
v_lshlrev_b32 v5, 4, v2
v_lshl_add_u32 v5, v3, 10, v5
s_load_dwordx2 s[20:21], s[0:1], 40
s_lshr_b32 s66, s49, 2
s_mul_i32 s66, s66, 12
s_mul_i32 s67, s3, 3
s_add_u32 s66, s66, s67
s_mul_i32 s60, s48, {6*32768}
s_lshl_b32 s67, s71, 13
s_add_u32 s61, s60, s67
s_lshl_b32 s67, s71, 8
s_add_u32 s60, s60, s67
""")
    for i in range(3):
        I(f"""
s_add_u32 s67, s66, {i}
s_lshr_b32 s68, s67, 3
s_lshl_b32 s68, s68, 15
s_bfe_u32 s69, s67, 0x20001
s_lshl_b32 s59, s69, 7
s_add_u32 s{32+i}, s61, s68
s_add_u32 s{32+i}, s{32+i}, s59
s_and_b32 s59, s67, 1
s_lshl_b32 s62, s59, 12
s_add_u32 s{32+i}, s{32+i}, s62
s_lshl_b32 s69, s69, 13
s_add_u32 s{36+i}, s60, s68
s_add_u32 s{36+i}, s{36+i}, s69
s_lshl_b32 s59, s59, 7
s_add_u32 s{36+i}, s{36+i}, s59
""")
    I(f"""
s_or_b32 s66, s13, 0xe0
v_mov_b32 v242, s66
s_waitcnt vmcnt(0) lgkmcnt(0)
s_barrier
buffer_store_dword v242, v{vSY}, s[4:7], s52 offen sc1
buffer_load_dword v241, v254, s[4:7], s53 offen sc1
s_and_b32 s21, s21, 0xffff
s_mov_b32 s22, {16*192*1024}
s_mov_b32 s23, 0x00020000
""")
    if OPT['st2']: stamp(p, 5)
    poll("c", 0x80, "s16")
    if OPT['st2']: stamp(p, 6)
    for i in range(3):
        for g_ in range(4):
            I(f"buffer_load_dwordx4 v[{8+16*i+4*g_}:{11+16*i+4*g_}], v4, s[28:31], s{32+i} offen sc1")
            if g_ < 3: I(f"s_add_u32 s{32+i}, s{32+i}, {16*192*1024}")
    for i in range(3):
        for d in range(4):
            for g_ in range(4):
                r = 8 + 16 * i + 4 * g_ + d
                I(f"v_lshlrev_b32 v{64+2*g_}, 16, v{r}\nv_and_b32 v{65+2*g_}, 0xffff0000, v{r}")
            I(f"v_pk_add_f32 v[64:65], v[64:65], v[66:67]\nv_pk_add_f32 v[68:69], v[68:69], v[70:71]\nv_pk_add_f32 v[64:65], v[64:65], v[68:69]")
            I(f"v_cvt_pk_bf16_f32 v{72+4*i+d}, v64, v65")
        I(f"buffer_store_dwordx4 v[{72+4*i}:{75+4*i}], v5, s[20:23], s{36+i} offen")
    if OPT['stamp']:
        I("s_waitcnt vmcnt(0)")
        stamp(p, 1)
        if OPT.get('dbg'):
            I(f"s_lshl_b32 s76, s2, 2\ns_add_u32 s76, s76, s3\ns_sub_u32 s76, s76, {OPT['dbg']*4}\ns_lshl_b32 s76, s76, 12\nv_mov_b32 v1, 0")
            for i in range(1, 10):
                I(f"s_sub_u32 s77, s{80+i}, s80\nv_mov_b32 v2, s77\nbuffer_store_dword v2, v1, s[72:75], s76 offen offset:{4*i}")
        stamp_out(p, 10, 0)
    I("L1_end:\ns_endpgm\nL1_code_end:")
    return p

def gen_slow():
    p = Prog(); I = p.I
    M = [232, 233, 234]; T = [235, 236, 237]
    M = [S[1], S[1] + 1, S[1] + 2]; T = [S[1] + 3, S[1] + 4, S[1] + 5]
    I("L1_slow:\ns_nop 15\ns_waitcnt vmcnt(0) lgkmcnt(0)\ns_barrier")
    I(f"v_mbcnt_lo_u32_b32 v{S[1]+8}, -1, 0\nv_mbcnt_hi_u32_b32 v{S[1]+8}, -1, v{S[1]+8}")
    for x in kv_addr_setup(f"v{S[1]+8}", S[1] + 9): I(x)
    for t in range(3): I(f"v_mov_b32 v{M[t]}, 0xff800000")
    def load(kinds):
        for kind in kinds:
            pre, dm = kv_tile(kind, 0, KS[0] if kind == 'K' else VS[0], soff="s60", tag=False)
            for x in pre: I(x)
            for d in dm: p.add(d)
        I("s_waitcnt vmcnt(0)\ns_barrier")
    I("s_mov_b32 s60, 0\nL1_s1:")
    p.loop_begin(2)
    load("K")
    for ks in range(8): I(k_read(ks, KS[0]))
    for ks in range(8):
        for t in range(3): I(s_mfma(S[0], t, ks, True))
    for t in range(3):
        b = S[0] + 16 * t
        for r in range(0, 16, 2): I(f"v_max3_f32 v{M[t]}, v{M[t]}, v{b+r}, v{b+r+1}")
    I("s_barrier\ns_add_u32 s60, s60, 8192\ns_cmp_lt_u32 s60, 131072\ns_cbranch_scc1 L1_s1")
    p.loop_end()
    for t in range(3): I(f"v_mov_b32 v{T[t]}, v{M[t]}")
    for t in range(3): I(f"v_permlane32_swap_b32 v{T[t]}, v{M[t]}")
    for t in range(3): I(f"v_max_f32 v{M[t]}, v{M[t]}, v{T[t]}")
    for t in range(3):
        for r in range(16): I(f"v_sub_f32 v{NEGM[t]+r}, 0, v{M[t]}")
        I(f"v_mov_b32 v{vL[t]}, 0")
    for r in range(192): I(f"v_accvgpr_write_b32 a{r}, 0")
    I("s_mov_b32 s60, 0\nL1_s2:")
    p.loop_begin(2)
    load("KV")
    for ks in range(8): I(k_read(ks, KS[0]))
    for ks in range(8):
        for t in range(3): I(s_mfma(S[0], t, ks))
    for j in range(8):
        I(v_read(j, 0, VS[0])); I(v_read(j, 1, VS[0]))
    for e in range(49):
        for x in sm_ops(S[0], e): I(x)
    for j in range(8):
        for t in range(3): I(pv_mfma(S[0], j, t))
    I("s_barrier\ns_add_u32 s60, s60, 8192\ns_cmp_lt_u32 s60, 131072\ns_cbranch_scc1 L1_s2")
    p.loop_end()
    for x in fin_ops(): I(x)
    for sig in range(NWPRE):
        for pre, d in wo_tile(sig):
            for x in pre: I(x)
            p.add(d)
    for x in win_regs(): I(x)
    for x in norm_unit(0, True, (64, 96)): em(p, x)
    I("s_waitcnt vmcnt(0)\ns_barrier")
    for k in range(RD):
        I(a_rd(k, 0)); I(a_rd(k, 1))
    I("s_waitcnt lgkmcnt(0)\ns_nop 15\ns_branch L1_norm")
    return p

def gen_red():
    p = Prog(); I = p.I
    I("s_cmp_ge_u32 s2, 768\ns_cbranch_scc1 L2_end")
    I("s_load_dwordx2 s[14:15], s[0:1], 40\ns_load_dwordx2 s[18:19], s[0:1], 56")
    stamp(p, 0)
    I(f"""
v_lshrrev_b32 v1, 6, v0
v_and_b32 v0, 63, v0
v_readfirstlane_b32 s3, v1
v_lshrrev_b32 v2, 3, v0
v_and_b32 v3, 7, v0
v_lshlrev_b32 v4, 9, v2
v_lshl_add_u32 v4, v3, 4, v4
v_lshlrev_b32 v5, 4, v2
v_lshl_add_u32 v5, v3, 10, v5
s_lshl_b32 s4, s2, 2
s_add_u32 s4, s4, s3
s_lshr_b32 s5, s4, 5
s_bfe_u32 s6, s4, 0x20003
s_and_b32 s7, s4, 7
s_lshl_b32 s8, s5, 15
s_lshl_b32 s9, s7, 12
s_add_u32 s9, s9, s8
s_lshl_b32 s10, s6, 7
s_add_u32 s9, s9, s10
s_lshl_b32 s10, s6, 13
s_add_u32 s8, s8, s10
s_lshl_b32 s10, s7, 7
s_add_u32 s8, s8, s10
s_waitcnt lgkmcnt(0)
s_add_u32 s20, s18, {P_WS_OFF}
s_addc_u32 s21, s19, 0
s_and_b32 s21, s21, 0xffff
s_mov_b32 s22, {P_BYTES}
s_mov_b32 s23, 0x00020000
""")
    for g in range(4):
        I(f"buffer_load_dwordx4 v[{8+4*g}:{11+4*g}], v4, s[20:23], s9 offen {OPT['rld']}")
        if g < 3: I(f"s_add_u32 s9, s9, {16*192*1024}")
    srd(p, 24, 14, 15, 16 * 192 * 1024)
    for d in range(4):
        for g in range(4):
            r = 8 + 4 * g + d
            I(f"v_lshlrev_b32 v{24+2*g}, 16, v{r}\nv_and_b32 v{25+2*g}, 0xffff0000, v{r}")
        I(f"v_pk_add_f32 v[24:25], v[24:25], v[26:27]\nv_pk_add_f32 v[28:29], v[28:29], v[30:31]\nv_pk_add_f32 v[24:25], v[24:25], v[28:29]")
        I(f"v_cvt_pk_bf16_f32 v{32+d}, v24, v25")
    I("buffer_store_dwordx4 v[32:35], v5, s[24:27], s8 offen")
    if OPT['stamp']:
        I("s_waitcnt vmcnt(0)")
        stamp(p, 1)
        I("s_cmp_ge_u32 s2, 256\ns_cbranch_scc1 L2_end\ns_mul_i32 s2, s2, 1")
        stamp_out(p, 2, 0x20000)
    I("L2_end:\ns_endpgm")
    return p

def kd(name, vg, acc, sg=102):
    return f""".p2align 6
.amdhsa_kernel {name}
  .amdhsa_next_free_vgpr {vg}
  .amdhsa_next_free_sgpr {sg}
  .amdhsa_accum_offset {acc}
  .amdhsa_group_segment_fixed_size 0
  .amdhsa_kernarg_size 64
  .amdhsa_user_sgpr_count 2
  .amdhsa_user_sgpr_kernarg_segment_ptr 1
  .amdhsa_system_sgpr_workgroup_id_x 1
  .amdhsa_float_denorm_mode_32 3
.end_amdhsa_kernel
"""

def main():
    k1 = gen_k1(); k1.resolve(); t1, s1 = k1.emit()
    ks = gen_slow(); ks.resolve(); ts, _ = ks.emit(); t1 += ts
    sys.stderr.write(f"k1 {s1}\n")
    hdr = open('cdna_kernels/' + NAME + '.s.ref').read().split('\n')
    top = [l for l in hdr if l.startswith(';') and '@launch' not in l]
    out = '\n'.join(top) + f"""
; @launch grid=(256,1,1) block=(256,1,1) lds=163840
.amdgcn_target "amdgcn-amd-amdhsa--gfx950"
.text
.globl {NAME}_kernel
.p2align 8
.type {NAME}_kernel,@function
{NAME}_kernel:
{t1}
.section .rodata,"a"
{kd(NAME + '_kernel', 512, 256)}"""
    open(sys.argv[1], 'w').write(out)
main()
```

```python
import sys, math, struct
from asmlib import *
NAME = "standalone__mha_block_cached__near_ridge"
OPT = dict(stamp=0, outf='', kfl='nt', vfl='nt', ldt=3, lat=6, lst=2, tlb=0, dfirst=26, kmar=24, la=0, ws2=2, npk=1, pa=40, pl=72, pl2=168, pbs=5, nbud=32, w6=59, w6s=2, wmar=20, oxt=3, st2=0, kvsz=1, xw=1, rh=2, rb=1, rmask=7, pre1=8, bud=24, tbud=28, dcost=12,
           ost='sc1', oxl='sc1', pst='sc1', rld='', pub=13, pol=3, pe=12, oxs=1, oxn=2, wls=6, ctouch=1,
           dlast=640, thr=2.0**40, xreg=1)
for a in sys.argv[2:]:
    k, v = a.split('=')
    try: OPT[k] = int(v, 0)
    except ValueError:
        try: OPT[k] = float(v)
        except ValueError: OPT[k] = v.replace('+', ' ')

def f2u(x): return struct.unpack('<I', struct.pack('<f', x))[0]
SCALE = math.log2(math.e) / math.sqrt(128.0)

XBLK = 1056; XSZ = 24 * XBLK
WQSZ = 32768
BUFSZ = XSZ + WQSZ
BUFA = 163840 - 2 * BUFSZ
KRG = 4128
KSZ = 4 * KRG; VSZ = 16384
KS = [0, 32896, 65792, 98688, 131584]
VS = [16512, 49408, 82304, 115200]
SPARE = 148096
WIN = 65792
O_WS_OFF = 0x1000000; O_BYTES = 16 * 192 * 4096 * 2
FLAG_OFF = 0x800000
P_WS_OFF = 0x4000000; P_BYTES = 4 * 16 * 192 * 512 * 2

def srd(p, d, lo, hi, size):
    p.I(f"s_mov_b32 s{d}, s{lo}\ns_and_b32 s{d+1}, s{hi}, 0xffff\ns_mov_b32 s{d+2}, {size}\ns_mov_b32 s{d+3}, 0x00020000")
def stamp_ops(idx):
    if not OPT['stamp'] or (OPT['stamp'] == 3 and idx > 1): return []
    return ["s_memrealtime s[78:79]", "s_memtime s[76:77]", "s_waitcnt lgkmcnt(0)", f"s_mov_b32 s{80+idx}, s78", f"s_mov_b32 s{90+idx}, s76"]
def stamp(p, idx):
    for x in stamp_ops(idx): p.I(x)
def stamp_out(p, nst, base_off):
    if not OPT['stamp']: return
    p.I(f"""
s_mov_b32 s72, s18
s_and_b32 s73, s19, 0xffff
s_mov_b32 s74, 0x1000000
s_mov_b32 s75, 0x00020000
s_lshl_b32 s76, s2, 2
s_add_u32 s76, s76, s3
s_lshl_b32 s76, s76, 7
s_add_u32 s76, s76, {base_off}
v_mov_b32 v1, 0
""")
    for i in range(nst):
        p.I(f"v_mov_b32 v2, s{80+i}\nbuffer_store_dword v2, v1, s[72:75], s76 offen offset:{4*i}")
        p.I(f"v_mov_b32 v2, s{90+i}\nbuffer_store_dword v2, v1, s[72:75], s76 offen offset:{64+4*i}")

def txt(x): return x.text if isinstance(x, Ins) else x
def cost(x):
    mn = txt(x).split()[0]
    if mn.startswith('v_exp') or mn.startswith('v_rcp'): return 8
    if mn.startswith('ds_write'): return 8
    if mn.startswith('buffer_') or mn.startswith('global_'): return OPT['dcost']
    if mn.startswith('v_pk_'): return 8
    return 4
class Slots(dict):
    def put(self, g, x): self.setdefault(g, []).extend(x if isinstance(x, list) else [x])
def em(p, x):
    if isinstance(x, Ins): p.add(x)
    else: p.I(x)
def schedule(p, mfmas, fixed, streams=(), budget=None):
    streams = [list(s) for s in streams]
    for x in fixed.get(-1, []): em(p, x)
    for g, m in enumerate(mfmas):
        p.I(m)
        used = 0
        for f in fixed.get(g, []):
            em(p, f); used += cost(f)
        b = budget(g) if budget else OPT['bud']
        while True:
            c = [s for s in streams if s and s[0][1] <= g]
            if not c: break
            fs = [s for s in c if any(x[2] <= g for x in s[:200])]
            s = fs[0] if fs else min(c, key=lambda s: min(x[2] for x in s[:8]))
            if fs or used + cost(s[0][0]) <= b:
                op = s.pop(0)[0]; em(p, op); used += cost(op)
            else: break
    for s in streams:
        for op, _, _ in s: em(p, op)
    for g in fixed:
        assert g < len(mfmas), f"fixed slot {g} beyond region {len(mfmas)}: {fixed[g]}"

vK, vV0, vV1 = 240, 241, 242
vOK = [243, 244]; vOV = [245, 246]
vL = [247, 248, 249]
vX, vW0, vW1, vOX, vOW = 250, 251, 252, 253, 254
vSY = 255
S = [64, 112]; NEGM = [224, 160, 176]; QB = [192, 0, 32]
FR = 224
def fr(n): return FR + (n % 8) * 4
def qfrag(t, ksd): b = QB[t] + 4 * ksd; return f"v[{b}:{b+3}]"
def acc(t, dt): return (t * 4 + dt) * 16

def kv_addr_setup(lane, t0):
    a, b, c, d, e = [f"v{t0+i}" for i in range(5)]
    return f"""v_lshrrev_b32 {a}, 3, {lane}
v_and_b32 {b}, 7, {lane}
v_bfe_u32 {c}, {lane}, 4, 1
v_xor_b32 {d}, {b}, {c}
v_lshlrev_b32 {d}, 4, {d}
v_lshlrev_b32 {e}, 2, {c}
v_xor_b32 {e}, {b}, {e}
v_lshlrev_b32 {e}, 4, {e}
v_lshl_add_u32 {d}, {a}, 8, {d}
v_lshl_add_u32 {e}, {a}, 8, {e}
s_lshl_b32 s66, s3, 11
s_add_u32 s67, s66, 128
s_add_u32 s66, s66, 1024
v_add_u32 v{vOK[0]}, s66, {d}
v_add_u32 v{vOK[1]}, s67, {d}
v_add_u32 v{vOV[0]}, s66, {e}
v_add_u32 v{vOV[1]}, s67, {e}
s_lshr_b32 s66, s3, 1
s_lshl_b32 s66, s66, 11
v_bfe_u32 {a}, {lane}, 3, 2
v_mul_u32_u24 {a}, {KRG}, {a}
v_lshl_add_u32 {a}, {b}, 7, {a}
v_lshrrev_b32 {c}, 5, {lane}
v_bfe_u32 {d}, {lane}, 1, 1
v_xor_b32 {d}, {c}, {d}
v_lshl_add_u32 {a}, {d}, 4, {a}
v_add_u32 v{vK}, s66, {a}
v_bfe_u32 {a}, {lane}, 2, 2
v_lshlrev_b32 {a}, 7, {a}
v_lshl_add_u32 {a}, {c}, 9, {a}
v_bfe_u32 {d}, {lane}, 3, 1
v_lshl_add_u32 {a}, {d}, 6, {a}
v_bfe_u32 {d}, {lane}, 4, 1
v_lshl_add_u32 {a}, {d}, 5, {a}
v_and_b32 {d}, 3, {lane}
v_lshl_add_u32 {a}, {d}, 3, {a}
v_add_u32 v{vV0}, s66, {a}
v_xor_b32 v{vV1}, 64, v{vV0}
s_mul_i32 s61, s3, {KRG}
s_lshl_b32 s62, s3, 12""".split('\n')

def kv_tile(kind, n, dst, soff=None, tag=True):
    pre = [f"s_add_u32 m0, s{61 if kind == 'K' else 62}, {dst}"]
    if soff is None:
        pre.append(f"s_mov_b32 s59, {n*8192}"); soff = "s59"
    dm = []
    for hd in range(2):
        for half in range(2):
            sr = (28 if kind == 'K' else 36) + 4 * hd
            v = (vOK if kind == 'K' else vOV)[half]
            dm.append(Ins(f"buffer_load_dwordx4 v{v}, s[{sr}:{sr+3}], {soff} offen offset:{hd*2048+half*1024} {OPT['kfl'] if kind == 'K' else OPT['vfl']} lds", lw=[f"{kind}{n}"] if tag else []))
    return pre, dm
def k_read(ks, off): b = fr(ks); return f"ds_read_b128 a[{b}:{b+3}], v{vK} offset:{off + (ks>>2)*1024 + (ks&3)*32}"
def v_read(j, sec, off):
    ks, dt = j >> 2, j & 3
    b = fr(8 + j) + 2 * sec
    return f"ds_read_b64_tr_b16 a[{b}:{b+1}], v{vV1 if dt & 1 else vV0} offset:{off + (2*ks + sec)*4096 + (dt>>1)*1024}"
def s_mfma(buf, t, ks, czero=False):
    d = f"v[{buf+t*16}:{buf+t*16+15}]"
    c = d if ks else ("0" if czero else f"v[{NEGM[t]}:{NEGM[t]+15}]")
    return f"v_mfma_f32_32x32x16_bf16 {d}, a[{fr(ks)}:{fr(ks)+3}], {qfrag(t, ks)}, {c}"
def pv_mfma(buf, j, t, czero=False):
    ks, dt = j >> 2, j & 3
    o = (dt * 3 + t) * 16
    b = buf + t * 16 + 8 * ks
    c = "0" if (czero and ks == 0) else f"a[{o}:{o+15}]"
    return f"v_mfma_f32_32x32x16_bf16 a[{o}:{o+15}], a[{fr(8+j)}:{fr(8+j)+3}], v[{b}:{b+3}], {c}"
def ereg(buf, e):
    h, t, j = e // 24, (e % 24) // 8, e % 8
    return buf + t * 16 + 8 * h + j, t
def sm_ops(buf, e):
    out = []
    if e < 48:
        r, t = ereg(buf, e); out.append(f"v_exp_f32 v{r}, v{r}")
    if 1 <= e <= 48:
        r, t = ereg(buf, e - 1); out.append(f"v_add_f32 v{vL[t]}, v{vL[t]}, v{r}")
    if e >= 2 and e % 2 == 0 and e <= 48:
        r, t = ereg(buf, e - 2); base = r - ((e - 2) % 8)
        out.append(f"v_cvt_pk_bf16_f32 v{base + ((e-2) % 8)//2}, v{r}, v{r+1}")
    return out

rOW = [250, 251]; rLn = 252
rA = [240, 241]
RC = [224, 226, 228]
WSL = [KS[1], KS[2], KS[3], VS[0], KS[4], VS[1], KS[0], VS[2], VS[3]]
NSL = len(WSL)
def step_of(sig): return (0, sig) if sig < 4 else (1 + (sig - 4) % 3, (sig - 4) // 3)
def wo_setup():
    a, b, c = "v253", "v254", f"v{rOW[1]}"
    out = f"""v_mbcnt_lo_u32_b32 v{rLn}, -1, 0
v_mbcnt_hi_u32_b32 v{rLn}, -1, v{rLn}
s_and_b32 s71, s49, 3
s_andn2_b32 s70, s49, 3
s_lshl_b32 s67, s71, 8
s_lshl_b32 s68, s3, 13
s_add_u32 s69, s68, {0x20000 - 2048}
v_lshrrev_b32 {a}, 3, v{rLn}
v_and_b32 {b}, 7, v{rLn}
v_bfe_u32 {c}, v{rLn}, 4, 1
v_lshlrev_b32 {c}, 2, {c}
v_xor_b32 {b}, {b}, {c}
v_lshlrev_b32 {b}, 4, {b}
v_lshl_add_u32 {b}, {a}, 10, {b}
v_add_u32 v{rOW[0]}, s68, {b}
v_add_u32 v{rOW[1]}, s69, {b}""".split('\n')
    for rho in range(4):
        out += [f"s_add_u32 s69, s71, {rho}", "s_and_b32 s69, s69, 3", "s_add_u32 s69, s69, s70", f"s_lshl_b32 s{WOB[rho]}, s69, 18", f"s_add_u32 s{WOB[rho]}, s{WOB[rho]}, s67"]
    return out
WOB = [50, 56, 57, 58]
def wo_tile(sig):
    rho, dq = step_of(sig)
    dst = WSL[sig % NSL]
    out = []
    for hd in range(2):
        for pos in range(2):
            half = pos ^ hd
            d = dq * 32768 + half * 128 - pos * 1024 + 1024
            pre = [f"s_add_u32 s59, s{WOB[rho]}, {d}"]
            if hd == 0 and pos == 0: pre = [f"s_add_u32 m0, s62, {dst}"] + pre
            out.append((pre, Ins(f"buffer_load_dwordx4 v{rOW[hd]}, s[8:11], s59 offen offset:{hd*2048+pos*1024} lds", lw=[f"W{sig}"])))
    return out
def fin_ops():
    T = [232, 233, 234]
    fin = []
    for t in range(3): fin.append(f"v_mov_b32 v{T[t]}, v{vL[t]}")
    for t in range(3): fin.append(f"v_permlane32_swap_b32 v{T[t]}, v{vL[t]}")
    for t in range(3): fin.append(f"v_add_f32 v{vL[t]}, v{vL[t]}, v{T[t]}")
    for t in range(3): fin.append(f"v_rcp_f32 v{RC[t]}, v{vL[t]}")
    for t in range(3): fin.append(f"v_mov_b32 v{RC[t]+1}, v{RC[t]}")
    return fin
NWPRE = OPT.get('nwpre', 6)

OXS = [63, 64, 65, 70]
rL16 = 252
RAW = [[253, 240], [243, 244], [245, 246]]
vPA, vPD, vFD = 254, 241, 242
NBR = 5
RD = 4
def bfr(sig, ks, t): return ((sig + 3) % NBR) * 24 + (ks * 3 + t) * 4
GR = [(0, ks, n) for ks in range(2) for n in range(3)] + [(0, 0, 3), (0, 1, 3)]
for _sig in range(1, 13): GR += [(_sig, ks, n) for ks in range(2) for n in range(4)]
GR += [(_sig, ks, n) for n in (2, 3, 0, 1) for _sig in (13, 14, 15) for ks in range(2)]
def a_rd(k, sec):
    sig, ks, n = GR[k]
    b = fr(k) + 2 * sec
    a = WSL[sig % NSL]; w = a // WIN
    return f"ds_read_b64_tr_b16 a[{b}:{b+1}], v{RAW[w][n & 1]} offset:{a - w*WIN + (2*ks + sec)*4096 + (n>>1)*1024}"
def op_setup():
    out = f"""s_lshl_b32 s68, s48, 1
s_and_b32 s69, s3, 1
s_add_u32 s68, s68, s69
s_lshl_b32 s68, s68, 5
s_lshr_b32 s69, s3, 1
s_add_u32 s68, s68, s69
s_lshl_b32 s69, s70, 1
s_add_u32 s68, s68, s69
s_lshl_b32 s15, 15, s70
s_lshl_b32 s16, 0x1111, s71""".split('\n')
    for rho in range(4):
        out += [f"s_add_u32 s69, s71, {rho}", "s_and_b32 s69, s69, 3", "s_lshl_b32 s69, s69, 1", "s_add_u32 s69, s69, s68", f"s_mul_i32 s{OXS[rho]}, s69, 24576"]
    out += f"""v_bfe_u32 v253, v{rLn}, 2, 2
v_lshlrev_b32 v253, 7, v253
v_lshrrev_b32 v254, 5, v{rLn}
v_lshl_add_u32 v253, v254, 9, v253
v_bfe_u32 v254, v{rLn}, 3, 1
v_lshl_add_u32 v253, v254, 6, v253
v_bfe_u32 v254, v{rLn}, 4, 1
v_lshl_add_u32 v253, v254, 5, v253
v_and_b32 v254, 1, v{rLn}
v_lshl_add_u32 v253, v254, 4, v253
v_bfe_u32 v254, v{rLn}, 1, 1
v_lshl_add_u32 v253, v254, 3, v253
s_lshr_b32 s69, s3, 1
s_lshl_b32 s69, s69, 11
v_add_u32 v253, s69, v253
s_lshl_b32 s69, s49, 2
s_add_u32 s52, s53, s69
v_lshrrev_b32 v254, 4, v{rLn}
v_add_u32 v254, s3, v254
v_min_u32 v254, 1, v254
v_lshlrev_b32 v254, 31, v254
v_lshl_add_u32 v254, v{rLn}, 2, v254
v_lshlrev_b32 v{rL16}, 4, v{rLn}""".split('\n')
    return out
def win_regs():
    return ["v_xor_b32 v240, 64, v253", f"v_add_u32 v243, {WIN}, v253", f"v_add_u32 v244, {WIN}, v240", f"v_add_u32 v245, {2*WIN}, v253", f"v_add_u32 v246, {2*WIN}, v240"]
def norm_unit(dt, pk, tbs=(216, 230)):
    out = []
    for t in range(3):
        for k2 in range(2):
            o = (dt * 3 + t) * 16 + 8 * k2
            tb = tbs[k2]
            out += [f"v_accvgpr_read_b32 v{tb+r}, a{o+r}" for r in range(8)]
            if pk: out += [f"v_pk_mul_f32 v[{tb+2*pr}:{tb+2*pr+1}], v[{tb+2*pr}:{tb+2*pr+1}], v[{RC[t]}:{RC[t]+1}]" for pr in range(4)]
            else: out += [f"v_mul_f32 v{tb+r}, v{RC[t]}, v{tb+r}" for r in range(8)]
            b = bfr(dt, k2, t)
            out += [f"v_cvt_pk_bf16_f32 v{b+pr}, v{tb+2*pr}, v{tb+2*pr+1}" for pr in range(4)]
            out.append(f"s_add_u32 s67, s63, {(2*dt+k2)*3072}")
            out.append(Ins(f"buffer_store_dwordx4 v[{b}:{b+3}], v{rL16}, s[44:47], s67 offen offset:{t*1024} {OPT['ost']}", lw=["OA" if dt < 2 else "OB"]))
    return out

def gen_k1():
    p = Prog(); I = p.I
    vM = [vX, vW0, vW1]; vT = [vOX, vOW, vOX]
    I("s_cmp_ge_u32 s2, 256\ns_cbranch_scc1 L1_end")
    stamp(p, 0)
    I("s_load_dwordx16 s[4:19], s[0:1], 0")
    I(f"""
v_lshrrev_b32 v1, 6, v0
v_min_u32 v{vSY}, 1, v0
v_lshlrev_b32 v{vSY}, 31, v{vSY}
v_lshrrev_b32 v230, 4, v0
v_min_u32 v230, 1, v230
v_lshlrev_b32 v230, 31, v230
v_lshl_add_u32 v230, v0, 2, v230
v_and_b32 v0, 63, v0
v_readfirstlane_b32 s3, v1
s_and_b32 s66, s2, 7
s_lshr_b32 s67, s2, 3
s_and_b32 s48, s66, 1
s_lshl_b32 s48, s48, 3
s_lshr_b32 s68, s67, 2
s_add_u32 s48, s48, s68
s_lshr_b32 s49, s66, 1
s_lshl_b32 s49, s49, 2
s_and_b32 s69, s67, 3
s_add_u32 s49, s49, s69
s_lshl_b32 s65, s66, 3
s_add_u32 s65, s65, s68
s_mul_i32 s52, s69, {OPT['rh']}
s_mul_i32 s68, s68, {OPT['rb']}
s_add_u32 s52, s52, s68
s_and_b32 s52, s52, {OPT['rmask']}
v_lshrrev_b32 v2, 3, v0
v_and_b32 v3, 7, v0
v_bfe_u32 v4, v0, 4, 1
v_xor_b32 v5, v3, v4
v_lshlrev_b32 v5, 4, v5
v_lshlrev_b32 v6, 2, v4
v_xor_b32 v6, v3, v6
v_lshlrev_b32 v6, 4, v6
v_lshl_add_u32 v{vOX}, v2, 10, v5
v_lshl_add_u32 v{vOW}, v2, 13, v6
s_mul_i32 s50, s48, {192*1024}
s_mul_i32 s66, s3, {48*1024}
s_add_u32 s50, s50, s66
s_lshl_b32 s51, s49, 9
s_lshl_b32 s66, s3, 7
s_add_u32 s51, s51, s66
s_mul_i32 s57, s3, {6*XBLK}
s_lshl_b32 s58, s3, 10
s_waitcnt lgkmcnt(0)
""")
    srd(p, 20, 4, 5, 16 * 192 * 1024 * OPT['xw'])
    srd(p, 24, 10, 11, 512 * 8192 * OPT['xw'])
    def stage_dma(st):
        buf = BUFA + (st & 1) * BUFSZ
        pre0 = ["s_lshl_b32 s54, s52, 7", "s_add_u32 s54, s54, s50", "s_lshl_b32 s55, s52, 19", "s_add_u32 s55, s55, s51",
                "s_add_u32 s52, s52, 1", "s_and_b32 s52, s52, 7"]
        out = []
        for j in range(6):
            out.append(([f"s_add_u32 m0, s57, {buf + j*XBLK}", f"s_add_u32 s56, s54, {j*8192}"],
                        Ins(f"buffer_load_dwordx4 v{vOX}, s[20:23], s56 offen lds", lw=[f"Q{st}"])))
        for rg in range(8):
            out.append(([f"s_add_u32 m0, s58, {buf + XSZ + rg*4096}", f"s_add_u32 s56, s55, {rg*65536}"],
                        Ins(f"buffer_load_dwordx4 v{vOW}, s[24:27], s56 offen lds", lw=[f"Q{st}"])))
        out[0] = (pre0 + out[0][0], out[0][1])
        return out
    def emit_vm(lst):
        for pre, x in lst:
            for y in pre: I(y)
            em(p, x)
    def touch(st_ahead):
        if not OPT['la']: return []
        return [([f"s_add_u32 s66, s52, {st_ahead}", "s_and_b32 s66, s66, 7", "s_lshl_b32 s67, s66, 7", "s_lshl_b32 s66, s66, 19"],
                 f"buffer_load_dword a{TCH[0] % 8 + 98}, v228, s[20:23], s67 offen"),
                ([], f"buffer_load_dword a{(TCH[0] + 1) % 8 + 98}, v229, s[24:27], s66 offen")] + [TCH.__setitem__(0, TCH[0] + 2)][:0]
    TCH = [0]
    if OPT['la']:
        I(f"""
v_min_u32 v228, 11, v0
v_lshlrev_b32 v228, 10, v228
s_mul_i32 s66, s48, {192*1024}
s_and_b32 s67, s49, 3
s_mul_i32 s67, s67, {48*1024}
s_add_u32 s66, s66, s67
s_mul_i32 s67, s3, {12*1024}
s_add_u32 s66, s66, s67
v_add_u32 v228, s66, v228
v_bfe_u32 v229, v0, 2, 1
v_lshlrev_b32 v229, 13, v229
v_and_b32 v7, 3, v0
v_lshl_add_u32 v229, v7, 7, v229
s_and_b32 s66, s48, 7
s_lshl_b32 s66, s66, 2
s_add_u32 s66, s66, s3
s_lshl_b32 s66, s66, 14
s_lshl_b32 s67, s49, 9
s_add_u32 s66, s66, s67
v_add_u32 v229, s66, v229
""")
        for a_ in range(1, OPT['la'] + 1): emit_vm(touch(a_))
    emit_vm(stage_dma(0))
    if OPT['ctouch']:
        I(f"""
s_getpc_b64 s[68:69]
L1_pc:
s_lshr_b32 s66, s2, 3
s_lshl_b32 s66, s66, 2
s_add_u32 s66, s66, s3
s_lshl_b32 s66, s66, 9
s_min_u32 s66, s66, L1_code_end-L1_pc-512
s_add_u32 s68, s68, s66
s_addc_u32 s69, s69, 0
v_lshlrev_b32 v7, 3, v0
global_load_dword a255, v7, s[68:69]
""")
    for x in kv_addr_setup("v0", 2): I(x)
    ksz = (131072 + 3072) * OPT['kvsz']
    I(f"""
s_lshl_b32 s66, s48, 5
s_lshl_b32 s67, s49, 1
s_add_u32 s66, s66, s67
s_lshl_b32 s66, s66, 17
s_add_u32 s28, s6, s66
s_addc_u32 s29, s7, 0
s_sub_u32 s28, s28, 1024
s_subb_u32 s29, s29, 0
s_and_b32 s29, s29, 0xffff
s_add_u32 s32, s28, {0x20000 - 2048}
s_addc_u32 s33, s29, 0
s_add_u32 s36, s8, s66
s_addc_u32 s37, s9, 0
s_sub_u32 s36, s36, 1024
s_subb_u32 s37, s37, 0
s_and_b32 s37, s37, 0xffff
s_add_u32 s40, s36, {0x20000 - 2048}
s_addc_u32 s41, s37, 0
s_mov_b32 s30, {(131072 + 1024) * OPT['kvsz']}
s_mov_b32 s34, {ksz}
s_mov_b32 s38, {(131072 + 1024) * OPT['kvsz']}
s_mov_b32 s42, {ksz}
s_mov_b32 s31, 0x00020000
s_mov_b32 s35, 0x00020000
s_mov_b32 s39, 0x00020000
s_mov_b32 s43, 0x00020000
s_add_u32 s44, s18, {O_WS_OFF}
s_addc_u32 s45, s19, 0
s_and_b32 s45, s45, 0xffff
s_mov_b32 s46, {P_WS_OFF - O_WS_OFF + P_BYTES}
s_mov_b32 s47, 0x00020000
s_mov_b32 s72, s16
s_and_b32 s73, s17, 0xffff
s_mov_b32 s74, 256
s_mov_b32 s75, 0x00020000
s_mov_b32 s64, {f2u(SCALE):#x}
s_add_u32 s4, s18, {FLAG_OFF}
s_addc_u32 s5, s19, 0
s_and_b32 s5, s5, 0xffff
s_mov_b32 s6, 8192
s_mov_b32 s7, 0x00020000
s_lshl_b32 s53, s48, 7
s_lshl_b32 s65, s48, 2
s_add_u32 s65, s65, 64
s_sub_u32 s8, s12, 1024
s_subb_u32 s9, s13, 0
s_and_b32 s9, s9, 0xffff
s_mov_b32 s10, {4096*1024+1024}
s_mov_b32 s11, 0x00020000
s_lshr_b32 s63, s49, 2
s_lshl_b32 s63, s63, 5
s_lshr_b32 s66, s2, 3
s_add_u32 s63, s63, s66
s_lshl_b32 s63, s63, 2
s_add_u32 s63, s63, s3
s_lshl_b32 s63, s63, 13
s_lshr_b32 s66, s3, 1
s_and_b32 s67, s3, 1
v_bfe_u32 v3, v0, 3, 2
v_mul_u32_u24 v3, {XBLK}, v3
v_and_b32 v4, 7, v0
v_lshl_add_u32 v3, v4, 7, v3
v_lshrrev_b32 v4, 5, v0
v_bfe_u32 v5, v0, 1, 1
v_xor_b32 v5, v4, v5
v_lshl_add_u32 v3, v5, 4, v3
s_mul_i32 s68, s67, {12*XBLK}
s_add_u32 s68, s68, {BUFA}
v_add_u32 v{vX}, s68, v3
v_bfe_u32 v2, v0, 2, 2
v_lshlrev_b32 v2, 7, v2
v_bfe_u32 v3, v0, 3, 1
v_lshl_add_u32 v2, v3, 6, v2
v_bfe_u32 v3, v0, 4, 1
v_lshl_add_u32 v2, v3, 5, v2
v_and_b32 v3, 1, v0
v_lshl_add_u32 v2, v3, 4, v2
v_bfe_u32 v3, v0, 1, 1
v_lshl_add_u32 v2, v3, 3, v2
v_lshl_add_u32 v2, v4, 12, v2
s_lshl_b32 s68, s66, 11
s_add_u32 s68, s68, {BUFA + XSZ}
v_add_u32 v{vW0}, s68, v2
v_xor_b32 v{vW1}, 64, v{vW0}
""")
    for r in vL: I(f"v_mov_b32 v{r}, 0")
    if OPT['tlb']:
        I(f"""
s_mul_i32 s66, s48, {2*786432}
s_lshr_b32 s67, s49, 2
s_mul_i32 s68, s67, {8*24576}
s_add_u32 s66, s66, s68
s_lshl_b32 s67, s67, 4
s_add_u32 s67, s67, s48
s_mul_i32 s67, s67, {6*32768}
s_add_u32 s67, s67, {P_WS_OFF - O_WS_OFF}
s_add_u32 s68, s66, 786432
s_add_u32 s69, s67, {6*32768 - 4}
buffer_load_dword a186, v{vSY}, s[28:31], 0 offen offset:1024
buffer_load_dword a187, v{vSY}, s[36:39], 0 offen offset:1024
buffer_load_dword a188, v{vSY}, s[8:11], s63 offen offset:1024
buffer_load_dword a189, v{vSY}, s[44:47], s66 offen
buffer_load_dword a190, v{vSY}, s[44:47], s68 offen
buffer_load_dword a191, v{vSY}, s[44:47], s67 offen
buffer_load_dword a106, v{vSY}, s[44:47], s69 offen
buffer_load_dword a107, v{vSY}, s[4:7], s53 offen
buffer_load_dword a108, v{vSY}, s[72:75], s65 offen
""")
    st1 = stage_dma(1)
    emit_vm(st1[:OPT['pre1']])
    PFT = [('K', 1, 0), ('V', 1, 16), ('K', 2, 32), ('V', 2, 48), ('K', 3, 64), ('V', 3, 80)]
    def pf_load(kind, n, base):
        out = []
        for hd in range(2):
            for half in range(2):
                r = base + 4 * (hd * 2 + half)
                sr = (28 if kind == 'K' else 36) + 4 * hd
                v = (vOK if kind == 'K' else vOV)[half]
                out.append(([f"s_mov_b32 s60, {n*8192}"] if hd + half == 0 else [],
                            f"buffer_load_dwordx4 a[{r}:{r+3}], v{v}, s[{sr}:{sr+3}], s60 offen offset:{hd*2048+half*1024} {OPT['kfl'] if kind == 'K' else OPT['vfl']}"))
        return out
    def pf_write(kind, base, areg, off):
        return [f"ds_write_b128 v{areg}, a[{base+4*i}:{base+4*i+3}] offset:{off + i*1024}" for i in range(4)]
    def tile_vm(kind, n, dst):
        pre, dm = kv_tile(kind, n, dst)
        return [(pre if i == 0 else [], d) for i, d in enumerate(dm)]
    NA, NB = 112, 144
    def a_read(ks, dt, sec, dst): return f"ds_read_b64_tr_b16 a[{dst+2*sec}:{dst+2*sec+1}], v{vW1 if dt & 1 else vW0} offset:{ks*8192 + (dt>>1)*1024 + sec*512}"
    def b_read(ks, t, dst): return f"ds_read_b128 a[{dst}:{dst+3}], v{vX} offset:{t*4*XBLK + ks*32}"
    def qp_reads(ks):
        par = ks & 1
        A = [a_read(ks, dt, sec, NA + 16 * par + 4 * dt) for dt in range(4) for sec in range(2)]
        B = [b_read(ks, t, NB + 12 * par + 4 * t) for t in range(3)]
        return A[:2] + B + A[2:]
    def qp_mfmas(first):
        ms = []
        for ks in range(4):
            par = ks & 1
            for dt in range(4):
                for t in range(3):
                    d = f"v[{acc(t,dt)}:{acc(t,dt)+15}]"
                    a = NA + 16 * par + 4 * dt; b = NB + 12 * par + 4 * t
                    ms.append(f"v_mfma_f32_32x32x16_bf16 {d}, a[{a}:{a+3}], a[{b}:{b+3}], {'0' if first and ks == 0 else d}")
        return ms
    A7 = [112, 168, 128, 144]; B7 = [192, 208, 192]
    def put_vm(sl, gaps, lst):
        for g, (pre, x) in zip(gaps, lst):
            sl.put(g - 1, list(pre))
            sl.setdefault(g, []).insert(0, x)
        assert len(gaps) >= len(lst), (len(gaps), len(lst))
    def qp_stage(s, carry):
        sl = Slots()
        def put_reads(g0, rs):
            for i, r in enumerate(rs): sl.put(g0 + 2 * (i // 2), r)
        for ks in range(3): put_reads(ks * 12, qp_reads(ks + 1))
        put_vm(sl, list(range(1, 35, 2)), carry)
        d = BUFSZ if s % 2 == 0 else -BUFSZ
        op = (lambda r: f"v_add_u32 v{r}, {d}, v{r}") if d > 0 else (lambda r: f"v_subrev_u32 v{r}, {-d}, v{r}")
        sl.put(35, [op(vX), op(vW0), op(vW1), "s_waitcnt lgkmcnt(0)", Ins("s_barrier", lr=[f"Q{s+1}"] + (["K0", "V0"] if s == 6 else []))])
        left = []
        if s == 6:
            sl.put(1, ["s_mov_b32 s12, 1", "v_and_b32 v225, 31, v224", "v_lshlrev_b32 v225, v225, 1"])
            sl.put(3, ["v_cmp_gt_u32 vcc, 0x100, v224"])
            sl.put(5, ["v_cndmask_b32 v225, 0, v225, vcc"])
            for i_ in range(16):
                sl.put(7 + i_, [f"v_readlane_b32 s{14 + (i_ & 1)}, v225, {i_}"] + ([f"s_or_b32 s12, s12, s{14 + ((i_ - 1) & 1)}"] if i_ else []))
            sl.put(24, ["s_or_b32 s12, s12, s15"])
            sl.put(26, ["s_ff0_i32_b32 s12, s12"])
        if s < 6:
            put_reads(36, qp_reads(0))
            post = stage_dma(s + 2)
            put_vm(sl, list(range(37, 48, 2)), post[:6])
            left = post[6:]
        else:
            rs = [a_read(0, dt, sec, A7[0] + 4 * dt) for dt in range(4) for sec in range(2)]
            rs = rs[:2] + [b_read(0, 0, B7[0])] + rs[2:] + [a_read(1, dt, sec, A7[1] + 4 * dt) for dt in range(4) for sec in range(2)] + [b_read(ks, 0, B7[0] + 4 * ks) for ks in (1, 2, 3)]
            for i, r in enumerate(rs): sl.put(36 + (i * 12) // len(rs), r)
        schedule(p, qp_mfmas(s == 0), sl)
        return left
    p.add(Ins("s_barrier", lr=["Q0"]))
    stamp(p, 2)
    for r in qp_reads(0): I(r)
    PFL = []
    for t_ in PFT + ([('K', 4, 96)] if OPT['xreg'] >= 2 else []): PFL += pf_load(*t_)
    def la(s): return touch(OPT['la'] - 1) if (OPT['la'] and s + 1 + OPT['la'] < 8) else []
    carry = qp_stage(0, st1[OPT['pre1']:] + la(0) + tile_vm('K', 0, KS[0]) + tile_vm('V', 0, VS[0]))
    stamp(p, 3)
    for s in range(1, 7):
        ex = [([], f"buffer_load_dword v224, v230, s[4:7], s53 offen sc1")] if s == 4 else []
        pfl = PFL[(s - 1) * len(PFL) // 6: s * len(PFL) // 6]
        carry = qp_stage(s, carry + la(s) + pfl + ex)
    stamp(p, 4)
    ms = []
    for t in range(3):
        for ks in range(4):
            for dt in range(4):
                d = f"v[{acc(t,dt)}:{acc(t,dt)+15}]"
                a = A7[ks] + 4 * dt; b = B7[t] + 4 * ks
                ms.append(f"v_mfma_f32_32x32x16_bf16 {d}, a[{a}:{a+3}], a[{b}:{b+3}], {d}")
    ms += [s_mfma(S[0], t, ks, True) for t in range(3) for ks in range(8)]
    I0 = 72
    def IT(i, g=0): return I0 + 48 * i + g
    ms += [s_mfma(S[1], t, ks) for t in range(3) for ks in range(8)]
    ms += [pv_mfma(S[0], j, t, True) for j in range(8) for t in range(3)]
    for i in range(1, 15):
        ms += [s_mfma(S[(i + 1) & 1], t, ks) for ks in range(8) for t in range(3)]
        ms += [pv_mfma(S[i & 1], j, t) for j in range(8) for t in range(3)]
    TL = IT(15)
    ms += [pv_mfma(S[1], j, t) for j in range(8) for t in range(3)]
    sl = Slots()
    rs = [a_read(ks, dt, sec, A7[ks] + 4 * dt) for ks in (2, 3) for dt in range(4) for sec in range(2)]
    for i, r in enumerate(rs): sl.put(i // 2, r)
    for ks in range(4): sl.put(8 + ks, b_read(ks, 1, B7[1] + 4 * ks))
    for ks in range(4): sl.put(17 + ks, b_read(ks, 2, B7[2] + 4 * ks))
    sl.put(-1, [f"v_mbcnt_lo_u32_b32 v{vOX}, -1, 0", f"v_mbcnt_hi_u32_b32 v{vOX}, -1, v{vOX}", f"v_lshlrev_b32 v{vOX}, 4, v{vOX}",
                f"v_add_u32 v{vOW}, s62, v{vOX}", f"v_add_u32 v{vOX}, s61, v{vOX}"])
    w1 = pf_write('K', 0, vOX, KS[1]) + pf_write('V', 16, vOW, VS[1])
    WS2 = OPT['ws2']
    for i, x in enumerate(w1): sl.put(WS2 * i, x)
    sl.put(WS2 * 8 - 1, [f"v_add_u32 v{vOX}, {WIN}, v{vOX}", f"v_add_u32 v{vOW}, {WIN}, v{vOW}"])
    w2 = pf_write('K', 32, vOX, KS[2] - WIN) + pf_write('V', 48, vOW, VS[2] - WIN)
    for i, x in enumerate(w2): sl.put(WS2 * (8 + i), x)
    sl.put(25, ["s_waitcnt lgkmcnt(1)", "s_barrier"])
    w3 = pf_write('K', 64, vOX, KS[3] - WIN) + pf_write('V', 80, vOW, VS[3] - WIN)
    for i, x in enumerate(w3): sl.put(max(WS2 * 16, 26) + 2 * i, x)
    for ks in range(8): sl.put(33 + 2 * ks, k_read(ks, KS[0]))
    sl.put(52, ["s_waitcnt lgkmcnt(0)", "s_barrier"])
    for ks in range(8): sl.put(65 + ks, k_read(ks, KS[1]))
    kwin = 0; vwin = 0
    def win_move(regs, d): return [(f"v_add_u32 v{r}, {d}, v{r}" if d > 0 else f"v_subrev_u32 v{r}, {-d}, v{r}") for r in regs]
    for i in range(0, 16):
        va = VS[i % 4]; w = (va // WIN) * WIN
        if w != vwin:
            sl.put(IT(i, 10) if i < 15 else IT(14, 41), win_move([vV0, vV1], w - vwin)); vwin = w
        for j in range(8):
            if i == 0: g0 = max(89 + j, IT(0, 15 + 3 * j)); g1 = g0 + (0 if j < 2 else 1)
            elif i < 15: g0 = IT(i, 15 + 3 * j); g1 = g0 + 1
            else: g0 = max(IT(14, 42 + 2 * j), TL + 3 * j - 9); g1 = g0 + 1
            sl.put(g0, v_read(j, 0, va - vwin)); sl.put(g1, v_read(j, 1, va - vwin))
        if i == 15: break
        need = [f"V{i+1}"] + ([f"K{i+2}"] if i + 2 < 16 else [])
        sl.put(IT(i, 40), ["s_waitcnt lgkmcnt(0)", Ins("s_barrier", lr=need)])
        n = i + 2
        if n < 16:
            ka = KS[n % 5]; w = (ka // WIN) * WIN
            if w != kwin:
                sl.put(IT(i, 38), win_move([vK], w - kwin)); kwin = w
            for ks, g in enumerate([IT(i, 42), IT(i, 44), IT(i, 46), IT(i + 1, 1), IT(i + 1, 4), IT(i + 1, 7), IT(i + 1, 10), IT(i + 1, 13)]):
                sl.put(g, k_read(ks, ka - kwin))
    XR = OPT['xreg']
    tiles = []
    def add_tile(kind, n, ear):
        dst = KS[n % 5] if kind == 'K' else VS[n % 4]
        tiles.append((IT(n - 2, 40) if kind == 'K' else IT(n - 1, 40) - 1, ear, tile_vm(kind, n, dst)))
    if XR < 2: add_tile('K', 4, 27)
    add_tile('K', 5, 54)
    for n in range(6, 16): add_tile('K', n, IT(n - 6, 42))
    for n in range(4 + min(XR, 2), 16): add_tile('V', n, IT(n - 4, 42))
    if XR:
        tiles.append((IT(2, 40), 49, pf_load('V', 4, 192)))
        sl.put(IT(2, 14), [f"v_mbcnt_lo_u32_b32 v{vOW}, -1, 0", f"v_mbcnt_hi_u32_b32 v{vOW}, -1, v{vOW}"])
        sl.put(IT(2, 16), [f"v_lshlrev_b32 v{vOW}, 4, v{vOW}", f"v_add_u32 v{vOW}, s62, v{vOW}"])
        for i, x in enumerate(pf_write('V', 192, vOW, VS[0])): sl.put(IT(2, 18) + 2 * i, x)
    if XR >= 2:
        tiles.append((IT(2, 39), 33, pf_load('V', 5, 208)))
        for i, x in enumerate(pf_write('V', 208, vOW, VS[1])): sl.put(IT(3, 18) + 2 * i, x)
        sl.put(47, [f"v_add_u32 v{vOX}, {WIN}, v{vOX}"])
        for i, x in enumerate(pf_write('K', 96, vOX, KS[4] - 2 * WIN)): sl.put(48 + i, x)
    g_first, g_last = OPT['dfirst'], I0 + OPT['dlast']
    nops = sum(len(t[2]) for t in tiles)
    gaps = []; vm = []; g = g_first - 2.0
    while tiles:
        step = max(2.0, (g_last - g) / (nops - len(gaps)))
        av = [t for t in tiles if t[1] <= g + step]
        t = min(av, key=lambda t: t[0]) if av else min(tiles, key=lambda t: t[1])
        tiles.remove(t)
        for pre, d in t[2]:
            step = max(2.0, (g_last - g) / (nops - len(gaps)))
            g = max(g + step, t[1])
            gi = int(round(g))
            while gi in gaps or (gi - 1) in gaps or any(txt(x).startswith('s_barrier') for x in sl.get(gi, [])): gi += 1
            gaps.append(gi); g = max(g, gi); vm.append((pre, d, t[1]))
        assert gaps[-1] + OPT['kmar'] <= t[0], (txt(t[2][0][1]), gaps[-1], t[0])
    put_vm(sl, gaps, [(a, b) for a, b, _ in vm])
    if OPT.get('verbose'):
        last = {}
        for gi, (pre, d, ear) in zip(gaps, vm):
            if isinstance(d, Ins): last[d.lw[0]] = gi
        for k_, gi in last.items():
            n = int(k_[1:]); nb = IT(n - 2, 40) if k_[0] == 'K' else IT(n - 1, 40)
            sys.stderr.write(f"{k_}: last issue {gi} (iter {(gi-I0)/48:.2f}) margin {nb-gi}\n")
    used_vm = set(gaps)
    def free_gap(g):
        while g in used_vm or (g - 1) in used_vm or (g + 1) in used_vm: g += 1
        used_vm.add(g); return g
    sl.put(-1, ["v_mbcnt_lo_u32_b32 v237, -1, 0", "v_mbcnt_hi_u32_b32 v237, -1, v237", "v_lshlrev_b32 v237, 7, v237"])
    sl.put(free_gap(12), "buffer_load_dword a184, v237, s[8:11], s63 offen offset:1024")
    sl.put(free_gap(14), "buffer_load_dword a185, v237, s[8:11], s63 offen offset:1088")
    if XR < 2:
        sl.put(32, ["v_accvgpr_write_b32 a208, s12", "v_accvgpr_write_b32 a209, 0"])
        sl.put(free_gap(34), f"buffer_atomic_cmpswap a[208:209], v{vSY}, s[72:75], s65 offen sc0 sc1")
        sl.put(IT(8, 6), [f"v_accvgpr_read_b32 v{vX}, a208"])
        sl.put(IT(8, 8), [f"v_readfirstlane_b32 s13, v{vX}"])
        sl.put(IT(8, 10), ["s_cmp_eq_u32 s13, 0", "s_cselect_b32 s13, s12, s13"])
    else:
        sl.put(14, ["v_mov_b32 v238, s12", "v_mov_b32 v239, 0"])
        sl.put(free_gap(16), f"buffer_atomic_cmpswap v[238:239], v{vSY}, s[72:75], s65 offen sc1")
        sl.put(free_gap(IT(4, 20)), f"buffer_load_dword v{vX}, v{vSY}, s[72:75], s65 offen sc1")
        sl.put(IT(8, 8), [f"v_readfirstlane_b32 s13, v{vX}"])
    for i, x in enumerate(wo_setup()): sl.put(IT(9, 2) + i, x)
    wear = [IT(10, 42), IT(11, 42), IT(12, 42), IT(12, 42), IT(13, 42), IT(13, 42)]
    g = max(max(gaps) + 2, IT(13, 10))
    wg_, wl_ = [], []
    for sig in range(NWPRE):
        for pre, d in wo_tile(sig):
            g = free_gap(max(g, wear[sig]))
            while any(txt(x).startswith('s_barrier') for x in sl.get(g, [])): g = free_gap(g + 1)
            wg_.append(g); wl_.append((pre, d)); g += OPT.get('wps', 3)
    put_vm(sl, wg_, wl_)
    conv = []
    for t in range(3):
        for dt in range(4):
            a = acc(t, dt)
            ear = 16 * t + 12 + dt + 3
            for k2 in range(2):
                dl = 48 + 8 * t + 2 * dt + k2 - 2
                if t == 1 and dt < 3: dl = min(dl, 48 + 8 * dt - 2)
                for pr in range(4):
                    r = a + 8 * k2 + 2 * pr
                    conv.append((f"v_mul_f32 v{r}, s64, v{r}", ear, dl))
                    conv.append((f"v_mul_f32 v{r+1}, s64, v{r+1}", ear, dl))
                for pr in range(4):
                    r = a + 8 * k2 + 2 * pr
                    conv.append((f"v_cvt_pk_bf16_f32 v{QB[t] + 4*(2*dt+k2) + pr}, v{r}, v{r+1}", ear, dl))
    mx = []
    for t in range(3):
        b = S[0] + t * 16
        ear0 = 48 + 8 * t + 7 + 3
        ear = ear0 if t == 0 else max(ear0, 71)
        dl = 72 + 8 * t - 2
        ops = [f"v_max3_f32 v{vM[t]}, v{b}, v{b+1}, v{b+2}"]
        ops += [f"v_max3_f32 v{vM[t]}, v{vM[t]}, v{b+r}, v{b+r+1}" for r in range(3, 15, 2)]
        ops += [f"v_max_f32 v{vM[t]}, v{vM[t]}, v{b+15}", f"v_mov_b32 v{vT[t]}, v{vM[t]}", "s_nop 1", f"v_permlane32_swap_b32 v{vT[t]}, v{vM[t]}",
                f"v_max_f32 v{vM[t]}, v{vM[t]}, v{vT[t]}"]
        mx += [(o, ear0, dl) for o in ops]
        mx += [(f"v_sub_f32 v{NEGM[t]+r}, 0, v{vM[t]}", ear, dl) for r in range(16)]
    sm = []
    for n in range(16):
        buf = S[n & 1]
        pv0 = IT(n, 24) if n < 15 else TL
        def dl_of(e): return pv0 + (0 if e < 24 else 12) + (e % 24) // 8 - 2
        for e in range(49):
            t = (min(e, 47) % 24) // 8
            if n == 0: ear = 72 + 8 * t - 1
            elif n == 1: ear = IT(0, 8 * t + 7 + 4)
            else: ear = IT(n - 1, 21 + t + 4)
            if n == 0 and e < 48:
                r, t = ereg(buf, e)
                sm.append((f"v_sub_f32 v{r}, v{r}, v{vM[t]}", ear, dl_of(e) - 1))
            for o in sm_ops(buf, e):
                sm.append((o, ear, dl_of(e) - 1 if o.startswith('v_exp') else dl_of(e - 1)))
    fin = fin_ops()
    vote = [f"s_mov_b32 s66, {f2u(OPT['thr']):#x}",
            f"v_max3_f32 v232, v{vL[0]}, v{vL[1]}, v{vL[2]}", f"v_add_f32 v233, v{vL[0]}, v{vL[1]}", f"v_add_f32 v233, v233, v{vL[2]}",
            f"v_cmp_nge_f32 vcc, s66, v233", f"v_mov_b32 v234, {SPARE}", "s_lshl_b32 s67, s3, 2", "s_cmp_lg_u64 vcc, 0\ns_cselect_b32 s66, 1, 0",
            "v_add_u32 v235, s67, v234", "v_mov_b32 v236, s66", "ds_write_b32 v235, v236"]
    vote = [x for x in vote if 'max3' not in x]
    vote = [x.replace("s67", "s14").replace("s66", "s17") for x in vote]
    sm += [(o, TL + 10, TL + 16) for o in fin + vote]
    sl.put(TL + 18, ["s_waitcnt lgkmcnt(0)", Ins("s_barrier", lr=[f"W{i}" for i in range(4)]), "ds_read_b128 v[236:239], v234"])
    for k in range(RD): sl.put(TL + 19 + k, [a_rd(k, 0), a_rd(k, 1)])
    sm += [(o, TL + 17, TL + 99) for o in norm_unit(0, True, (64, 96))]
    low = [(o, IT(10, 0), IT(13, 0)) for o in op_setup()] + [(o, max(max(gaps) + 1, IT(14, 15)), TL + 10) for o in win_regs()]
    if OPT['stamp']:
        sl.put(IT(1, 0) - 1, stamp_ops(5)); sl.put(TL - 1, stamp_ops(6))
    for i_ in range(1, 15):
        for k_ in range(OPT.get('pad', 0)): sl.put(IT(i_, 5 + 3 * k_), 's_nop 7')
    def bud(g):
        if g < IT(1): return OPT['tbud']
        return OPT['bud'] - (4 if (g - I0) % 3 == 2 else 0)
    schedule(p, ms, sl, [conv, mx, sm, low], budget=bud)
    I("""
v_or3_b32 v236, v236, v237, v238
v_or_b32 v236, v236, v239
v_readfirstlane_b32 s66, v236
s_cmp_lg_u32 s66, 0
s_cbranch_scc1 L1_slow
L1_norm:
""")
    stamp(p, 7)
    def oacc(n, t):
        return (f"v[{120+(n*3+t)*16}:{135+(n*3+t)*16}]" if n < 2 else f"a[{((n-2)*3+t)*16}:{((n-2)*3+t)*16+15}]")
    def op_mfma(k, t):
        sig, ks, n = GR[k]
        b = bfr(sig, ks, t); d = oacc(n, t)
        return f"v_mfma_f32_32x32x16_bf16 {d}, a[{fr(k)}:{fr(k)+3}], v[{b}:{b+3}], {'0' if (sig == 0 and ks == 0) else d}"
    stamp(p, 8)
    nrm = []
    late = []
    for dt, dl in ((1, 18), (2, 48), (3, 72)):
        u = norm_unit(dt, OPT['npk'])
        if dt >= OPT['ldt']:
            for i_, x in enumerate(u):
                if isinstance(x, Ins): late.append(([u[i_ - 1]], x))
            u = [x for i_, x in enumerate(u) if not isinstance(x, Ins) and not (i_ + 1 < len(u) and isinstance(u[i_ + 1], Ins))]
        nrm += [(x, 0, dl - 2) for x in u]
    def ox_load(sig):
        rho, dq = step_of(sig)
        out = []
        for ks in range(2):
            for t in range(3):
                b = bfr(sig, ks, t)
                out.append(([f"s_add_u32 s60, s{OXS[rho]}, {(2*dq+ks)*3072}"] if t == 0 else [],
                            f"buffer_load_dwordx4 v[{b}:{b+3}], v{rL16}, s[44:47], s60 offen offset:{t*1024} {OPT['oxl']}"))
        return out
    al = Slots()
    for k in range(len(GR)):
        kn = k + RD
        if kn < len(GR):
            nxt = (kn >> 3) != (k >> 3)
            g0 = 3 * k + (2 if nxt else 0)
            al.put(g0, a_rd(kn, 0)); al.put(min(g0 + 1, (k >> 3) * 24 + 23), a_rd(kn, 1))
    def bar(g, need, extra=()):
        al.put(g, ["s_waitcnt lgkmcnt(0)", Ins("s_barrier", lr=list(need))] + list(extra))
    PA, PL, PB, PL2 = OPT['pa'], OPT['pl'], 3 * 24 + 13, OPT['pl2']
    al.put(PA, [Ins("s_barrier", lr=["OA"]), "s_or_b32 s66, s13, 0x20", "v_mov_b32 v242, s66", f"buffer_store_dword v242, v{vSY}, s[4:7], s52 offen sc1"])
    bar(12 * 24 + 13, ["W14", "W15"])
    for s_ in (3, 5, 7, 9, 11):
        ex = ["s_or_b32 s66, s13, 0x60", "v_mov_b32 v242, s66", f"buffer_store_dword v242, v{vSY}, s[4:7], s52 offen sc1"] if s_ == OPT['pbs'] else []
        bar(s_ * 24 + 13, [f"W{s_+1}", f"W{s_+2}"] + (["OB"] if s_ == OPT['pbs'] else []), ex)
    used = set([PA, OPT['pbs'] * 24 + 13])
    def place(g0, lst, stride):
        gs = []; g = g0
        for _ in lst:
            while g in used or g in (PL, PL2): g += 1
            gs.append(g); used.add(g); g += stride
        put_vm(al, gs, lst); return g
    for pl_ in (PL, PL2):
        al.put(pl_ - OPT['pe'], f"buffer_load_dword v241, v254, s[4:7], s53 offen sc1"); used.add(pl_ - OPT['pe'])
    def chk(tl, g):
        nb = min(tl - 1 if tl % 2 == 0 else tl - 2, 12) * 24 + 13
        assert g + OPT['wmar'] <= nb, f"wo tile {tl} issued at {g}, needed by barrier {nb}"
    g = OPT['w6']
    for tl in range(NWPRE, NSL):
        g = place(g, wo_tile(tl), OPT['w6s']); chk(tl, g)
    for tl in range(NSL, 16):
        st = tl - NSL
        sb = 3 if st <= 3 else (st if st % 2 else st + 1)
        g = place(max(g, sb * 24 + 16), wo_tile(tl), OPT['wls']); chk(tl, g)
    g = PL + 1
    for sig in range(4, 16):
        if sig == OPT['lat'] and late:
            g = place(g, late, OPT['lst'])
            assert g < OPT['pbs'] * 24 + 13
        g = max(g, (sig - NBR + 1) * 24 + 1)
        if sig >= 10: g = max(g, PL2 + 1)
        g = place(g, ox_load(sig), OPT['oxs'] if sig < 4 + OPT['oxn'] else OPT['oxt'])
        if OPT.get('verbose'): sys.stderr.write(f"ox {sig}: end gap {g} need {sig*24}\n")
        assert g <= min(sig * 24, 13 * 24)
    def h1(dst, w): return [f"s_mul_i32 {dst}, {w}, 12288", f"s_add_u32 {dst}, {dst}, {(16512 - 2*12288) & 0xffffffff:#x}", f"s_cmp_eq_u32 {w}, 0\ns_cselect_b32 {dst}, 114944, {dst}",
                            f"s_cmp_eq_u32 {w}, 1\ns_cselect_b32 {dst}, 148096, {dst}"]
    setup = ["s_mul_i32 s66, s3, 12288", "s_add_u32 s66, s66, 65792", f"v_add_u32 v247, s66, v{rL16}"] + h1("s66", "s3") + [f"v_add_u32 v248, s66, v{rL16}",
             "s_xor_b32 s67, s3, 2", "s_mul_i32 s66, s67, 12288", "s_add_u32 s66, s66, 65792", f"v_add_u32 v249, s66, v{rL16}"] + h1("s66", "s67") + [f"v_add_u32 v250, s66, v{rL16}",
             f"s_add_u32 s28, s18, {P_WS_OFF}\ns_addc_u32 s29, s19, 0", "s_and_b32 s29, s29, 0xffff", f"s_mov_b32 s30, {P_BYTES}",
             "s_lshr_b32 s66, s49, 2", "s_lshl_b32 s66, s66, 4", "s_add_u32 s66, s66, s48", "s_mul_i32 s66, s66, 6", "s_and_b32 s67, s3, 1", "s_mul_i32 s67, s67, 3",
             "s_add_u32 s66, s66, s67", "s_lshl_b32 s66, s66, 15", "s_lshl_b32 s67, s71, 13", "s_add_u32 s66, s66, s67", "s_lshr_b32 s67, s3, 1", "s_lshl_b32 s67, s67, 12",
             "s_add_u32 s14, s66, s67"]
    for i, x in enumerate(setup): al.put(12 * 24 - 6 + i, x)
    E0 = 13 * 24
    for i in range(12): al.put(E0 + 18 + 2 + (i * 4) // 3, f"ds_write_b128 v247, a[{4*i}:{4*i+3}] offset:{i*1024}")
    al.put(E0 + 37, ["s_waitcnt lgkmcnt(0)", "s_barrier"])
    for i in range(12): al.put(E0 + 36 + 2 + (i * 4) // 3, f"ds_write_b128 v248, a[{48+4*i}:{51+4*i}] offset:{i*1024}")
    def xr(i): return [96 + 4 * i, 4 * (i - 6), 216 + 4 * (i - 12), 24 + 4 * (i - 18)][i // 6]
    for i in range(12): al.put(E0 + 39 + i, f"ds_read_b128 v[{xr(i)}:{xr(i)+3}], v249 offset:{i*1024}")
    al.put(E0 + 55, ["s_waitcnt lgkmcnt(0)", "s_barrier"])
    for i in range(12): al.put(E0 + 56 + i, f"ds_read_b128 v[{xr(12+i)}:{xr(12+i)+3}], v250 offset:{i*1024}")
    def fin_tile(n, t, pk):
        o = 120 + (n * 3 + t) * 16
        out = []
        for q4 in range(4):
            x = xr((n * 3 + t) * 4 + q4)
            if pk: out += [f"v_pk_add_f32 v[{o+4*q4+h}:{o+4*q4+h+1}], v[{o+4*q4+h}:{o+4*q4+h+1}], v[{x+h}:{x+h+1}]" for h in (0, 2)]
            else: out += [f"v_add_f32 v{o+4*q4+h}, v{o+4*q4+h}, v{x+h}" for h in range(4)]
        out += [f"v_cvt_pk_bf16_f32 v{o+pr}, v{o+2*pr}, v{o+2*pr+1}" for pr in range(8)]
        out.append(f"s_add_u32 s67, s14, {t*32768}")
        out += [f"buffer_store_dwordx4 v[{o+4*s2}:{o+4*s2+3}], v{rL16}, s[28:31], s67 offen offset:{(n*2+s2)*1024} {OPT['pst']}" for s2 in range(2)]
        return out
    fin0 = [(x, E0 + 56 - OPT['pl2'], 9999) for t in range(3) for x in fin_tile(0, t, False)]
    if OPT['st2']:
        for idx, s_ in ((2, 8), (3, 12)): al.put(s_ * 24 - 1, stamp_ops(idx))
    allm = [op_mfma(k, t) for k in range(len(GR)) for t in range(3)]
    def seg(g0, g1, streams=(), budget=None):
        r = Slots()
        for k_, v_ in al.items():
            if g0 <= k_ < g1: r[k_ - g0] = list(v_)
        schedule(p, allm[g0:g1], r, streams, budget)
    def poll(tag, bit, mask):
        p.raw(f"""
s_mov_b32 s51, 0
s_cmp_lg_u32 s3, 0
s_cbranch_scc1 L1_go{tag}
L1_poll{tag}:
s_waitcnt vmcnt(0)
v_xor_b32 v241, s13, v241
v_and_b32 v241, {(~(0xE0 & ~bit)) & 0xffffffff:#x}, v241
v_cmp_eq_u32 vcc, {bit}, v241
s_nop 3
s_and_b32 s68, vcc_lo, {mask}
s_cmp_eq_u32 s68, {mask}
s_cbranch_scc1 L1_go{tag}
s_sleep 1
buffer_load_dword v241, v254, s[4:7], s53 offen sc1
s_add_u32 s51, s51, 1
s_cmp_lt_u32 s51, 0x40000
s_cbranch_scc1 L1_poll{tag}
L1_go{tag}:
""")
        I("s_barrier")
    assert PL >= 72
    seg(0, PL, [nrm], lambda g: OPT['nbud'])
    poll("a", 0x20, "s15")
    stamp(p, 9)
    seg(PL, PL2)
    poll("b", 0x40, "s15")
    seg(PL2, len(allm), [fin0])
    if OPT['st2']: stamp(p, 4)
    for t in range(3):
        for x in fin_tile(1, t, True): I(x)
    I(f"""
v_lshrrev_b32 v2, 7, v{rL16}
v_bfe_u32 v3, v{rL16}, 4, 3
v_lshlrev_b32 v4, 9, v2
v_lshl_add_u32 v4, v3, 4, v4
v_lshlrev_b32 v5, 4, v2
v_lshl_add_u32 v5, v3, 10, v5
s_load_dwordx2 s[20:21], s[0:1], 40
s_lshr_b32 s66, s49, 2
s_mul_i32 s66, s66, 12
s_mul_i32 s67, s3, 3
s_add_u32 s66, s66, s67
s_mul_i32 s60, s48, {6*32768}
s_lshl_b32 s67, s71, 13
s_add_u32 s61, s60, s67
s_lshl_b32 s67, s71, 8
s_add_u32 s60, s60, s67
""")
    for i in range(3):
        I(f"""
s_add_u32 s67, s66, {i}
s_lshr_b32 s68, s67, 3
s_lshl_b32 s68, s68, 15
s_bfe_u32 s69, s67, 0x20001
s_lshl_b32 s59, s69, 7
s_add_u32 s{32+i}, s61, s68
s_add_u32 s{32+i}, s{32+i}, s59
s_and_b32 s59, s67, 1
s_lshl_b32 s62, s59, 12
s_add_u32 s{32+i}, s{32+i}, s62
s_lshl_b32 s69, s69, 13
s_add_u32 s{36+i}, s60, s68
s_add_u32 s{36+i}, s{36+i}, s69
s_lshl_b32 s59, s59, 7
s_add_u32 s{36+i}, s{36+i}, s59
""")
    I(f"""
s_or_b32 s66, s13, 0xe0
v_mov_b32 v242, s66
s_waitcnt vmcnt(0) lgkmcnt(0)
s_barrier
buffer_store_dword v242, v{vSY}, s[4:7], s52 offen sc1
buffer_load_dword v241, v254, s[4:7], s53 offen sc1
s_and_b32 s21, s21, 0xffff
s_mov_b32 s22, {16*192*1024}
s_mov_b32 s23, 0x00020000
""")
    if OPT['st2']: stamp(p, 5)
    poll("c", 0x80, "s16")
    if OPT['st2']: stamp(p, 6)
    for i in range(3):
        for g_ in range(4):
            I(f"buffer_load_dwordx4 v[{8+16*i+4*g_}:{11+16*i+4*g_}], v4, s[28:31], s{32+i} offen sc1")
            if g_ < 3: I(f"s_add_u32 s{32+i}, s{32+i}, {16*192*1024}")
    for i in range(3):
        for d in range(4):
            for g_ in range(4):
                r = 8 + 16 * i + 4 * g_ + d
                I(f"v_lshlrev_b32 v{64+2*g_}, 16, v{r}\nv_and_b32 v{65+2*g_}, 0xffff0000, v{r}")
            I(f"v_pk_add_f32 v[64:65], v[64:65], v[66:67]\nv_pk_add_f32 v[68:69], v[68:69], v[70:71]\nv_pk_add_f32 v[64:65], v[64:65], v[68:69]")
            I(f"v_cvt_pk_bf16_f32 v{72+4*i+d}, v64, v65")
        I(f"buffer_store_dwordx4 v[{72+4*i}:{75+4*i}], v5, s[20:23], s{36+i} offen {OPT['outf']}")
    if OPT['stamp']:
        I("s_waitcnt vmcnt(0)")
        stamp(p, 1)
        if OPT.get('dbg'):
            I(f"s_lshl_b32 s76, s2, 2\ns_add_u32 s76, s76, s3\ns_sub_u32 s76, s76, {OPT['dbg']*4}\ns_lshl_b32 s76, s76, 12\nv_mov_b32 v1, 0")
            for i in range(1, 10):
                I(f"s_sub_u32 s77, s{80+i}, s80\nv_mov_b32 v2, s77\nbuffer_store_dword v2, v1, s[72:75], s76 offen offset:{4*i}")
        stamp_out(p, 10, 0)
    I("L1_end:\ns_endpgm\nL1_code_end:")
    return p

def gen_slow():
    p = Prog(); I = p.I
    M = [232, 233, 234]; T = [235, 236, 237]
    M = [S[1], S[1] + 1, S[1] + 2]; T = [S[1] + 3, S[1] + 4, S[1] + 5]
    I("L1_slow:\ns_nop 15\ns_waitcnt vmcnt(0) lgkmcnt(0)\ns_barrier")
    I(f"v_mbcnt_lo_u32_b32 v{S[1]+8}, -1, 0\nv_mbcnt_hi_u32_b32 v{S[1]+8}, -1, v{S[1]+8}")
    for x in kv_addr_setup(f"v{S[1]+8}", S[1] + 9): I(x)
    for t in range(3): I(f"v_mov_b32 v{M[t]}, 0xff800000")
    def load(kinds):
        for kind in kinds:
            pre, dm = kv_tile(kind, 0, KS[0] if kind == 'K' else VS[0], soff="s60", tag=False)
            for x in pre: I(x)
            for d in dm: p.add(d)
        I("s_waitcnt vmcnt(0)\ns_barrier")
    I("s_mov_b32 s60, 0\nL1_s1:")
    p.loop_begin(2)
    load("K")
    for ks in range(8): I(k_read(ks, KS[0]))
    for ks in range(8):
        for t in range(3): I(s_mfma(S[0], t, ks, True))
    for t in range(3):
        b = S[0] + 16 * t
        for r in range(0, 16, 2): I(f"v_max3_f32 v{M[t]}, v{M[t]}, v{b+r}, v{b+r+1}")
    I("s_barrier\ns_add_u32 s60, s60, 8192\ns_cmp_lt_u32 s60, 131072\ns_cbranch_scc1 L1_s1")
    p.loop_end()
    for t in range(3): I(f"v_mov_b32 v{T[t]}, v{M[t]}")
    for t in range(3): I(f"v_permlane32_swap_b32 v{T[t]}, v{M[t]}")
    for t in range(3): I(f"v_max_f32 v{M[t]}, v{M[t]}, v{T[t]}")
    for t in range(3):
        for r in range(16): I(f"v_sub_f32 v{NEGM[t]+r}, 0, v{M[t]}")
        I(f"v_mov_b32 v{vL[t]}, 0")
    for r in range(192): I(f"v_accvgpr_write_b32 a{r}, 0")
    I("s_mov_b32 s60, 0\nL1_s2:")
    p.loop_begin(2)
    load("KV")
    for ks in range(8): I(k_read(ks, KS[0]))
    for ks in range(8):
        for t in range(3): I(s_mfma(S[0], t, ks))
    for j in range(8):
        I(v_read(j, 0, VS[0])); I(v_read(j, 1, VS[0]))
    for e in range(49):
        for x in sm_ops(S[0], e): I(x)
    for j in range(8):
        for t in range(3): I(pv_mfma(S[0], j, t))
    I("s_barrier\ns_add_u32 s60, s60, 8192\ns_cmp_lt_u32 s60, 131072\ns_cbranch_scc1 L1_s2")
    p.loop_end()
    for x in fin_ops(): I(x)
    for sig in range(NWPRE):
        for pre, d in wo_tile(sig):
            for x in pre: I(x)
            p.add(d)
    for x in win_regs(): I(x)
    for x in norm_unit(0, True, (64, 96)): em(p, x)
    I("s_waitcnt vmcnt(0)\ns_barrier")
    for k in range(RD):
        I(a_rd(k, 0)); I(a_rd(k, 1))
    I("s_waitcnt lgkmcnt(0)\ns_nop 15\ns_branch L1_norm")
    return p

def gen_red():
    p = Prog(); I = p.I
    I("s_cmp_ge_u32 s2, 768\ns_cbranch_scc1 L2_end")
    I("s_load_dwordx2 s[14:15], s[0:1], 40\ns_load_dwordx2 s[18:19], s[0:1], 56")
    stamp(p, 0)
    I(f"""
v_lshrrev_b32 v1, 6, v0
v_and_b32 v0, 63, v0
v_readfirstlane_b32 s3, v1
v_lshrrev_b32 v2, 3, v0
v_and_b32 v3, 7, v0
v_lshlrev_b32 v4, 9, v2
v_lshl_add_u32 v4, v3, 4, v4
v_lshlrev_b32 v5, 4, v2
v_lshl_add_u32 v5, v3, 10, v5
s_lshl_b32 s4, s2, 2
s_add_u32 s4, s4, s3
s_lshr_b32 s5, s4, 5
s_bfe_u32 s6, s4, 0x20003
s_and_b32 s7, s4, 7
s_lshl_b32 s8, s5, 15
s_lshl_b32 s9, s7, 12
s_add_u32 s9, s9, s8
s_lshl_b32 s10, s6, 7
s_add_u32 s9, s9, s10
s_lshl_b32 s10, s6, 13
s_add_u32 s8, s8, s10
s_lshl_b32 s10, s7, 7
s_add_u32 s8, s8, s10
s_waitcnt lgkmcnt(0)
s_add_u32 s20, s18, {P_WS_OFF}
s_addc_u32 s21, s19, 0
s_and_b32 s21, s21, 0xffff
s_mov_b32 s22, {P_BYTES}
s_mov_b32 s23, 0x00020000
""")
    for g in range(4):
        I(f"buffer_load_dwordx4 v[{8+4*g}:{11+4*g}], v4, s[20:23], s9 offen {OPT['rld']}")
        if g < 3: I(f"s_add_u32 s9, s9, {16*192*1024}")
    srd(p, 24, 14, 15, 16 * 192 * 1024)
    for d in range(4):
        for g in range(4):
            r = 8 + 4 * g + d
            I(f"v_lshlrev_b32 v{24+2*g}, 16, v{r}\nv_and_b32 v{25+2*g}, 0xffff0000, v{r}")
        I(f"v_pk_add_f32 v[24:25], v[24:25], v[26:27]\nv_pk_add_f32 v[28:29], v[28:29], v[30:31]\nv_pk_add_f32 v[24:25], v[24:25], v[28:29]")
        I(f"v_cvt_pk_bf16_f32 v{32+d}, v24, v25")
    I("buffer_store_dwordx4 v[32:35], v5, s[24:27], s8 offen")
    if OPT['stamp']:
        I("s_waitcnt vmcnt(0)")
        stamp(p, 1)
        I("s_cmp_ge_u32 s2, 256\ns_cbranch_scc1 L2_end\ns_mul_i32 s2, s2, 1")
        stamp_out(p, 2, 0x20000)
    I("L2_end:\ns_endpgm")
    return p

def kd(name, vg, acc, sg=102):
    return f""".p2align 6
.amdhsa_kernel {name}
  .amdhsa_next_free_vgpr {vg}
  .amdhsa_next_free_sgpr {sg}
  .amdhsa_accum_offset {acc}
  .amdhsa_group_segment_fixed_size 0
  .amdhsa_kernarg_size 64
  .amdhsa_user_sgpr_count 2
  .amdhsa_user_sgpr_kernarg_segment_ptr 1
  .amdhsa_system_sgpr_workgroup_id_x 1
  .amdhsa_float_denorm_mode_32 3
.end_amdhsa_kernel
"""

def main():
    k1 = gen_k1(); k1.resolve(); t1, s1 = k1.emit()
    ks = gen_slow(); ks.resolve(); ts, _ = ks.emit(); t1 += ts
    sys.stderr.write(f"k1 {s1}\n")
    hdr = open('cdna_kernels/' + NAME + '.s.ref').read().split('\n')
    top = [l for l in hdr if l.startswith(';') and '@launch' not in l]
    out = '\n'.join(top) + f"""
; @launch grid=(256,1,1) block=(256,1,1) lds=163840
.amdgcn_target "amdgcn-amd-amdhsa--gfx950"
.text
.globl {NAME}_kernel
.p2align 8
.type {NAME}_kernel,@function
{NAME}_kernel:
{t1}
.section .rodata,"a"
{kd(NAME + '_kernel', 512, 256)}"""
    open(sys.argv[1], 'w').write(out)
main()
```

```python
import sys, math, struct
from asmlib import *
NAME = "standalone__mha_block_cached__near_ridge"
OPT = dict(stamp=0, rt='1:4:8', rtw=0, rt0=1, outf='', kfl='nt', vfl='nt', ldt=3, lat=6, lst=2, tlb=0, dfirst=26, kmar=24, la=0, ws2=2, npk=1, pa=40, pl=72, pl2=168, pbs=5, nbud=32, w6=59, w6s=2, wmar=20, oxt=3, st2=0, kvsz=1, xw=1, rh=2, rb=1, rmask=7, pre1=8, bud=24, tbud=28, dcost=12,
           ost='sc1', oxl='sc1', pst='sc1', rld='', pub=13, pol=3, pe=12, oxs=1, oxn=2, wls=6, ctouch=1,
           dlast=640, thr=2.0**40, xreg=1)
for a in sys.argv[2:]:
    k, v = a.split('=')
    try: OPT[k] = int(v, 0)
    except ValueError:
        try: OPT[k] = float(v)
        except ValueError: OPT[k] = v.replace('+', ' ')

def f2u(x): return struct.unpack('<I', struct.pack('<f', x))[0]
SCALE = math.log2(math.e) / math.sqrt(128.0)

XBLK = 1056; XSZ = 24 * XBLK
WQSZ = 32768
BUFSZ = XSZ + WQSZ
BUFA = 163840 - 2 * BUFSZ
KRG = 4128
KSZ = 4 * KRG; VSZ = 16384
KS = [0, 32896, 65792, 98688, 131584]
VS = [16512, 49408, 82304, 115200]
SPARE = 148096
WIN = 65792
O_WS_OFF = 0x1000000; O_BYTES = 16 * 192 * 4096 * 2
FLAG_OFF = 0x800000
P_WS_OFF = 0x4000000; P_BYTES = 4 * 16 * 192 * 512 * 2

def srd(p, d, lo, hi, size):
    p.I(f"s_mov_b32 s{d}, s{lo}\ns_and_b32 s{d+1}, s{hi}, 0xffff\ns_mov_b32 s{d+2}, {size}\ns_mov_b32 s{d+3}, 0x00020000")
def stamp_ops(idx):
    if not OPT['stamp'] or (OPT['stamp'] == 3 and idx > 1): return []
    return ["s_memrealtime s[78:79]", "s_memtime s[76:77]", "s_waitcnt lgkmcnt(0)", f"s_mov_b32 s{80+idx}, s78", f"s_mov_b32 s{90+idx}, s76"]
def stamp(p, idx):
    for x in stamp_ops(idx): p.I(x)
def stamp_out(p, nst, base_off):
    if not OPT['stamp']: return
    p.I(f"""
s_mov_b32 s72, s18
s_and_b32 s73, s19, 0xffff
s_mov_b32 s74, 0x1000000
s_mov_b32 s75, 0x00020000
s_lshl_b32 s76, s2, 2
s_add_u32 s76, s76, s3
s_lshl_b32 s76, s76, 7
s_add_u32 s76, s76, {base_off}
v_mov_b32 v1, 0
""")
    for i in range(nst):
        p.I(f"v_mov_b32 v2, s{80+i}\nbuffer_store_dword v2, v1, s[72:75], s76 offen offset:{4*i}")
        p.I(f"v_mov_b32 v2, s{90+i}\nbuffer_store_dword v2, v1, s[72:75], s76 offen offset:{64+4*i}")

def txt(x): return x.text if isinstance(x, Ins) else x
def cost(x):
    mn = txt(x).split()[0]
    if mn.startswith('v_exp') or mn.startswith('v_rcp'): return 8
    if mn.startswith('ds_write'): return 8
    if mn.startswith('buffer_') or mn.startswith('global_'): return OPT['dcost']
    if mn.startswith('v_pk_'): return 8
    return 4
class Slots(dict):
    def put(self, g, x): self.setdefault(g, []).extend(x if isinstance(x, list) else [x])
def em(p, x):
    if isinstance(x, Ins): p.add(x)
    else: p.I(x)
def schedule(p, mfmas, fixed, streams=(), budget=None):
    streams = [list(s) for s in streams]
    for x in fixed.get(-1, []): em(p, x)
    for g, m in enumerate(mfmas):
        p.I(m)
        used = 0
        for f in fixed.get(g, []):
            em(p, f); used += cost(f)
        b = budget(g) if budget else OPT['bud']
        while True:
            c = [s for s in streams if s and s[0][1] <= g]
            if not c: break
            fs = [s for s in c if any(x[2] <= g for x in s[:200])]
            s = fs[0] if fs else min(c, key=lambda s: min(x[2] for x in s[:8]))
            if fs or used + cost(s[0][0]) <= b:
                op = s.pop(0)[0]; em(p, op); used += cost(op)
            else: break
    for s in streams:
        for op, _, _ in s: em(p, op)
    for g in fixed:
        assert g < len(mfmas), f"fixed slot {g} beyond region {len(mfmas)}: {fixed[g]}"

vK, vV0, vV1 = 240, 241, 242
vOK = [243, 244]; vOV = [245, 246]
vL = [247, 248, 249]
vX, vW0, vW1, vOX, vOW = 250, 251, 252, 253, 254
vSY = 255
S = [64, 112]; NEGM = [224, 160, 176]; QB = [192, 0, 32]
FR = 224
def fr(n): return FR + (n % 8) * 4
def qfrag(t, ksd): b = QB[t] + 4 * ksd; return f"v[{b}:{b+3}]"
def acc(t, dt): return (t * 4 + dt) * 16

def kv_addr_setup(lane, t0):
    a, b, c, d, e = [f"v{t0+i}" for i in range(5)]
    return f"""v_lshrrev_b32 {a}, 3, {lane}
v_and_b32 {b}, 7, {lane}
v_bfe_u32 {c}, {lane}, 4, 1
v_xor_b32 {d}, {b}, {c}
v_lshlrev_b32 {d}, 4, {d}
v_lshlrev_b32 {e}, 2, {c}
v_xor_b32 {e}, {b}, {e}
v_lshlrev_b32 {e}, 4, {e}
v_lshl_add_u32 {d}, {a}, 8, {d}
v_lshl_add_u32 {e}, {a}, 8, {e}
s_lshl_b32 s66, s3, 11
s_add_u32 s67, s66, 128
s_add_u32 s66, s66, 1024
v_add_u32 v{vOK[0]}, s66, {d}
v_add_u32 v{vOK[1]}, s67, {d}
v_add_u32 v{vOV[0]}, s66, {e}
v_add_u32 v{vOV[1]}, s67, {e}
s_lshr_b32 s66, s3, 1
s_lshl_b32 s66, s66, 11
v_bfe_u32 {a}, {lane}, 3, 2
v_mul_u32_u24 {a}, {KRG}, {a}
v_lshl_add_u32 {a}, {b}, 7, {a}
v_lshrrev_b32 {c}, 5, {lane}
v_bfe_u32 {d}, {lane}, 1, 1
v_xor_b32 {d}, {c}, {d}
v_lshl_add_u32 {a}, {d}, 4, {a}
v_add_u32 v{vK}, s66, {a}
v_bfe_u32 {a}, {lane}, 2, 2
v_lshlrev_b32 {a}, 7, {a}
v_lshl_add_u32 {a}, {c}, 9, {a}
v_bfe_u32 {d}, {lane}, 3, 1
v_lshl_add_u32 {a}, {d}, 6, {a}
v_bfe_u32 {d}, {lane}, 4, 1
v_lshl_add_u32 {a}, {d}, 5, {a}
v_and_b32 {d}, 3, {lane}
v_lshl_add_u32 {a}, {d}, 3, {a}
v_add_u32 v{vV0}, s66, {a}
v_xor_b32 v{vV1}, 64, v{vV0}
s_mul_i32 s61, s3, {KRG}
s_lshl_b32 s62, s3, 12""".split('\n')

def kv_tile(kind, n, dst, soff=None, tag=True):
    pre = [f"s_add_u32 m0, s{61 if kind == 'K' else 62}, {dst}"]
    if soff is None:
        pre.append(f"s_mov_b32 s59, {n*8192}"); soff = "s59"
    dm = []
    for hd in range(2):
        for half in range(2):
            sr = (28 if kind == 'K' else 36) + 4 * hd
            v = (vOK if kind == 'K' else vOV)[half]
            dm.append(Ins(f"buffer_load_dwordx4 v{v}, s[{sr}:{sr+3}], {soff} offen offset:{hd*2048+half*1024} {OPT['kfl'] if kind == 'K' else OPT['vfl']} lds", lw=[f"{kind}{n}"] if tag else []))
    return pre, dm
def k_read(ks, off): b = fr(ks); return f"ds_read_b128 a[{b}:{b+3}], v{vK} offset:{off + (ks>>2)*1024 + (ks&3)*32}"
def v_read(j, sec, off):
    ks, dt = j >> 2, j & 3
    b = fr(8 + j) + 2 * sec
    return f"ds_read_b64_tr_b16 a[{b}:{b+1}], v{vV1 if dt & 1 else vV0} offset:{off + (2*ks + sec)*4096 + (dt>>1)*1024}"
def s_mfma(buf, t, ks, czero=False):
    d = f"v[{buf+t*16}:{buf+t*16+15}]"
    c = d if ks else ("0" if czero else f"v[{NEGM[t]}:{NEGM[t]+15}]")
    return f"v_mfma_f32_32x32x16_bf16 {d}, a[{fr(ks)}:{fr(ks)+3}], {qfrag(t, ks)}, {c}"
def pv_mfma(buf, j, t, czero=False):
    ks, dt = j >> 2, j & 3
    o = (dt * 3 + t) * 16
    b = buf + t * 16 + 8 * ks
    c = "0" if (czero and ks == 0) else f"a[{o}:{o+15}]"
    return f"v_mfma_f32_32x32x16_bf16 a[{o}:{o+15}], a[{fr(8+j)}:{fr(8+j)+3}], v[{b}:{b+3}], {c}"
def ereg(buf, e):
    h, t, j = e // 24, (e % 24) // 8, e % 8
    return buf + t * 16 + 8 * h + j, t
def sm_ops(buf, e):
    out = []
    if e < 48:
        r, t = ereg(buf, e); out.append(f"v_exp_f32 v{r}, v{r}")
    if 1 <= e <= 48:
        r, t = ereg(buf, e - 1); out.append(f"v_add_f32 v{vL[t]}, v{vL[t]}, v{r}")
    if e >= 2 and e % 2 == 0 and e <= 48:
        r, t = ereg(buf, e - 2); base = r - ((e - 2) % 8)
        out.append(f"v_cvt_pk_bf16_f32 v{base + ((e-2) % 8)//2}, v{r}, v{r+1}")
    return out

rOW = [250, 251]; rLn = 252
rA = [240, 241]
RC = [224, 226, 228]
WSL = [KS[1], KS[2], KS[3], VS[0], KS[4], VS[1], KS[0], VS[2], VS[3]]
NSL = len(WSL)
def step_of(sig): return (0, sig) if sig < 4 else (1 + (sig - 4) % 3, (sig - 4) // 3)
def wo_setup():
    a, b, c = "v253", "v254", f"v{rOW[1]}"
    out = f"""v_mbcnt_lo_u32_b32 v{rLn}, -1, 0
v_mbcnt_hi_u32_b32 v{rLn}, -1, v{rLn}
s_and_b32 s71, s49, 3
s_andn2_b32 s70, s49, 3
s_lshl_b32 s67, s71, 8
s_lshl_b32 s68, s3, 13
s_add_u32 s69, s68, {0x20000 - 2048}
v_lshrrev_b32 {a}, 3, v{rLn}
v_and_b32 {b}, 7, v{rLn}
v_bfe_u32 {c}, v{rLn}, 4, 1
v_lshlrev_b32 {c}, 2, {c}
v_xor_b32 {b}, {b}, {c}
v_lshlrev_b32 {b}, 4, {b}
v_lshl_add_u32 {b}, {a}, 10, {b}
v_add_u32 v{rOW[0]}, s68, {b}
v_add_u32 v{rOW[1]}, s69, {b}""".split('\n')
    for rho in range(4):
        out += [f"s_add_u32 s69, s71, {rho}", "s_and_b32 s69, s69, 3", "s_add_u32 s69, s69, s70", f"s_lshl_b32 s{WOB[rho]}, s69, 18", f"s_add_u32 s{WOB[rho]}, s{WOB[rho]}, s67"]
    return out
WOB = [50, 56, 57, 58]
def wo_tile(sig):
    rho, dq = step_of(sig)
    dst = WSL[sig % NSL]
    out = []
    for hd in range(2):
        for pos in range(2):
            half = pos ^ hd
            d = dq * 32768 + half * 128 - pos * 1024 + 1024
            pre = [f"s_add_u32 s59, s{WOB[rho]}, {d}"]
            if hd == 0 and pos == 0: pre = [f"s_add_u32 m0, s62, {dst}"] + pre
            out.append((pre, Ins(f"buffer_load_dwordx4 v{rOW[hd]}, s[8:11], s59 offen offset:{hd*2048+pos*1024} lds", lw=[f"W{sig}"])))
    return out
def fin_ops():
    T = [232, 233, 234]
    fin = []
    for t in range(3): fin.append(f"v_mov_b32 v{T[t]}, v{vL[t]}")
    for t in range(3): fin.append(f"v_permlane32_swap_b32 v{T[t]}, v{vL[t]}")
    for t in range(3): fin.append(f"v_add_f32 v{vL[t]}, v{vL[t]}, v{T[t]}")
    for t in range(3): fin.append(f"v_rcp_f32 v{RC[t]}, v{vL[t]}")
    for t in range(3): fin.append(f"v_mov_b32 v{RC[t]+1}, v{RC[t]}")
    return fin
NWPRE = OPT.get('nwpre', 6)

OXS = [63, 64, 65, 70]
rL16 = 252
RAW = [[253, 240], [243, 244], [245, 246]]
vPA, vPD, vFD = 254, 241, 242
NBR = 5
RD = 4
def bfr(sig, ks, t): return ((sig + 3) % NBR) * 24 + (ks * 3 + t) * 4
GR = [(0, ks, n) for ks in range(2) for n in range(3)] + [(0, 0, 3), (0, 1, 3)]
for _sig in range(1, 13): GR += [(_sig, ks, n) for ks in range(2) for n in range(4)]
GR += [(_sig, ks, n) for n in (2, 3, 0, 1) for _sig in (13, 14, 15) for ks in range(2)]
def a_rd(k, sec):
    sig, ks, n = GR[k]
    b = fr(k) + 2 * sec
    a = WSL[sig % NSL]; w = a // WIN
    return f"ds_read_b64_tr_b16 a[{b}:{b+1}], v{RAW[w][n & 1]} offset:{a - w*WIN + (2*ks + sec)*4096 + (n>>1)*1024}"
def op_setup():
    out = f"""s_lshl_b32 s68, s48, 1
s_and_b32 s69, s3, 1
s_add_u32 s68, s68, s69
s_lshl_b32 s68, s68, 5
s_lshr_b32 s69, s3, 1
s_add_u32 s68, s68, s69
s_lshl_b32 s69, s70, 1
s_add_u32 s68, s68, s69
s_lshl_b32 s15, 15, s70
s_lshl_b32 s16, 0x1111, s71""".split('\n')
    for rho in range(4):
        out += [f"s_add_u32 s69, s71, {rho}", "s_and_b32 s69, s69, 3", "s_lshl_b32 s69, s69, 1", "s_add_u32 s69, s69, s68", f"s_mul_i32 s{OXS[rho]}, s69, 24576"]
    out += f"""v_bfe_u32 v253, v{rLn}, 2, 2
v_lshlrev_b32 v253, 7, v253
v_lshrrev_b32 v254, 5, v{rLn}
v_lshl_add_u32 v253, v254, 9, v253
v_bfe_u32 v254, v{rLn}, 3, 1
v_lshl_add_u32 v253, v254, 6, v253
v_bfe_u32 v254, v{rLn}, 4, 1
v_lshl_add_u32 v253, v254, 5, v253
v_and_b32 v254, 1, v{rLn}
v_lshl_add_u32 v253, v254, 4, v253
v_bfe_u32 v254, v{rLn}, 1, 1
v_lshl_add_u32 v253, v254, 3, v253
s_lshr_b32 s69, s3, 1
s_lshl_b32 s69, s69, 11
v_add_u32 v253, s69, v253
s_lshl_b32 s69, s49, 2
s_add_u32 s52, s53, s69
v_lshrrev_b32 v254, 4, v{rLn}
v_add_u32 v254, s3, v254
v_min_u32 v254, 1, v254
v_lshlrev_b32 v254, 31, v254
v_lshl_add_u32 v254, v{rLn}, 2, v254
v_lshlrev_b32 v{rL16}, 4, v{rLn}""".split('\n')
    return out
def win_regs():
    return ["v_xor_b32 v240, 64, v253", f"v_add_u32 v243, {WIN}, v253", f"v_add_u32 v244, {WIN}, v240", f"v_add_u32 v245, {2*WIN}, v253", f"v_add_u32 v246, {2*WIN}, v240"]
def norm_unit(dt, pk, tbs=(216, 230)):
    out = []
    for t in range(3):
        for k2 in range(2):
            o = (dt * 3 + t) * 16 + 8 * k2
            tb = tbs[k2]
            out += [f"v_accvgpr_read_b32 v{tb+r}, a{o+r}" for r in range(8)]
            if pk: out += [f"v_pk_mul_f32 v[{tb+2*pr}:{tb+2*pr+1}], v[{tb+2*pr}:{tb+2*pr+1}], v[{RC[t]}:{RC[t]+1}]" for pr in range(4)]
            else: out += [f"v_mul_f32 v{tb+r}, v{RC[t]}, v{tb+r}" for r in range(8)]
            b = bfr(dt, k2, t)
            out += [f"v_cvt_pk_bf16_f32 v{b+pr}, v{tb+2*pr}, v{tb+2*pr+1}" for pr in range(4)]
            out.append(f"s_add_u32 s67, s63, {(2*dt+k2)*3072}")
            out.append(Ins(f"buffer_store_dwordx4 v[{b}:{b+3}], v{rL16}, s[44:47], s67 offen offset:{t*1024} {OPT['ost']}", lw=["OA" if dt < 2 else "OB"]))
    return out

def gen_k1():
    p = Prog(); I = p.I
    vM = [vX, vW0, vW1]; vT = [vOX, vOW, vOX]
    I("s_cmp_ge_u32 s2, 256\ns_cbranch_scc1 L1_end")
    stamp(p, 0)
    I("s_load_dwordx16 s[4:19], s[0:1], 0")
    I(f"""
v_lshrrev_b32 v1, 6, v0
v_min_u32 v{vSY}, 1, v0
v_lshlrev_b32 v{vSY}, 31, v{vSY}
v_lshrrev_b32 v230, 4, v0
v_min_u32 v230, 1, v230
v_lshlrev_b32 v230, 31, v230
v_lshl_add_u32 v230, v0, 2, v230
v_and_b32 v0, 63, v0
v_readfirstlane_b32 s3, v1
s_and_b32 s66, s2, 7
s_lshr_b32 s67, s2, 3
s_and_b32 s48, s66, 1
s_lshl_b32 s48, s48, 3
s_lshr_b32 s68, s67, 2
s_add_u32 s48, s48, s68
s_lshr_b32 s49, s66, 1
s_lshl_b32 s49, s49, 2
s_and_b32 s69, s67, 3
s_add_u32 s49, s49, s69
s_lshl_b32 s65, s66, 3
s_add_u32 s65, s65, s68
s_mul_i32 s52, s69, {OPT['rh']}
s_mul_i32 s68, s68, {OPT['rb']}
s_add_u32 s52, s52, s68
s_and_b32 s52, s52, {OPT['rmask']}
v_lshrrev_b32 v2, 3, v0
v_and_b32 v3, 7, v0
v_bfe_u32 v4, v0, 4, 1
v_xor_b32 v5, v3, v4
v_lshlrev_b32 v5, 4, v5
v_lshlrev_b32 v6, 2, v4
v_xor_b32 v6, v3, v6
v_lshlrev_b32 v6, 4, v6
v_lshl_add_u32 v{vOX}, v2, 10, v5
v_lshl_add_u32 v{vOW}, v2, 13, v6
s_mul_i32 s50, s48, {192*1024}
s_mul_i32 s66, s3, {48*1024}
s_add_u32 s50, s50, s66
s_lshl_b32 s51, s49, 9
s_lshl_b32 s66, s3, 7
s_add_u32 s51, s51, s66
s_mul_i32 s57, s3, {6*XBLK}
s_lshl_b32 s58, s3, 10
s_waitcnt lgkmcnt(0)
""")
    srd(p, 20, 4, 5, 16 * 192 * 1024 * OPT['xw'])
    srd(p, 24, 10, 11, 512 * 8192 * OPT['xw'])
    def stage_dma(st):
        buf = BUFA + (st & 1) * BUFSZ
        pre0 = ["s_lshl_b32 s54, s52, 7", "s_add_u32 s54, s54, s50", "s_lshl_b32 s55, s52, 19", "s_add_u32 s55, s55, s51",
                "s_add_u32 s52, s52, 1", "s_and_b32 s52, s52, 7"]
        out = []
        for j in range(6):
            out.append(([f"s_add_u32 m0, s57, {buf + j*XBLK}", f"s_add_u32 s56, s54, {j*8192}"],
                        Ins(f"buffer_load_dwordx4 v{vOX}, s[20:23], s56 offen lds", lw=[f"Q{st}"])))
        for rg in range(8):
            out.append(([f"s_add_u32 m0, s58, {buf + XSZ + rg*4096}", f"s_add_u32 s56, s55, {rg*65536}"],
                        Ins(f"buffer_load_dwordx4 v{vOW}, s[24:27], s56 offen lds", lw=[f"Q{st}"])))
        out[0] = (pre0 + out[0][0], out[0][1])
        return out
    def emit_vm(lst):
        for pre, x in lst:
            for y in pre: I(y)
            em(p, x)
    def touch(st_ahead):
        if not OPT['la']: return []
        return [([f"s_add_u32 s66, s52, {st_ahead}", "s_and_b32 s66, s66, 7", "s_lshl_b32 s67, s66, 7", "s_lshl_b32 s66, s66, 19"],
                 f"buffer_load_dword a{TCH[0] % 8 + 98}, v228, s[20:23], s67 offen"),
                ([], f"buffer_load_dword a{(TCH[0] + 1) % 8 + 98}, v229, s[24:27], s66 offen")] + [TCH.__setitem__(0, TCH[0] + 2)][:0]
    TCH = [0]
    if OPT['la']:
        I(f"""
v_min_u32 v228, 11, v0
v_lshlrev_b32 v228, 10, v228
s_mul_i32 s66, s48, {192*1024}
s_and_b32 s67, s49, 3
s_mul_i32 s67, s67, {48*1024}
s_add_u32 s66, s66, s67
s_mul_i32 s67, s3, {12*1024}
s_add_u32 s66, s66, s67
v_add_u32 v228, s66, v228
v_bfe_u32 v229, v0, 2, 1
v_lshlrev_b32 v229, 13, v229
v_and_b32 v7, 3, v0
v_lshl_add_u32 v229, v7, 7, v229
s_and_b32 s66, s48, 7
s_lshl_b32 s66, s66, 2
s_add_u32 s66, s66, s3
s_lshl_b32 s66, s66, 14
s_lshl_b32 s67, s49, 9
s_add_u32 s66, s66, s67
v_add_u32 v229, s66, v229
""")
        for a_ in range(1, OPT['la'] + 1): emit_vm(touch(a_))
    emit_vm(stage_dma(0))
    if OPT['ctouch']:
        I(f"""
s_getpc_b64 s[68:69]
L1_pc:
s_lshr_b32 s66, s2, 3
s_lshl_b32 s66, s66, 2
s_add_u32 s66, s66, s3
s_lshl_b32 s66, s66, 9
s_min_u32 s66, s66, L1_code_end-L1_pc-512
s_add_u32 s100, s68, s66
s_addc_u32 s101, s69, 0
v_lshlrev_b32 v7, 3, v0
global_load_dword a255, v7, s[100:101]
""")
    for x in kv_addr_setup("v0", 2): I(x)
    ksz = (131072 + 3072) * OPT['kvsz']
    I(f"""
s_lshl_b32 s66, s48, 5
s_lshl_b32 s67, s49, 1
s_add_u32 s66, s66, s67
s_lshl_b32 s66, s66, 17
s_add_u32 s28, s6, s66
s_addc_u32 s29, s7, 0
s_sub_u32 s28, s28, 1024
s_subb_u32 s29, s29, 0
s_and_b32 s29, s29, 0xffff
s_add_u32 s32, s28, {0x20000 - 2048}
s_addc_u32 s33, s29, 0
s_add_u32 s36, s8, s66
s_addc_u32 s37, s9, 0
s_sub_u32 s36, s36, 1024
s_subb_u32 s37, s37, 0
s_and_b32 s37, s37, 0xffff
s_add_u32 s40, s36, {0x20000 - 2048}
s_addc_u32 s41, s37, 0
s_mov_b32 s30, {(131072 + 1024) * OPT['kvsz']}
s_mov_b32 s34, {ksz}
s_mov_b32 s38, {(131072 + 1024) * OPT['kvsz']}
s_mov_b32 s42, {ksz}
s_mov_b32 s31, 0x00020000
s_mov_b32 s35, 0x00020000
s_mov_b32 s39, 0x00020000
s_mov_b32 s43, 0x00020000
s_add_u32 s44, s18, {O_WS_OFF}
s_addc_u32 s45, s19, 0
s_and_b32 s45, s45, 0xffff
s_mov_b32 s46, {P_WS_OFF - O_WS_OFF + P_BYTES}
s_mov_b32 s47, 0x00020000
s_mov_b32 s72, s16
s_and_b32 s73, s17, 0xffff
s_mov_b32 s74, 256
s_mov_b32 s75, 0x00020000
s_mov_b32 s64, {f2u(SCALE):#x}
s_add_u32 s4, s18, {FLAG_OFF}
s_addc_u32 s5, s19, 0
s_and_b32 s5, s5, 0xffff
s_mov_b32 s6, 8192
s_mov_b32 s7, 0x00020000
s_lshl_b32 s53, s48, 7
s_lshl_b32 s65, s48, 2
s_add_u32 s65, s65, 64
s_sub_u32 s8, s12, 1024
s_subb_u32 s9, s13, 0
s_and_b32 s9, s9, 0xffff
s_mov_b32 s10, {4096*1024+1024}
s_mov_b32 s11, 0x00020000
s_lshr_b32 s63, s49, 2
s_lshl_b32 s63, s63, 5
s_lshr_b32 s66, s2, 3
s_add_u32 s63, s63, s66
s_lshl_b32 s63, s63, 2
s_add_u32 s63, s63, s3
s_lshl_b32 s63, s63, 13
s_lshr_b32 s66, s3, 1
s_and_b32 s67, s3, 1
v_bfe_u32 v3, v0, 3, 2
v_mul_u32_u24 v3, {XBLK}, v3
v_and_b32 v4, 7, v0
v_lshl_add_u32 v3, v4, 7, v3
v_lshrrev_b32 v4, 5, v0
v_bfe_u32 v5, v0, 1, 1
v_xor_b32 v5, v4, v5
v_lshl_add_u32 v3, v5, 4, v3
s_mul_i32 s68, s67, {12*XBLK}
s_add_u32 s68, s68, {BUFA}
v_add_u32 v{vX}, s68, v3
v_bfe_u32 v2, v0, 2, 2
v_lshlrev_b32 v2, 7, v2
v_bfe_u32 v3, v0, 3, 1
v_lshl_add_u32 v2, v3, 6, v2
v_bfe_u32 v3, v0, 4, 1
v_lshl_add_u32 v2, v3, 5, v2
v_and_b32 v3, 1, v0
v_lshl_add_u32 v2, v3, 4, v2
v_bfe_u32 v3, v0, 1, 1
v_lshl_add_u32 v2, v3, 3, v2
v_lshl_add_u32 v2, v4, 12, v2
s_lshl_b32 s68, s66, 11
s_add_u32 s68, s68, {BUFA + XSZ}
v_add_u32 v{vW0}, s68, v2
v_xor_b32 v{vW1}, 64, v{vW0}
""")
    for r in vL: I(f"v_mov_b32 v{r}, 0")
    if OPT['tlb']:
        I(f"""
s_mul_i32 s66, s48, {2*786432}
s_lshr_b32 s67, s49, 2
s_mul_i32 s68, s67, {8*24576}
s_add_u32 s66, s66, s68
s_lshl_b32 s67, s67, 4
s_add_u32 s67, s67, s48
s_mul_i32 s67, s67, {6*32768}
s_add_u32 s67, s67, {P_WS_OFF - O_WS_OFF}
s_add_u32 s68, s66, 786432
s_add_u32 s69, s67, {6*32768 - 4}
buffer_load_dword a186, v{vSY}, s[28:31], 0 offen offset:1024
buffer_load_dword a187, v{vSY}, s[36:39], 0 offen offset:1024
buffer_load_dword a188, v{vSY}, s[8:11], s63 offen offset:1024
buffer_load_dword a189, v{vSY}, s[44:47], s66 offen
buffer_load_dword a190, v{vSY}, s[44:47], s68 offen
buffer_load_dword a191, v{vSY}, s[44:47], s67 offen
buffer_load_dword a106, v{vSY}, s[44:47], s69 offen
buffer_load_dword a107, v{vSY}, s[4:7], s53 offen
buffer_load_dword a108, v{vSY}, s[72:75], s65 offen
""")
    st1 = stage_dma(1)
    emit_vm(st1[:OPT['pre1']])
    PFT = [('K', 1, 0), ('V', 1, 16), ('K', 2, 32), ('V', 2, 48), ('K', 3, 64), ('V', 3, 80)]
    def pf_load(kind, n, base):
        out = []
        for hd in range(2):
            for half in range(2):
                r = base + 4 * (hd * 2 + half)
                sr = (28 if kind == 'K' else 36) + 4 * hd
                v = (vOK if kind == 'K' else vOV)[half]
                out.append(([f"s_mov_b32 s60, {n*8192}"] if hd + half == 0 else [],
                            f"buffer_load_dwordx4 a[{r}:{r+3}], v{v}, s[{sr}:{sr+3}], s60 offen offset:{hd*2048+half*1024} {OPT['kfl'] if kind == 'K' else OPT['vfl']}"))
        return out
    def pf_write(kind, base, areg, off):
        return [f"ds_write_b128 v{areg}, a[{base+4*i}:{base+4*i+3}] offset:{off + i*1024}" for i in range(4)]
    def tile_vm(kind, n, dst):
        pre, dm = kv_tile(kind, n, dst)
        return [(pre if i == 0 else [], d) for i, d in enumerate(dm)]
    NA, NB = 112, 144
    def a_read(ks, dt, sec, dst): return f"ds_read_b64_tr_b16 a[{dst+2*sec}:{dst+2*sec+1}], v{vW1 if dt & 1 else vW0} offset:{ks*8192 + (dt>>1)*1024 + sec*512}"
    def b_read(ks, t, dst): return f"ds_read_b128 a[{dst}:{dst+3}], v{vX} offset:{t*4*XBLK + ks*32}"
    def qp_reads(ks):
        par = ks & 1
        A = [a_read(ks, dt, sec, NA + 16 * par + 4 * dt) for dt in range(4) for sec in range(2)]
        B = [b_read(ks, t, NB + 12 * par + 4 * t) for t in range(3)]
        return A[:2] + B + A[2:]
    def qp_mfmas(first):
        ms = []
        for ks in range(4):
            par = ks & 1
            for dt in range(4):
                for t in range(3):
                    d = f"v[{acc(t,dt)}:{acc(t,dt)+15}]"
                    a = NA + 16 * par + 4 * dt; b = NB + 12 * par + 4 * t
                    ms.append(f"v_mfma_f32_32x32x16_bf16 {d}, a[{a}:{a+3}], a[{b}:{b+3}], {'0' if first and ks == 0 else d}")
        return ms
    A7 = [112, 168, 128, 144]; B7 = [192, 208, 192]
    def put_vm(sl, gaps, lst):
        for g, (pre, x) in zip(gaps, lst):
            sl.put(g - 1, list(pre))
            sl.setdefault(g, []).insert(0, x)
        assert len(gaps) >= len(lst), (len(gaps), len(lst))
    def qp_stage(s, carry):
        sl = Slots()
        def put_reads(g0, rs):
            for i, r in enumerate(rs): sl.put(g0 + 2 * (i // 2), r)
        for ks in range(3): put_reads(ks * 12, qp_reads(ks + 1))
        put_vm(sl, list(range(1, 35, 2)), carry)
        d = BUFSZ if s % 2 == 0 else -BUFSZ
        op = (lambda r: f"v_add_u32 v{r}, {d}, v{r}") if d > 0 else (lambda r: f"v_subrev_u32 v{r}, {-d}, v{r}")
        sl.put(35, [op(vX), op(vW0), op(vW1), "s_waitcnt lgkmcnt(0)", Ins("s_barrier", lr=[f"Q{s+1}"] + (["K0", "V0"] if s == 6 else []))])
        left = []
        if s == 6:
            sl.put(1, ["s_mov_b32 s12, 1", "v_and_b32 v225, 31, v224", "v_lshlrev_b32 v225, v225, 1"])
            sl.put(3, ["v_cmp_gt_u32 vcc, 0x100, v224"])
            sl.put(5, ["v_cndmask_b32 v225, 0, v225, vcc"])
            for i_ in range(16):
                sl.put(7 + i_, [f"v_readlane_b32 s{14 + (i_ & 1)}, v225, {i_}"] + ([f"s_or_b32 s12, s12, s{14 + ((i_ - 1) & 1)}"] if i_ else []))
            sl.put(24, ["s_or_b32 s12, s12, s15"])
            sl.put(26, ["s_ff0_i32_b32 s12, s12"])
        if s < 6:
            put_reads(36, qp_reads(0))
            post = stage_dma(s + 2)
            put_vm(sl, list(range(37, 48, 2)), post[:6])
            left = post[6:]
        else:
            rs = [a_read(0, dt, sec, A7[0] + 4 * dt) for dt in range(4) for sec in range(2)]
            rs = rs[:2] + [b_read(0, 0, B7[0])] + rs[2:] + [a_read(1, dt, sec, A7[1] + 4 * dt) for dt in range(4) for sec in range(2)] + [b_read(ks, 0, B7[0] + 4 * ks) for ks in (1, 2, 3)]
            for i, r in enumerate(rs): sl.put(36 + (i * 12) // len(rs), r)
        schedule(p, qp_mfmas(s == 0), sl)
        return left
    p.add(Ins("s_barrier", lr=["Q0"]))
    stamp(p, 2)
    for r in qp_reads(0): I(r)
    PFL = []
    for t_ in PFT + ([('K', 4, 96)] if OPT['xreg'] >= 2 else []): PFL += pf_load(*t_)
    def la(s): return touch(OPT['la'] - 1) if (OPT['la'] and s + 1 + OPT['la'] < 8) else []
    carry = qp_stage(0, st1[OPT['pre1']:] + la(0) + tile_vm('K', 0, KS[0]) + tile_vm('V', 0, VS[0]))
    stamp(p, 3)
    for s in range(1, 7):
        ex = [([], f"buffer_load_dword v224, v230, s[4:7], s53 offen sc1")] if s == 4 else []
        pfl = PFL[(s - 1) * len(PFL) // 6: s * len(PFL) // 6]
        carry = qp_stage(s, carry + la(s) + pfl + ex)
    stamp(p, 4)
    ms = []
    for t in range(3):
        for ks in range(4):
            for dt in range(4):
                d = f"v[{acc(t,dt)}:{acc(t,dt)+15}]"
                a = A7[ks] + 4 * dt; b = B7[t] + 4 * ks
                ms.append(f"v_mfma_f32_32x32x16_bf16 {d}, a[{a}:{a+3}], a[{b}:{b+3}], {d}")
    ms += [s_mfma(S[0], t, ks, True) for t in range(3) for ks in range(8)]
    I0 = 72
    def IT(i, g=0): return I0 + 48 * i + g
    ms += [s_mfma(S[1], t, ks) for t in range(3) for ks in range(8)]
    ms += [pv_mfma(S[0], j, t, True) for j in range(8) for t in range(3)]
    for i in range(1, 15):
        ms += [s_mfma(S[(i + 1) & 1], t, ks) for ks in range(8) for t in range(3)]
        ms += [pv_mfma(S[i & 1], j, t) for j in range(8) for t in range(3)]
    TL = IT(15)
    ms += [pv_mfma(S[1], j, t) for j in range(8) for t in range(3)]
    sl = Slots()
    rs = [a_read(ks, dt, sec, A7[ks] + 4 * dt) for ks in (2, 3) for dt in range(4) for sec in range(2)]
    for i, r in enumerate(rs): sl.put(i // 2, r)
    for ks in range(4): sl.put(8 + ks, b_read(ks, 1, B7[1] + 4 * ks))
    for ks in range(4): sl.put(17 + ks, b_read(ks, 2, B7[2] + 4 * ks))
    sl.put(-1, [f"v_mbcnt_lo_u32_b32 v{vOX}, -1, 0", f"v_mbcnt_hi_u32_b32 v{vOX}, -1, v{vOX}", f"v_lshlrev_b32 v{vOX}, 4, v{vOX}",
                f"v_add_u32 v{vOW}, s62, v{vOX}", f"v_add_u32 v{vOX}, s61, v{vOX}"])
    w1 = pf_write('K', 0, vOX, KS[1]) + pf_write('V', 16, vOW, VS[1])
    WS2 = OPT['ws2']
    for i, x in enumerate(w1): sl.put(WS2 * i, x)
    sl.put(WS2 * 8 - 1, [f"v_add_u32 v{vOX}, {WIN}, v{vOX}", f"v_add_u32 v{vOW}, {WIN}, v{vOW}"])
    w2 = pf_write('K', 32, vOX, KS[2] - WIN) + pf_write('V', 48, vOW, VS[2] - WIN)
    for i, x in enumerate(w2): sl.put(WS2 * (8 + i), x)
    sl.put(25, ["s_waitcnt lgkmcnt(1)", "s_barrier"])
    w3 = pf_write('K', 64, vOX, KS[3] - WIN) + pf_write('V', 80, vOW, VS[3] - WIN)
    for i, x in enumerate(w3): sl.put(max(WS2 * 16, 26) + 2 * i, x)
    for ks in range(8): sl.put(33 + 2 * ks, k_read(ks, KS[0]))
    sl.put(52, ["s_waitcnt lgkmcnt(0)", "s_barrier"])
    for ks in range(8): sl.put(65 + ks, k_read(ks, KS[1]))
    kwin = 0; vwin = 0
    def win_move(regs, d): return [(f"v_add_u32 v{r}, {d}, v{r}" if d > 0 else f"v_subrev_u32 v{r}, {-d}, v{r}") for r in regs]
    for i in range(0, 16):
        va = VS[i % 4]; w = (va // WIN) * WIN
        if w != vwin:
            sl.put(IT(i, 10) if i < 15 else IT(14, 41), win_move([vV0, vV1], w - vwin)); vwin = w
        for j in range(8):
            if i == 0: g0 = max(89 + j, IT(0, 15 + 3 * j)); g1 = g0 + (0 if j < 2 else 1)
            elif i < 15: g0 = IT(i, 15 + 3 * j); g1 = g0 + 1
            else: g0 = max(IT(14, 42 + 2 * j), TL + 3 * j - 9); g1 = g0 + 1
            sl.put(g0, v_read(j, 0, va - vwin)); sl.put(g1, v_read(j, 1, va - vwin))
        if i == 15: break
        need = [f"V{i+1}"] + ([f"K{i+2}"] if i + 2 < 16 else [])
        sl.put(IT(i, 40), ["s_waitcnt lgkmcnt(0)", Ins("s_barrier", lr=need)])
        n = i + 2
        if n < 16:
            ka = KS[n % 5]; w = (ka // WIN) * WIN
            if w != kwin:
                sl.put(IT(i, 38), win_move([vK], w - kwin)); kwin = w
            for ks, g in enumerate([IT(i, 42), IT(i, 44), IT(i, 46), IT(i + 1, 1), IT(i + 1, 4), IT(i + 1, 7), IT(i + 1, 10), IT(i + 1, 13)]):
                sl.put(g, k_read(ks, ka - kwin))
    XR = OPT['xreg']
    tiles = []
    def add_tile(kind, n, ear):
        dst = KS[n % 5] if kind == 'K' else VS[n % 4]
        tiles.append((IT(n - 2, 40) if kind == 'K' else IT(n - 1, 40) - 1, ear, tile_vm(kind, n, dst)))
    if XR < 2: add_tile('K', 4, 27)
    add_tile('K', 5, 54)
    for n in range(6, 16): add_tile('K', n, IT(n - 6, 42))
    for n in range(4 + min(XR, 2), 16): add_tile('V', n, IT(n - 4, 42))
    if XR:
        tiles.append((IT(2, 40), 49, pf_load('V', 4, 192)))
        sl.put(IT(2, 14), [f"v_mbcnt_lo_u32_b32 v{vOW}, -1, 0", f"v_mbcnt_hi_u32_b32 v{vOW}, -1, v{vOW}"])
        sl.put(IT(2, 16), [f"v_lshlrev_b32 v{vOW}, 4, v{vOW}", f"v_add_u32 v{vOW}, s62, v{vOW}"])
        for i, x in enumerate(pf_write('V', 192, vOW, VS[0])): sl.put(IT(2, 18) + 2 * i, x)
    if XR >= 2:
        tiles.append((IT(2, 39), 33, pf_load('V', 5, 208)))
        for i, x in enumerate(pf_write('V', 208, vOW, VS[1])): sl.put(IT(3, 18) + 2 * i, x)
        sl.put(47, [f"v_add_u32 v{vOX}, {WIN}, v{vOX}"])
        for i, x in enumerate(pf_write('K', 96, vOX, KS[4] - 2 * WIN)): sl.put(48 + i, x)
    g_first, g_last = OPT['dfirst'], I0 + OPT['dlast']
    nops = sum(len(t[2]) for t in tiles)
    gaps = []; vm = []; g = g_first - 2.0
    while tiles:
        step = max(2.0, (g_last - g) / (nops - len(gaps)))
        av = [t for t in tiles if t[1] <= g + step]
        t = min(av, key=lambda t: t[0]) if av else min(tiles, key=lambda t: t[1])
        tiles.remove(t)
        for pre, d in t[2]:
            step = max(2.0, (g_last - g) / (nops - len(gaps)))
            g = max(g + step, t[1])
            gi = int(round(g))
            while gi in gaps or (gi - 1) in gaps or any(txt(x).startswith('s_barrier') for x in sl.get(gi, [])): gi += 1
            gaps.append(gi); g = max(g, gi); vm.append((pre, d, t[1]))
        assert gaps[-1] + OPT['kmar'] <= t[0], (txt(t[2][0][1]), gaps[-1], t[0])
    put_vm(sl, gaps, [(a, b) for a, b, _ in vm])
    if OPT.get('verbose'):
        last = {}
        for gi, (pre, d, ear) in zip(gaps, vm):
            if isinstance(d, Ins): last[d.lw[0]] = gi
        for k_, gi in last.items():
            n = int(k_[1:]); nb = IT(n - 2, 40) if k_[0] == 'K' else IT(n - 1, 40)
            sys.stderr.write(f"{k_}: last issue {gi} (iter {(gi-I0)/48:.2f}) margin {nb-gi}\n")
    used_vm = set(gaps)
    def free_gap(g):
        while g in used_vm or (g - 1) in used_vm or (g + 1) in used_vm: g += 1
        used_vm.add(g); return g
    sl.put(-1, ["v_mbcnt_lo_u32_b32 v237, -1, 0", "v_mbcnt_hi_u32_b32 v237, -1, v237", "v_lshlrev_b32 v237, 7, v237"])
    sl.put(free_gap(12), "buffer_load_dword a184, v237, s[8:11], s63 offen offset:1024")
    sl.put(free_gap(14), "buffer_load_dword a185, v237, s[8:11], s63 offen offset:1088")
    if XR < 2:
        sl.put(32, ["v_accvgpr_write_b32 a208, s12", "v_accvgpr_write_b32 a209, 0"])
        sl.put(free_gap(34), f"buffer_atomic_cmpswap a[208:209], v{vSY}, s[72:75], s65 offen sc0 sc1")
        sl.put(IT(8, 6), [f"v_accvgpr_read_b32 v{vX}, a208"])
        sl.put(IT(8, 8), [f"v_readfirstlane_b32 s13, v{vX}"])
        sl.put(IT(8, 10), ["s_cmp_eq_u32 s13, 0", "s_cselect_b32 s13, s12, s13"])
    else:
        sl.put(14, ["v_mov_b32 v238, s12", "v_mov_b32 v239, 0"])
        sl.put(free_gap(16), f"buffer_atomic_cmpswap v[238:239], v{vSY}, s[72:75], s65 offen sc1")
        sl.put(free_gap(IT(4, 20)), f"buffer_load_dword v{vX}, v{vSY}, s[72:75], s65 offen sc1")
        sl.put(IT(8, 8), [f"v_readfirstlane_b32 s13, v{vX}"])
    for k_, it_ in enumerate([int(x) for x in str(OPT['rt']).split(':') if x]):
        g_ = IT(it_, 20)
        sl.put(g_ - 3, [f"v_mbcnt_lo_u32_b32 v{vOX}, -1, 0", f"v_mbcnt_hi_u32_b32 v{vOX}, -1, v{vOX}"])
        sl.put(g_ - 2, [f"v_lshlrev_b32 v{vOX}, 3, v{vOX}"])
        sl.put(free_gap(g_), f"global_load_dword a{212+k_}, v{vOX}, s[100:101]")
    if OPT['rtw']:
        g_ = IT(OPT['rtw'], 20)
        sl.put(g_ - 3, [f"v_mbcnt_lo_u32_b32 v{vOX}, -1, 0", f"v_mbcnt_hi_u32_b32 v{vOX}, -1, v{vOX}"])
        sl.put(g_ - 2, [f"v_lshlrev_b32 v{vOX}, 7, v{vOX}"])
        sl.put(free_gap(g_), f"buffer_load_dword a220, v{vOX}, s[8:11], s63 offen offset:1024")
    if OPT['rt0']:
        sl.put(1, ["v_lshrrev_b32 v236, 4, v237"])
        sl.put(free_gap(9), "global_load_dword a186, v236, s[100:101]")
    for i, x in enumerate(wo_setup()): sl.put(IT(9, 2) + i, x)
    wear = [IT(10, 42), IT(11, 42), IT(12, 42), IT(12, 42), IT(13, 42), IT(13, 42)]
    g = max(max(gaps) + 2, IT(13, 10))
    wg_, wl_ = [], []
    for sig in range(NWPRE):
        for pre, d in wo_tile(sig):
            g = free_gap(max(g, wear[sig]))
            while any(txt(x).startswith('s_barrier') for x in sl.get(g, [])): g = free_gap(g + 1)
            wg_.append(g); wl_.append((pre, d)); g += OPT.get('wps', 3)
    put_vm(sl, wg_, wl_)
    conv = []
    for t in range(3):
        for dt in range(4):
            a = acc(t, dt)
            ear = 16 * t + 12 + dt + 3
            for k2 in range(2):
                dl = 48 + 8 * t + 2 * dt + k2 - 2
                if t == 1 and dt < 3: dl = min(dl, 48 + 8 * dt - 2)
                for pr in range(4):
                    r = a + 8 * k2 + 2 * pr
                    conv.append((f"v_mul_f32 v{r}, s64, v{r}", ear, dl))
                    conv.append((f"v_mul_f32 v{r+1}, s64, v{r+1}", ear, dl))
                for pr in range(4):
                    r = a + 8 * k2 + 2 * pr
                    conv.append((f"v_cvt_pk_bf16_f32 v{QB[t] + 4*(2*dt+k2) + pr}, v{r}, v{r+1}", ear, dl))
    mx = []
    for t in range(3):
        b = S[0] + t * 16
        ear0 = 48 + 8 * t + 7 + 3
        ear = ear0 if t == 0 else max(ear0, 71)
        dl = 72 + 8 * t - 2
        ops = [f"v_max3_f32 v{vM[t]}, v{b}, v{b+1}, v{b+2}"]
        ops += [f"v_max3_f32 v{vM[t]}, v{vM[t]}, v{b+r}, v{b+r+1}" for r in range(3, 15, 2)]
        ops += [f"v_max_f32 v{vM[t]}, v{vM[t]}, v{b+15}", f"v_mov_b32 v{vT[t]}, v{vM[t]}", "s_nop 1", f"v_permlane32_swap_b32 v{vT[t]}, v{vM[t]}",
                f"v_max_f32 v{vM[t]}, v{vM[t]}, v{vT[t]}"]
        mx += [(o, ear0, dl) for o in ops]
        mx += [(f"v_sub_f32 v{NEGM[t]+r}, 0, v{vM[t]}", ear, dl) for r in range(16)]
    sm = []
    for n in range(16):
        buf = S[n & 1]
        pv0 = IT(n, 24) if n < 15 else TL
        def dl_of(e): return pv0 + (0 if e < 24 else 12) + (e % 24) // 8 - 2
        for e in range(49):
            t = (min(e, 47) % 24) // 8
            if n == 0: ear = 72 + 8 * t - 1
            elif n == 1: ear = IT(0, 8 * t + 7 + 4)
            else: ear = IT(n - 1, 21 + t + 4)
            if n == 0 and e < 48:
                r, t = ereg(buf, e)
                sm.append((f"v_sub_f32 v{r}, v{r}, v{vM[t]}", ear, dl_of(e) - 1))
            for o in sm_ops(buf, e):
                sm.append((o, ear, dl_of(e) - 1 if o.startswith('v_exp') else dl_of(e - 1)))
    fin = fin_ops()
    vote = [f"s_mov_b32 s66, {f2u(OPT['thr']):#x}",
            f"v_max3_f32 v232, v{vL[0]}, v{vL[1]}, v{vL[2]}", f"v_add_f32 v233, v{vL[0]}, v{vL[1]}", f"v_add_f32 v233, v233, v{vL[2]}",
            f"v_cmp_nge_f32 vcc, s66, v233", f"v_mov_b32 v234, {SPARE}", "s_lshl_b32 s67, s3, 2", "s_cmp_lg_u64 vcc, 0\ns_cselect_b32 s66, 1, 0",
            "v_add_u32 v235, s67, v234", "v_mov_b32 v236, s66", "ds_write_b32 v235, v236"]
    vote = [x for x in vote if 'max3' not in x]
    vote = [x.replace("s67", "s14").replace("s66", "s17") for x in vote]
    sm += [(o, TL + 10, TL + 16) for o in fin + vote]
    sl.put(TL + 18, ["s_waitcnt lgkmcnt(0)", Ins("s_barrier", lr=[f"W{i}" for i in range(4)]), "ds_read_b128 v[236:239], v234"])
    for k in range(RD): sl.put(TL + 19 + k, [a_rd(k, 0), a_rd(k, 1)])
    sm += [(o, TL + 17, TL + 99) for o in norm_unit(0, True, (64, 96))]
    low = [(o, IT(10, 0), IT(13, 0)) for o in op_setup()] + [(o, max(max(gaps) + 1, IT(14, 15)), TL + 10) for o in win_regs()]
    if OPT['stamp']:
        sl.put(IT(1, 0) - 1, stamp_ops(5)); sl.put(TL - 1, stamp_ops(6))
    for i_ in range(1, 15):
        for k_ in range(OPT.get('pad', 0)): sl.put(IT(i_, 5 + 3 * k_), 's_nop 7')
    def bud(g):
        if g < IT(1): return OPT['tbud']
        return OPT['bud'] - (4 if (g - I0) % 3 == 2 else 0)
    schedule(p, ms, sl, [conv, mx, sm, low], budget=bud)
    I("""
v_or3_b32 v236, v236, v237, v238
v_or_b32 v236, v236, v239
v_readfirstlane_b32 s66, v236
s_cmp_lg_u32 s66, 0
s_cbranch_scc1 L1_slow
L1_norm:
""")
    stamp(p, 7)
    def oacc(n, t):
        return (f"v[{120+(n*3+t)*16}:{135+(n*3+t)*16}]" if n < 2 else f"a[{((n-2)*3+t)*16}:{((n-2)*3+t)*16+15}]")
    def op_mfma(k, t):
        sig, ks, n = GR[k]
        b = bfr(sig, ks, t); d = oacc(n, t)
        return f"v_mfma_f32_32x32x16_bf16 {d}, a[{fr(k)}:{fr(k)+3}], v[{b}:{b+3}], {'0' if (sig == 0 and ks == 0) else d}"
    stamp(p, 8)
    nrm = []
    late = []
    for dt, dl in ((1, 18), (2, 48), (3, 72)):
        u = norm_unit(dt, OPT['npk'])
        if dt >= OPT['ldt']:
            for i_, x in enumerate(u):
                if isinstance(x, Ins): late.append(([u[i_ - 1]], x))
            u = [x for i_, x in enumerate(u) if not isinstance(x, Ins) and not (i_ + 1 < len(u) and isinstance(u[i_ + 1], Ins))]
        nrm += [(x, 0, dl - 2) for x in u]
    def ox_load(sig):
        rho, dq = step_of(sig)
        out = []
        for ks in range(2):
            for t in range(3):
                b = bfr(sig, ks, t)
                out.append(([f"s_add_u32 s60, s{OXS[rho]}, {(2*dq+ks)*3072}"] if t == 0 else [],
                            f"buffer_load_dwordx4 v[{b}:{b+3}], v{rL16}, s[44:47], s60 offen offset:{t*1024} {OPT['oxl']}"))
        return out
    al = Slots()
    for k in range(len(GR)):
        kn = k + RD
        if kn < len(GR):
            nxt = (kn >> 3) != (k >> 3)
            g0 = 3 * k + (2 if nxt else 0)
            al.put(g0, a_rd(kn, 0)); al.put(min(g0 + 1, (k >> 3) * 24 + 23), a_rd(kn, 1))
    def bar(g, need, extra=()):
        al.put(g, ["s_waitcnt lgkmcnt(0)", Ins("s_barrier", lr=list(need))] + list(extra))
    PA, PL, PB, PL2 = OPT['pa'], OPT['pl'], 3 * 24 + 13, OPT['pl2']
    al.put(PA, [Ins("s_barrier", lr=["OA"]), "s_or_b32 s66, s13, 0x20", "v_mov_b32 v242, s66", f"buffer_store_dword v242, v{vSY}, s[4:7], s52 offen sc1"])
    bar(12 * 24 + 13, ["W14", "W15"])
    for s_ in (3, 5, 7, 9, 11):
        ex = ["s_or_b32 s66, s13, 0x60", "v_mov_b32 v242, s66", f"buffer_store_dword v242, v{vSY}, s[4:7], s52 offen sc1"] if s_ == OPT['pbs'] else []
        bar(s_ * 24 + 13, [f"W{s_+1}", f"W{s_+2}"] + (["OB"] if s_ == OPT['pbs'] else []), ex)
    used = set([PA, OPT['pbs'] * 24 + 13])
    def place(g0, lst, stride):
        gs = []; g = g0
        for _ in lst:
            while g in used or g in (PL, PL2): g += 1
            gs.append(g); used.add(g); g += stride
        put_vm(al, gs, lst); return g
    for pl_ in (PL, PL2):
        al.put(pl_ - OPT['pe'], f"buffer_load_dword v241, v254, s[4:7], s53 offen sc1"); used.add(pl_ - OPT['pe'])
    def chk(tl, g):
        nb = min(tl - 1 if tl % 2 == 0 else tl - 2, 12) * 24 + 13
        assert g + OPT['wmar'] <= nb, f"wo tile {tl} issued at {g}, needed by barrier {nb}"
    g = OPT['w6']
    for tl in range(NWPRE, NSL):
        g = place(g, wo_tile(tl), OPT['w6s']); chk(tl, g)
    for tl in range(NSL, 16):
        st = tl - NSL
        sb = 3 if st <= 3 else (st if st % 2 else st + 1)
        g = place(max(g, sb * 24 + 16), wo_tile(tl), OPT['wls']); chk(tl, g)
    g = PL + 1
    for sig in range(4, 16):
        if sig == OPT['lat'] and late:
            g = place(g, late, OPT['lst'])
            assert g < OPT['pbs'] * 24 + 13
        g = max(g, (sig - NBR + 1) * 24 + 1)
        if sig >= 10: g = max(g, PL2 + 1)
        g = place(g, ox_load(sig), OPT['oxs'] if sig < 4 + OPT['oxn'] else OPT['oxt'])
        if OPT.get('verbose'): sys.stderr.write(f"ox {sig}: end gap {g} need {sig*24}\n")
        assert g <= min(sig * 24, 13 * 24)
    def h1(dst, w): return [f"s_mul_i32 {dst}, {w}, 12288", f"s_add_u32 {dst}, {dst}, {(16512 - 2*12288) & 0xffffffff:#x}", f"s_cmp_eq_u32 {w}, 0\ns_cselect_b32 {dst}, 114944, {dst}",
                            f"s_cmp_eq_u32 {w}, 1\ns_cselect_b32 {dst}, 148096, {dst}"]
    setup = ["s_mul_i32 s66, s3, 12288", "s_add_u32 s66, s66, 65792", f"v_add_u32 v247, s66, v{rL16}"] + h1("s66", "s3") + [f"v_add_u32 v248, s66, v{rL16}",
             "s_xor_b32 s67, s3, 2", "s_mul_i32 s66, s67, 12288", "s_add_u32 s66, s66, 65792", f"v_add_u32 v249, s66, v{rL16}"] + h1("s66", "s67") + [f"v_add_u32 v250, s66, v{rL16}",
             f"s_add_u32 s28, s18, {P_WS_OFF}\ns_addc_u32 s29, s19, 0", "s_and_b32 s29, s29, 0xffff", f"s_mov_b32 s30, {P_BYTES}",
             "s_lshr_b32 s66, s49, 2", "s_lshl_b32 s66, s66, 4", "s_add_u32 s66, s66, s48", "s_mul_i32 s66, s66, 6", "s_and_b32 s67, s3, 1", "s_mul_i32 s67, s67, 3",
             "s_add_u32 s66, s66, s67", "s_lshl_b32 s66, s66, 15", "s_lshl_b32 s67, s71, 13", "s_add_u32 s66, s66, s67", "s_lshr_b32 s67, s3, 1", "s_lshl_b32 s67, s67, 12",
             "s_add_u32 s14, s66, s67"]
    for i, x in enumerate(setup): al.put(12 * 24 - 6 + i, x)
    E0 = 13 * 24
    for i in range(12): al.put(E0 + 18 + 2 + (i * 4) // 3, f"ds_write_b128 v247, a[{4*i}:{4*i+3}] offset:{i*1024}")
    al.put(E0 + 37, ["s_waitcnt lgkmcnt(0)", "s_barrier"])
    for i in range(12): al.put(E0 + 36 + 2 + (i * 4) // 3, f"ds_write_b128 v248, a[{48+4*i}:{51+4*i}] offset:{i*1024}")
    def xr(i): return [96 + 4 * i, 4 * (i - 6), 216 + 4 * (i - 12), 24 + 4 * (i - 18)][i // 6]
    for i in range(12): al.put(E0 + 39 + i, f"ds_read_b128 v[{xr(i)}:{xr(i)+3}], v249 offset:{i*1024}")
    al.put(E0 + 55, ["s_waitcnt lgkmcnt(0)", "s_barrier"])
    for i in range(12): al.put(E0 + 56 + i, f"ds_read_b128 v[{xr(12+i)}:{xr(12+i)+3}], v250 offset:{i*1024}")
    def fin_tile(n, t, pk):
        o = 120 + (n * 3 + t) * 16
        out = []
        for q4 in range(4):
            x = xr((n * 3 + t) * 4 + q4)
            if pk: out += [f"v_pk_add_f32 v[{o+4*q4+h}:{o+4*q4+h+1}], v[{o+4*q4+h}:{o+4*q4+h+1}], v[{x+h}:{x+h+1}]" for h in (0, 2)]
            else: out += [f"v_add_f32 v{o+4*q4+h}, v{o+4*q4+h}, v{x+h}" for h in range(4)]
        out += [f"v_cvt_pk_bf16_f32 v{o+pr}, v{o+2*pr}, v{o+2*pr+1}" for pr in range(8)]
        out.append(f"s_add_u32 s67, s14, {t*32768}")
        out += [f"buffer_store_dwordx4 v[{o+4*s2}:{o+4*s2+3}], v{rL16}, s[28:31], s67 offen offset:{(n*2+s2)*1024} {OPT['pst']}" for s2 in range(2)]
        return out
    fin0 = [(x, E0 + 56 - OPT['pl2'], 9999) for t in range(3) for x in fin_tile(0, t, False)]
    if OPT['st2']:
        for idx, s_ in ((2, 8), (3, 12)): al.put(s_ * 24 - 1, stamp_ops(idx))
    allm = [op_mfma(k, t) for k in range(len(GR)) for t in range(3)]
    def seg(g0, g1, streams=(), budget=None):
        r = Slots()
        for k_, v_ in al.items():
            if g0 <= k_ < g1: r[k_ - g0] = list(v_)
        schedule(p, allm[g0:g1], r, streams, budget)
    def poll(tag, bit, mask):
        p.raw(f"""
s_mov_b32 s51, 0
s_cmp_lg_u32 s3, 0
s_cbranch_scc1 L1_go{tag}
L1_poll{tag}:
s_waitcnt vmcnt(0)
v_xor_b32 v241, s13, v241
v_and_b32 v241, {(~(0xE0 & ~bit)) & 0xffffffff:#x}, v241
v_cmp_eq_u32 vcc, {bit}, v241
s_nop 3
s_and_b32 s68, vcc_lo, {mask}
s_cmp_eq_u32 s68, {mask}
s_cbranch_scc1 L1_go{tag}
s_sleep 1
buffer_load_dword v241, v254, s[4:7], s53 offen sc1
s_add_u32 s51, s51, 1
s_cmp_lt_u32 s51, 0x40000
s_cbranch_scc1 L1_poll{tag}
L1_go{tag}:
""")
        I("s_barrier")
    assert PL >= 72
    seg(0, PL, [nrm], lambda g: OPT['nbud'])
    poll("a", 0x20, "s15")
    stamp(p, 9)
    seg(PL, PL2)
    poll("b", 0x40, "s15")
    seg(PL2, len(allm), [fin0])
    if OPT['st2']: stamp(p, 4)
    for t in range(3):
        for x in fin_tile(1, t, True): I(x)
    I(f"""
v_lshrrev_b32 v2, 7, v{rL16}
v_bfe_u32 v3, v{rL16}, 4, 3
v_lshlrev_b32 v4, 9, v2
v_lshl_add_u32 v4, v3, 4, v4
v_lshlrev_b32 v5, 4, v2
v_lshl_add_u32 v5, v3, 10, v5
s_load_dwordx2 s[20:21], s[0:1], 40
s_lshr_b32 s66, s49, 2
s_mul_i32 s66, s66, 12
s_mul_i32 s67, s3, 3
s_add_u32 s66, s66, s67
s_mul_i32 s60, s48, {6*32768}
s_lshl_b32 s67, s71, 13
s_add_u32 s61, s60, s67
s_lshl_b32 s67, s71, 8
s_add_u32 s60, s60, s67
""")
    for i in range(3):
        I(f"""
s_add_u32 s67, s66, {i}
s_lshr_b32 s68, s67, 3
s_lshl_b32 s68, s68, 15
s_bfe_u32 s69, s67, 0x20001
s_lshl_b32 s59, s69, 7
s_add_u32 s{32+i}, s61, s68
s_add_u32 s{32+i}, s{32+i}, s59
s_and_b32 s59, s67, 1
s_lshl_b32 s62, s59, 12
s_add_u32 s{32+i}, s{32+i}, s62
s_lshl_b32 s69, s69, 13
s_add_u32 s{36+i}, s60, s68
s_add_u32 s{36+i}, s{36+i}, s69
s_lshl_b32 s59, s59, 7
s_add_u32 s{36+i}, s{36+i}, s59
""")
    I(f"""
s_or_b32 s66, s13, 0xe0
v_mov_b32 v242, s66
s_waitcnt vmcnt(0) lgkmcnt(0)
s_barrier
buffer_store_dword v242, v{vSY}, s[4:7], s52 offen sc1
buffer_load_dword v241, v254, s[4:7], s53 offen sc1
s_and_b32 s21, s21, 0xffff
s_mov_b32 s22, {16*192*1024}
s_mov_b32 s23, 0x00020000
""")
    if OPT['st2']: stamp(p, 5)
    poll("c", 0x80, "s16")
    if OPT['st2']: stamp(p, 6)
    for i in range(3):
        for g_ in range(4):
            I(f"buffer_load_dwordx4 v[{8+16*i+4*g_}:{11+16*i+4*g_}], v4, s[28:31], s{32+i} offen sc1")
            if g_ < 3: I(f"s_add_u32 s{32+i}, s{32+i}, {16*192*1024}")
    for i in range(3):
        for d in range(4):
            for g_ in range(4):
                r = 8 + 16 * i + 4 * g_ + d
                I(f"v_lshlrev_b32 v{64+2*g_}, 16, v{r}\nv_and_b32 v{65+2*g_}, 0xffff0000, v{r}")
            I(f"v_pk_add_f32 v[64:65], v[64:65], v[66:67]\nv_pk_add_f32 v[68:69], v[68:69], v[70:71]\nv_pk_add_f32 v[64:65], v[64:65], v[68:69]")
            I(f"v_cvt_pk_bf16_f32 v{72+4*i+d}, v64, v65")
        I(f"buffer_store_dwordx4 v[{72+4*i}:{75+4*i}], v5, s[20:23], s{36+i} offen {OPT['outf']}")
    if OPT['stamp']:
        I("s_waitcnt vmcnt(0)")
        stamp(p, 1)
        if OPT.get('dbg'):
            I(f"s_lshl_b32 s76, s2, 2\ns_add_u32 s76, s76, s3\ns_sub_u32 s76, s76, {OPT['dbg']*4}\ns_lshl_b32 s76, s76, 12\nv_mov_b32 v1, 0")
            for i in range(1, 10):
                I(f"s_sub_u32 s77, s{80+i}, s80\nv_mov_b32 v2, s77\nbuffer_store_dword v2, v1, s[72:75], s76 offen offset:{4*i}")
        stamp_out(p, 10, 0)
    I("L1_end:\ns_endpgm\nL1_code_end:")
    return p

def gen_slow():
    p = Prog(); I = p.I
    M = [232, 233, 234]; T = [235, 236, 237]
    M = [S[1], S[1] + 1, S[1] + 2]; T = [S[1] + 3, S[1] + 4, S[1] + 5]
    I("L1_slow:\ns_nop 15\ns_waitcnt vmcnt(0) lgkmcnt(0)\ns_barrier")
    I(f"v_mbcnt_lo_u32_b32 v{S[1]+8}, -1, 0\nv_mbcnt_hi_u32_b32 v{S[1]+8}, -1, v{S[1]+8}")
    for x in kv_addr_setup(f"v{S[1]+8}", S[1] + 9): I(x)
    for t in range(3): I(f"v_mov_b32 v{M[t]}, 0xff800000")
    def load(kinds):
        for kind in kinds:
            pre, dm = kv_tile(kind, 0, KS[0] if kind == 'K' else VS[0], soff="s60", tag=False)
            for x in pre: I(x)
            for d in dm: p.add(d)
        I("s_waitcnt vmcnt(0)\ns_barrier")
    I("s_mov_b32 s60, 0\nL1_s1:")
    p.loop_begin(2)
    load("K")
    for ks in range(8): I(k_read(ks, KS[0]))
    for ks in range(8):
        for t in range(3): I(s_mfma(S[0], t, ks, True))
    for t in range(3):
        b = S[0] + 16 * t
        for r in range(0, 16, 2): I(f"v_max3_f32 v{M[t]}, v{M[t]}, v{b+r}, v{b+r+1}")
    I("s_barrier\ns_add_u32 s60, s60, 8192\ns_cmp_lt_u32 s60, 131072\ns_cbranch_scc1 L1_s1")
    p.loop_end()
    for t in range(3): I(f"v_mov_b32 v{T[t]}, v{M[t]}")
    for t in range(3): I(f"v_permlane32_swap_b32 v{T[t]}, v{M[t]}")
    for t in range(3): I(f"v_max_f32 v{M[t]}, v{M[t]}, v{T[t]}")
    for t in range(3):
        for r in range(16): I(f"v_sub_f32 v{NEGM[t]+r}, 0, v{M[t]}")
        I(f"v_mov_b32 v{vL[t]}, 0")
    for r in range(192): I(f"v_accvgpr_write_b32 a{r}, 0")
    I("s_mov_b32 s60, 0\nL1_s2:")
    p.loop_begin(2)
    load("KV")
    for ks in range(8): I(k_read(ks, KS[0]))
    for ks in range(8):
        for t in range(3): I(s_mfma(S[0], t, ks))
    for j in range(8):
        I(v_read(j, 0, VS[0])); I(v_read(j, 1, VS[0]))
    for e in range(49):
        for x in sm_ops(S[0], e): I(x)
    for j in range(8):
        for t in range(3): I(pv_mfma(S[0], j, t))
    I("s_barrier\ns_add_u32 s60, s60, 8192\ns_cmp_lt_u32 s60, 131072\ns_cbranch_scc1 L1_s2")
    p.loop_end()
    for x in fin_ops(): I(x)
    for sig in range(NWPRE):
        for pre, d in wo_tile(sig):
            for x in pre: I(x)
            p.add(d)
    for x in win_regs(): I(x)
    for x in norm_unit(0, True, (64, 96)): em(p, x)
    I("s_waitcnt vmcnt(0)\ns_barrier")
    for k in range(RD):
        I(a_rd(k, 0)); I(a_rd(k, 1))
    I("s_waitcnt lgkmcnt(0)\ns_nop 15\ns_branch L1_norm")
    return p

def gen_red():
    p = Prog(); I = p.I
    I("s_cmp_ge_u32 s2, 768\ns_cbranch_scc1 L2_end")
    I("s_load_dwordx2 s[14:15], s[0:1], 40\ns_load_dwordx2 s[18:19], s[0:1], 56")
    stamp(p, 0)
    I(f"""
v_lshrrev_b32 v1, 6, v0
v_and_b32 v0, 63, v0
v_readfirstlane_b32 s3, v1
v_lshrrev_b32 v2, 3, v0
v_and_b32 v3, 7, v0
v_lshlrev_b32 v4, 9, v2
v_lshl_add_u32 v4, v3, 4, v4
v_lshlrev_b32 v5, 4, v2
v_lshl_add_u32 v5, v3, 10, v5
s_lshl_b32 s4, s2, 2
s_add_u32 s4, s4, s3
s_lshr_b32 s5, s4, 5
s_bfe_u32 s6, s4, 0x20003
s_and_b32 s7, s4, 7
s_lshl_b32 s8, s5, 15
s_lshl_b32 s9, s7, 12
s_add_u32 s9, s9, s8
s_lshl_b32 s10, s6, 7
s_add_u32 s9, s9, s10
s_lshl_b32 s10, s6, 13
s_add_u32 s8, s8, s10
s_lshl_b32 s10, s7, 7
s_add_u32 s8, s8, s10
s_waitcnt lgkmcnt(0)
s_add_u32 s20, s18, {P_WS_OFF}
s_addc_u32 s21, s19, 0
s_and_b32 s21, s21, 0xffff
s_mov_b32 s22, {P_BYTES}
s_mov_b32 s23, 0x00020000
""")
    for g in range(4):
        I(f"buffer_load_dwordx4 v[{8+4*g}:{11+4*g}], v4, s[20:23], s9 offen {OPT['rld']}")
        if g < 3: I(f"s_add_u32 s9, s9, {16*192*1024}")
    srd(p, 24, 14, 15, 16 * 192 * 1024)
    for d in range(4):
        for g in range(4):
            r = 8 + 4 * g + d
            I(f"v_lshlrev_b32 v{24+2*g}, 16, v{r}\nv_and_b32 v{25+2*g}, 0xffff0000, v{r}")
        I(f"v_pk_add_f32 v[24:25], v[24:25], v[26:27]\nv_pk_add_f32 v[28:29], v[28:29], v[30:31]\nv_pk_add_f32 v[24:25], v[24:25], v[28:29]")
        I(f"v_cvt_pk_bf16_f32 v{32+d}, v24, v25")
    I("buffer_store_dwordx4 v[32:35], v5, s[24:27], s8 offen")
    if OPT['stamp']:
        I("s_waitcnt vmcnt(0)")
        stamp(p, 1)
        I("s_cmp_ge_u32 s2, 256\ns_cbranch_scc1 L2_end\ns_mul_i32 s2, s2, 1")
        stamp_out(p, 2, 0x20000)
    I("L2_end:\ns_endpgm")
    return p

def kd(name, vg, acc, sg=102):
    return f""".p2align 6
.amdhsa_kernel {name}
  .amdhsa_next_free_vgpr {vg}
  .amdhsa_next_free_sgpr {sg}
  .amdhsa_accum_offset {acc}
  .amdhsa_group_segment_fixed_size 0
  .amdhsa_kernarg_size 64
  .amdhsa_user_sgpr_count 2
  .amdhsa_user_sgpr_kernarg_segment_ptr 1
  .amdhsa_system_sgpr_workgroup_id_x 1
  .amdhsa_float_denorm_mode_32 3
.end_amdhsa_kernel
"""

def main():
    k1 = gen_k1(); k1.resolve(); t1, s1 = k1.emit()
    ks = gen_slow(); ks.resolve(); ts, _ = ks.emit(); t1 += ts
    sys.stderr.write(f"k1 {s1}\n")
    hdr = open('cdna_kernels/' + NAME + '.s.ref').read().split('\n')
    top = [l for l in hdr if l.startswith(';') and '@launch' not in l]
    out = '\n'.join(top) + f"""
; @launch grid=(256,1,1) block=(256,1,1) lds=163840
.amdgcn_target "amdgcn-amd-amdhsa--gfx950"
.text
.globl {NAME}_kernel
.p2align 8
.type {NAME}_kernel,@function
{NAME}_kernel:
{t1}
.section .rodata,"a"
{kd(NAME + '_kernel', 512, 256)}"""
    open(sys.argv[1], 'w').write(out)
main()
```

```python
import sys, math, struct
from asmlib import *
NAME = "standalone__mha_block_cached__near_ridge"
OPT = dict(stamp=0, rt='1:4:8', rtw=0, rt0=1, outf='', kfl='nt', vfl='nt', ldt=3, lat=6, lst=2, tlb=0, dfirst=26, kmar=24, la=0, ws2=2, npk=1, pa=40, pl=72, pl2=168, pbs=5, nbud=32, w6=59, w6s=2, wmar=20, oxt=3, st2=0, kvsz=1, xw=1, rh=2, rb=1, rmask=7, pre1=8, bud=24, tbud=28, dcost=12,
           ost='sc1', oxl='sc1', pst='sc1', rld='', pub=13, pol=3, pe=12, oxs=1, oxn=2, wls=6, ctouch=1,
           dlast=640, thr=2.0**40, xreg=1)
for a in sys.argv[2:]:
    k, v = a.split('=')
    try: OPT[k] = int(v, 0)
    except ValueError:
        try: OPT[k] = float(v)
        except ValueError: OPT[k] = v.replace('+', ' ')

def f2u(x): return struct.unpack('<I', struct.pack('<f', x))[0]
SCALE = math.log2(math.e) / math.sqrt(128.0)

XBLK = 1056; XSZ = 24 * XBLK
WQSZ = 32768
BUFSZ = XSZ + WQSZ
BUFA = 163840 - 2 * BUFSZ
KRG = 4128
KSZ = 4 * KRG; VSZ = 16384
KS = [0, 32896, 65792, 98688, 131584]
VS = [16512, 49408, 82304, 115200]
SPARE = 148096
WIN = 65792
O_WS_OFF = 0x1000000; O_BYTES = 16 * 192 * 4096 * 2
FLAG_OFF = 0x800000
P_WS_OFF = 0x4000000; P_BYTES = 4 * 16 * 192 * 512 * 2

def srd(p, d, lo, hi, size):
    p.I(f"s_mov_b32 s{d}, s{lo}\ns_and_b32 s{d+1}, s{hi}, 0xffff\ns_mov_b32 s{d+2}, {size}\ns_mov_b32 s{d+3}, 0x00020000")
def stamp_ops(idx):
    if not OPT['stamp'] or (OPT['stamp'] == 3 and idx > 1): return []
    return ["s_memrealtime s[78:79]", "s_memtime s[76:77]", "s_waitcnt lgkmcnt(0)", f"s_mov_b32 s{80+idx}, s78", f"s_mov_b32 s{90+idx}, s76"]
def stamp(p, idx):
    for x in stamp_ops(idx): p.I(x)
def stamp_out(p, nst, base_off):
    if not OPT['stamp']: return
    p.I(f"""
s_mov_b32 s72, s18
s_and_b32 s73, s19, 0xffff
s_mov_b32 s74, 0x1000000
s_mov_b32 s75, 0x00020000
s_lshl_b32 s76, s2, 2
s_add_u32 s76, s76, s3
s_lshl_b32 s76, s76, 7
s_add_u32 s76, s76, {base_off}
v_mov_b32 v1, 0
""")
    for i in range(nst):
        p.I(f"v_mov_b32 v2, s{80+i}\nbuffer_store_dword v2, v1, s[72:75], s76 offen offset:{4*i}")
        p.I(f"v_mov_b32 v2, s{90+i}\nbuffer_store_dword v2, v1, s[72:75], s76 offen offset:{64+4*i}")

def txt(x): return x.text if isinstance(x, Ins) else x
def cost(x):
    mn = txt(x).split()[0]
    if mn.startswith('v_exp') or mn.startswith('v_rcp'): return 8
    if mn.startswith('ds_write'): return 8
    if mn.startswith('buffer_') or mn.startswith('global_'): return OPT['dcost']
    if mn.startswith('v_pk_'): return 8
    return 4
class Slots(dict):
    def put(self, g, x): self.setdefault(g, []).extend(x if isinstance(x, list) else [x])
def em(p, x):
    if isinstance(x, Ins): p.add(x)
    else: p.I(x)
def schedule(p, mfmas, fixed, streams=(), budget=None):
    streams = [list(s) for s in streams]
    for x in fixed.get(-1, []): em(p, x)
    for g, m in enumerate(mfmas):
        p.I(m)
        used = 0
        for f in fixed.get(g, []):
            em(p, f); used += cost(f)
        b = budget(g) if budget else OPT['bud']
        while True:
            c = [s for s in streams if s and s[0][1] <= g]
            if not c: break
            fs = [s for s in c if any(x[2] <= g for x in s[:200])]
            s = fs[0] if fs else min(c, key=lambda s: min(x[2] for x in s[:8]))
            if fs or used + cost(s[0][0]) <= b:
                op = s.pop(0)[0]; em(p, op); used += cost(op)
            else: break
    for s in streams:
        for op, _, _ in s: em(p, op)
    for g in fixed:
        assert g < len(mfmas), f"fixed slot {g} beyond region {len(mfmas)}: {fixed[g]}"

vK, vV0, vV1 = 240, 241, 242
vOK = [243, 244]; vOV = [245, 246]
vL = [247, 248, 249]
vX, vW0, vW1, vOX, vOW = 250, 251, 252, 253, 254
vSY = 255
S = [64, 112]; NEGM = [224, 160, 176]; QB = [192, 0, 32]
FR = 224
def fr(n): return FR + (n % 8) * 4
def qfrag(t, ksd): b = QB[t] + 4 * ksd; return f"v[{b}:{b+3}]"
def acc(t, dt): return (t * 4 + dt) * 16

def kv_addr_setup(lane, t0):
    a, b, c, d, e = [f"v{t0+i}" for i in range(5)]
    return f"""v_lshrrev_b32 {a}, 3, {lane}
v_and_b32 {b}, 7, {lane}
v_bfe_u32 {c}, {lane}, 4, 1
v_xor_b32 {d}, {b}, {c}
v_lshlrev_b32 {d}, 4, {d}
v_lshlrev_b32 {e}, 2, {c}
v_xor_b32 {e}, {b}, {e}
v_lshlrev_b32 {e}, 4, {e}
v_lshl_add_u32 {d}, {a}, 8, {d}
v_lshl_add_u32 {e}, {a}, 8, {e}
s_lshl_b32 s66, s3, 11
s_add_u32 s67, s66, 128
s_add_u32 s66, s66, 1024
v_add_u32 v{vOK[0]}, s66, {d}
v_add_u32 v{vOK[1]}, s67, {d}
v_add_u32 v{vOV[0]}, s66, {e}
v_add_u32 v{vOV[1]}, s67, {e}
s_lshr_b32 s66, s3, 1
s_lshl_b32 s66, s66, 11
v_bfe_u32 {a}, {lane}, 3, 2
v_mul_u32_u24 {a}, {KRG}, {a}
v_lshl_add_u32 {a}, {b}, 7, {a}
v_lshrrev_b32 {c}, 5, {lane}
v_bfe_u32 {d}, {lane}, 1, 1
v_xor_b32 {d}, {c}, {d}
v_lshl_add_u32 {a}, {d}, 4, {a}
v_add_u32 v{vK}, s66, {a}
v_bfe_u32 {a}, {lane}, 2, 2
v_lshlrev_b32 {a}, 7, {a}
v_lshl_add_u32 {a}, {c}, 9, {a}
v_bfe_u32 {d}, {lane}, 3, 1
v_lshl_add_u32 {a}, {d}, 6, {a}
v_bfe_u32 {d}, {lane}, 4, 1
v_lshl_add_u32 {a}, {d}, 5, {a}
v_and_b32 {d}, 3, {lane}
v_lshl_add_u32 {a}, {d}, 3, {a}
v_add_u32 v{vV0}, s66, {a}
v_xor_b32 v{vV1}, 64, v{vV0}
s_mul_i32 s61, s3, {KRG}
s_lshl_b32 s62, s3, 12""".split('\n')

def kv_tile(kind, n, dst, soff=None, tag=True):
    pre = [f"s_add_u32 m0, s{61 if kind == 'K' else 62}, {dst}"]
    if soff is None:
        pre.append(f"s_mov_b32 s59, {n*8192}"); soff = "s59"
    dm = []
    for hd in range(2):
        for half in range(2):
            sr = (28 if kind == 'K' else 36) + 4 * hd
            v = (vOK if kind == 'K' else vOV)[half]
            dm.append(Ins(f"buffer_load_dwordx4 v{v}, s[{sr}:{sr+3}], {soff} offen offset:{hd*2048+half*1024} {OPT['kfl'] if kind == 'K' else OPT['vfl']} lds", lw=[f"{kind}{n}"] if tag else []))
    return pre, dm
def k_read(ks, off): b = fr(ks); return f"ds_read_b128 a[{b}:{b+3}], v{vK} offset:{off + (ks>>2)*1024 + (ks&3)*32}"
def v_read(j, sec, off):
    ks, dt = j >> 2, j & 3
    b = fr(8 + j) + 2 * sec
    return f"ds_read_b64_tr_b16 a[{b}:{b+1}], v{vV1 if dt & 1 else vV0} offset:{off + (2*ks + sec)*4096 + (dt>>1)*1024}"
def s_mfma(buf, t, ks, czero=False):
    d = f"v[{buf+t*16}:{buf+t*16+15}]"
    c = d if ks else ("0" if czero else f"v[{NEGM[t]}:{NEGM[t]+15}]")
    return f"v_mfma_f32_32x32x16_bf16 {d}, a[{fr(ks)}:{fr(ks)+3}], {qfrag(t, ks)}, {c}"
def pv_mfma(buf, j, t, czero=False):
    ks, dt = j >> 2, j & 3
    o = (dt * 3 + t) * 16
    b = buf + t * 16 + 8 * ks
    c = "0" if (czero and ks == 0) else f"a[{o}:{o+15}]"
    return f"v_mfma_f32_32x32x16_bf16 a[{o}:{o+15}], a[{fr(8+j)}:{fr(8+j)+3}], v[{b}:{b+3}], {c}"
def ereg(buf, e):
    h, t, j = e // 24, (e % 24) // 8, e % 8
    return buf + t * 16 + 8 * h + j, t
def sm_ops(buf, e):
    out = []
    if e < 48:
        r, t = ereg(buf, e); out.append(f"v_exp_f32 v{r}, v{r}")
    if 1 <= e <= 48:
        r, t = ereg(buf, e - 1); out.append(f"v_add_f32 v{vL[t]}, v{vL[t]}, v{r}")
    if e >= 2 and e % 2 == 0 and e <= 48:
        r, t = ereg(buf, e - 2); base = r - ((e - 2) % 8)
        out.append(f"v_cvt_pk_bf16_f32 v{base + ((e-2) % 8)//2}, v{r}, v{r+1}")
    return out

rOW = [250, 251]; rLn = 252
rA = [240, 241]
RC = [224, 226, 228]
WSL = [KS[1], KS[2], KS[3], VS[0], KS[4], VS[1], KS[0], VS[2], VS[3]]
NSL = len(WSL)
def step_of(sig): return (0, sig) if sig < 4 else (1 + (sig - 4) % 3, (sig - 4) // 3)
def wo_setup():
    a, b, c = "v253", "v254", f"v{rOW[1]}"
    out = f"""v_mbcnt_lo_u32_b32 v{rLn}, -1, 0
v_mbcnt_hi_u32_b32 v{rLn}, -1, v{rLn}
s_and_b32 s71, s49, 3
s_andn2_b32 s70, s49, 3
s_lshl_b32 s67, s71, 8
s_lshl_b32 s68, s3, 13
s_add_u32 s69, s68, {0x20000 - 2048}
v_lshrrev_b32 {a}, 3, v{rLn}
v_and_b32 {b}, 7, v{rLn}
v_bfe_u32 {c}, v{rLn}, 4, 1
v_lshlrev_b32 {c}, 2, {c}
v_xor_b32 {b}, {b}, {c}
v_lshlrev_b32 {b}, 4, {b}
v_lshl_add_u32 {b}, {a}, 10, {b}
v_add_u32 v{rOW[0]}, s68, {b}
v_add_u32 v{rOW[1]}, s69, {b}""".split('\n')
    for rho in range(4):
        out += [f"s_add_u32 s69, s71, {rho}", "s_and_b32 s69, s69, 3", "s_add_u32 s69, s69, s70", f"s_lshl_b32 s{WOB[rho]}, s69, 18", f"s_add_u32 s{WOB[rho]}, s{WOB[rho]}, s67"]
    return out
WOB = [50, 56, 57, 58]
def wo_tile(sig):
    rho, dq = step_of(sig)
    dst = WSL[sig % NSL]
    out = []
    for hd in range(2):
        for pos in range(2):
            half = pos ^ hd
            d = dq * 32768 + half * 128 - pos * 1024 + 1024
            pre = [f"s_add_u32 s59, s{WOB[rho]}, {d}"]
            if hd == 0 and pos == 0: pre = [f"s_add_u32 m0, s62, {dst}"] + pre
            out.append((pre, Ins(f"buffer_load_dwordx4 v{rOW[hd]}, s[8:11], s59 offen offset:{hd*2048+pos*1024} lds", lw=[f"W{sig}"])))
    return out
def fin_ops():
    T = [232, 233, 234]
    fin = []
    for t in range(3): fin.append(f"v_mov_b32 v{T[t]}, v{vL[t]}")
    for t in range(3): fin.append(f"v_permlane32_swap_b32 v{T[t]}, v{vL[t]}")
    for t in range(3): fin.append(f"v_add_f32 v{vL[t]}, v{vL[t]}, v{T[t]}")
    for t in range(3): fin.append(f"v_rcp_f32 v{RC[t]}, v{vL[t]}")
    for t in range(3): fin.append(f"v_mov_b32 v{RC[t]+1}, v{RC[t]}")
    return fin
NWPRE = OPT.get('nwpre', 6)

OXS = [63, 64, 65, 70]
rL16 = 252
RAW = [[253, 240], [243, 244], [245, 246]]
vPA, vPD, vFD = 254, 241, 242
NBR = 5
RD = 4
def bfr(sig, ks, t): return ((sig + 3) % NBR) * 24 + (ks * 3 + t) * 4
GR = [(0, ks, n) for ks in range(2) for n in range(3)] + [(0, 0, 3), (0, 1, 3)]
for _sig in range(1, 13): GR += [(_sig, ks, n) for ks in range(2) for n in range(4)]
GR += [(_sig, ks, n) for n in (2, 3, 0, 1) for _sig in (13, 14, 15) for ks in range(2)]
def a_rd(k, sec):
    sig, ks, n = GR[k]
    b = fr(k) + 2 * sec
    a = WSL[sig % NSL]; w = a // WIN
    return f"ds_read_b64_tr_b16 a[{b}:{b+1}], v{RAW[w][n & 1]} offset:{a - w*WIN + (2*ks + sec)*4096 + (n>>1)*1024}"
def op_setup():
    out = f"""s_lshl_b32 s68, s48, 1
s_and_b32 s69, s3, 1
s_add_u32 s68, s68, s69
s_lshl_b32 s68, s68, 5
s_lshr_b32 s69, s3, 1
s_add_u32 s68, s68, s69
s_lshl_b32 s69, s70, 1
s_add_u32 s68, s68, s69
s_lshl_b32 s15, 15, s70
s_lshl_b32 s16, 0x1111, s71""".split('\n')
    for rho in range(4):
        out += [f"s_add_u32 s69, s71, {rho}", "s_and_b32 s69, s69, 3", "s_lshl_b32 s69, s69, 1", "s_add_u32 s69, s69, s68", f"s_mul_i32 s{OXS[rho]}, s69, 24576"]
    out += f"""v_bfe_u32 v253, v{rLn}, 2, 2
v_lshlrev_b32 v253, 7, v253
v_lshrrev_b32 v254, 5, v{rLn}
v_lshl_add_u32 v253, v254, 9, v253
v_bfe_u32 v254, v{rLn}, 3, 1
v_lshl_add_u32 v253, v254, 6, v253
v_bfe_u32 v254, v{rLn}, 4, 1
v_lshl_add_u32 v253, v254, 5, v253
v_and_b32 v254, 1, v{rLn}
v_lshl_add_u32 v253, v254, 4, v253
v_bfe_u32 v254, v{rLn}, 1, 1
v_lshl_add_u32 v253, v254, 3, v253
s_lshr_b32 s69, s3, 1
s_lshl_b32 s69, s69, 11
v_add_u32 v253, s69, v253
s_lshl_b32 s69, s49, 2
s_add_u32 s52, s53, s69
v_lshrrev_b32 v254, 4, v{rLn}
v_add_u32 v254, s3, v254
v_min_u32 v254, 1, v254
v_lshlrev_b32 v254, 31, v254
v_lshl_add_u32 v254, v{rLn}, 2, v254
v_lshlrev_b32 v{rL16}, 4, v{rLn}""".split('\n')
    return out
def win_regs():
    return ["v_xor_b32 v240, 64, v253", f"v_add_u32 v243, {WIN}, v253", f"v_add_u32 v244, {WIN}, v240", f"v_add_u32 v245, {2*WIN}, v253", f"v_add_u32 v246, {2*WIN}, v240"]
def norm_unit(dt, pk, tbs=(216, 230)):
    out = []
    for t in range(3):
        for k2 in range(2):
            o = (dt * 3 + t) * 16 + 8 * k2
            tb = tbs[k2]
            out += [f"v_accvgpr_read_b32 v{tb+r}, a{o+r}" for r in range(8)]
            if pk: out += [f"v_pk_mul_f32 v[{tb+2*pr}:{tb+2*pr+1}], v[{tb+2*pr}:{tb+2*pr+1}], v[{RC[t]}:{RC[t]+1}]" for pr in range(4)]
            else: out += [f"v_mul_f32 v{tb+r}, v{RC[t]}, v{tb+r}" for r in range(8)]
            b = bfr(dt, k2, t)
            out += [f"v_cvt_pk_bf16_f32 v{b+pr}, v{tb+2*pr}, v{tb+2*pr+1}" for pr in range(4)]
            out.append(f"s_add_u32 s67, s63, {(2*dt+k2)*3072}")
            out.append(Ins(f"buffer_store_dwordx4 v[{b}:{b+3}], v{rL16}, s[44:47], s67 offen offset:{t*1024} {OPT['ost']}", lw=["OA" if dt < 2 else "OB"]))
    return out

def gen_k1():
    p = Prog(); I = p.I
    vM = [vX, vW0, vW1]; vT = [vOX, vOW, vOX]
    I("s_cmp_ge_u32 s2, 256\ns_cbranch_scc1 L1_end")
    stamp(p, 0)
    if OPT.get('fix'): I("s_memrealtime s[96:97]")
    I("s_load_dwordx16 s[4:19], s[0:1], 0")
    I(f"""
v_lshrrev_b32 v1, 6, v0
v_min_u32 v{vSY}, 1, v0
v_lshlrev_b32 v{vSY}, 31, v{vSY}
v_lshrrev_b32 v230, 4, v0
v_min_u32 v230, 1, v230
v_lshlrev_b32 v230, 31, v230
v_lshl_add_u32 v230, v0, 2, v230
v_and_b32 v0, 63, v0
v_readfirstlane_b32 s3, v1
s_and_b32 s66, s2, 7
s_lshr_b32 s67, s2, 3
s_and_b32 s48, s66, 1
s_lshl_b32 s48, s48, 3
s_lshr_b32 s68, s67, 2
s_add_u32 s48, s48, s68
s_lshr_b32 s49, s66, 1
s_lshl_b32 s49, s49, 2
s_and_b32 s69, s67, 3
s_add_u32 s49, s49, s69
s_lshl_b32 s65, s66, 3
s_add_u32 s65, s65, s68
s_mul_i32 s52, s69, {OPT['rh']}
s_mul_i32 s68, s68, {OPT['rb']}
s_add_u32 s52, s52, s68
s_and_b32 s52, s52, {OPT['rmask']}
v_lshrrev_b32 v2, 3, v0
v_and_b32 v3, 7, v0
v_bfe_u32 v4, v0, 4, 1
v_xor_b32 v5, v3, v4
v_lshlrev_b32 v5, 4, v5
v_lshlrev_b32 v6, 2, v4
v_xor_b32 v6, v3, v6
v_lshlrev_b32 v6, 4, v6
v_lshl_add_u32 v{vOX}, v2, 10, v5
v_lshl_add_u32 v{vOW}, v2, 13, v6
s_mul_i32 s50, s48, {192*1024}
s_mul_i32 s66, s3, {48*1024}
s_add_u32 s50, s50, s66
s_lshl_b32 s51, s49, 9
s_lshl_b32 s66, s3, 7
s_add_u32 s51, s51, s66
s_mul_i32 s57, s3, {6*XBLK}
s_lshl_b32 s58, s3, 10
s_waitcnt lgkmcnt(0)
""")
    srd(p, 20, 4, 5, 16 * 192 * 1024 * OPT['xw'])
    srd(p, 24, 10, 11, 512 * 8192 * OPT['xw'])
    def stage_dma(st):
        buf = BUFA + (st & 1) * BUFSZ
        pre0 = ["s_lshl_b32 s54, s52, 7", "s_add_u32 s54, s54, s50", "s_lshl_b32 s55, s52, 19", "s_add_u32 s55, s55, s51",
                "s_add_u32 s52, s52, 1", "s_and_b32 s52, s52, 7"]
        out = []
        for j in range(6):
            out.append(([f"s_add_u32 m0, s57, {buf + j*XBLK}", f"s_add_u32 s56, s54, {j*8192}"],
                        Ins(f"buffer_load_dwordx4 v{vOX}, s[20:23], s56 offen lds", lw=[f"Q{st}"])))
        for rg in range(8):
            out.append(([f"s_add_u32 m0, s58, {buf + XSZ + rg*4096}", f"s_add_u32 s56, s55, {rg*65536}"],
                        Ins(f"buffer_load_dwordx4 v{vOW}, s[24:27], s56 offen lds", lw=[f"Q{st}"])))
        out[0] = (pre0 + out[0][0], out[0][1])
        return out
    def emit_vm(lst):
        for pre, x in lst:
            for y in pre: I(y)
            em(p, x)
    def touch(st_ahead):
        if not OPT['la']: return []
        return [([f"s_add_u32 s66, s52, {st_ahead}", "s_and_b32 s66, s66, 7", "s_lshl_b32 s67, s66, 7", "s_lshl_b32 s66, s66, 19"],
                 f"buffer_load_dword a{TCH[0] % 8 + 98}, v228, s[20:23], s67 offen"),
                ([], f"buffer_load_dword a{(TCH[0] + 1) % 8 + 98}, v229, s[24:27], s66 offen")] + [TCH.__setitem__(0, TCH[0] + 2)][:0]
    TCH = [0]
    if OPT['la']:
        I(f"""
v_min_u32 v228, 11, v0
v_lshlrev_b32 v228, 10, v228
s_mul_i32 s66, s48, {192*1024}
s_and_b32 s67, s49, 3
s_mul_i32 s67, s67, {48*1024}
s_add_u32 s66, s66, s67
s_mul_i32 s67, s3, {12*1024}
s_add_u32 s66, s66, s67
v_add_u32 v228, s66, v228
v_bfe_u32 v229, v0, 2, 1
v_lshlrev_b32 v229, 13, v229
v_and_b32 v7, 3, v0
v_lshl_add_u32 v229, v7, 7, v229
s_and_b32 s66, s48, 7
s_lshl_b32 s66, s66, 2
s_add_u32 s66, s66, s3
s_lshl_b32 s66, s66, 14
s_lshl_b32 s67, s49, 9
s_add_u32 s66, s66, s67
v_add_u32 v229, s66, v229
""")
        for a_ in range(1, OPT['la'] + 1): emit_vm(touch(a_))
    emit_vm(stage_dma(0))
    if OPT['ctouch']:
        I(f"""
s_getpc_b64 s[68:69]
L1_pc:
s_lshr_b32 s66, s2, 3
s_lshl_b32 s66, s66, 2
s_add_u32 s66, s66, s3
s_lshl_b32 s66, s66, 9
s_min_u32 s66, s66, L1_code_end-L1_pc-512
s_add_u32 s100, s68, s66
s_addc_u32 s101, s69, 0
v_lshlrev_b32 v7, 3, v0
global_load_dword a255, v7, s[100:101]
""")
    for x in kv_addr_setup("v0", 2): I(x)
    ksz = (131072 + 3072) * OPT['kvsz']
    I(f"""
s_lshl_b32 s66, s48, 5
s_lshl_b32 s67, s49, 1
s_add_u32 s66, s66, s67
s_lshl_b32 s66, s66, 17
s_add_u32 s28, s6, s66
s_addc_u32 s29, s7, 0
s_sub_u32 s28, s28, 1024
s_subb_u32 s29, s29, 0
s_and_b32 s29, s29, 0xffff
s_add_u32 s32, s28, {0x20000 - 2048}
s_addc_u32 s33, s29, 0
s_add_u32 s36, s8, s66
s_addc_u32 s37, s9, 0
s_sub_u32 s36, s36, 1024
s_subb_u32 s37, s37, 0
s_and_b32 s37, s37, 0xffff
s_add_u32 s40, s36, {0x20000 - 2048}
s_addc_u32 s41, s37, 0
s_mov_b32 s30, {(131072 + 1024) * OPT['kvsz']}
s_mov_b32 s34, {ksz}
s_mov_b32 s38, {(131072 + 1024) * OPT['kvsz']}
s_mov_b32 s42, {ksz}
s_mov_b32 s31, 0x00020000
s_mov_b32 s35, 0x00020000
s_mov_b32 s39, 0x00020000
s_mov_b32 s43, 0x00020000
s_add_u32 s44, s18, {O_WS_OFF}
s_addc_u32 s45, s19, 0
s_and_b32 s45, s45, 0xffff
s_mov_b32 s46, {P_WS_OFF - O_WS_OFF + P_BYTES}
s_mov_b32 s47, 0x00020000
s_mov_b32 s72, s16
s_and_b32 s73, s17, 0xffff
s_mov_b32 s74, 256
s_mov_b32 s75, 0x00020000
s_mov_b32 s64, {f2u(SCALE):#x}
s_add_u32 s4, s18, {FLAG_OFF}
s_addc_u32 s5, s19, 0
s_and_b32 s5, s5, 0xffff
s_mov_b32 s6, 8192
s_mov_b32 s7, 0x00020000
s_lshl_b32 s53, s48, 7
s_lshl_b32 s65, s48, 2
s_add_u32 s65, s65, 64
s_sub_u32 s8, s12, 1024
s_subb_u32 s9, s13, 0
s_and_b32 s9, s9, 0xffff
s_mov_b32 s10, {4096*1024+1024}
s_mov_b32 s11, 0x00020000
s_lshr_b32 s63, s49, 2
s_lshl_b32 s63, s63, 5
s_lshr_b32 s66, s2, 3
s_add_u32 s63, s63, s66
s_lshl_b32 s63, s63, 2
s_add_u32 s63, s63, s3
s_lshl_b32 s63, s63, 13
s_lshr_b32 s66, s3, 1
s_and_b32 s67, s3, 1
v_bfe_u32 v3, v0, 3, 2
v_mul_u32_u24 v3, {XBLK}, v3
v_and_b32 v4, 7, v0
v_lshl_add_u32 v3, v4, 7, v3
v_lshrrev_b32 v4, 5, v0
v_bfe_u32 v5, v0, 1, 1
v_xor_b32 v5, v4, v5
v_lshl_add_u32 v3, v5, 4, v3
s_mul_i32 s68, s67, {12*XBLK}
s_add_u32 s68, s68, {BUFA}
v_add_u32 v{vX}, s68, v3
v_bfe_u32 v2, v0, 2, 2
v_lshlrev_b32 v2, 7, v2
v_bfe_u32 v3, v0, 3, 1
v_lshl_add_u32 v2, v3, 6, v2
v_bfe_u32 v3, v0, 4, 1
v_lshl_add_u32 v2, v3, 5, v2
v_and_b32 v3, 1, v0
v_lshl_add_u32 v2, v3, 4, v2
v_bfe_u32 v3, v0, 1, 1
v_lshl_add_u32 v2, v3, 3, v2
v_lshl_add_u32 v2, v4, 12, v2
s_lshl_b32 s68, s66, 11
s_add_u32 s68, s68, {BUFA + XSZ}
v_add_u32 v{vW0}, s68, v2
v_xor_b32 v{vW1}, 64, v{vW0}
""")
    for r in vL: I(f"v_mov_b32 v{r}, 0")
    if OPT['tlb']:
        I(f"""
s_mul_i32 s66, s48, {2*786432}
s_lshr_b32 s67, s49, 2
s_mul_i32 s68, s67, {8*24576}
s_add_u32 s66, s66, s68
s_lshl_b32 s67, s67, 4
s_add_u32 s67, s67, s48
s_mul_i32 s67, s67, {6*32768}
s_add_u32 s67, s67, {P_WS_OFF - O_WS_OFF}
s_add_u32 s68, s66, 786432
s_add_u32 s69, s67, {6*32768 - 4}
buffer_load_dword a186, v{vSY}, s[28:31], 0 offen offset:1024
buffer_load_dword a187, v{vSY}, s[36:39], 0 offen offset:1024
buffer_load_dword a188, v{vSY}, s[8:11], s63 offen offset:1024
buffer_load_dword a189, v{vSY}, s[44:47], s66 offen
buffer_load_dword a190, v{vSY}, s[44:47], s68 offen
buffer_load_dword a191, v{vSY}, s[44:47], s67 offen
buffer_load_dword a106, v{vSY}, s[44:47], s69 offen
buffer_load_dword a107, v{vSY}, s[4:7], s53 offen
buffer_load_dword a108, v{vSY}, s[72:75], s65 offen
""")
    st1 = stage_dma(1)
    emit_vm(st1[:OPT['pre1']])
    PFT = [('K', 1, 0), ('V', 1, 16), ('K', 2, 32), ('V', 2, 48), ('K', 3, 64), ('V', 3, 80)]
    def pf_load(kind, n, base):
        out = []
        for hd in range(2):
            for half in range(2):
                r = base + 4 * (hd * 2 + half)
                sr = (28 if kind == 'K' else 36) + 4 * hd
                v = (vOK if kind == 'K' else vOV)[half]
                out.append(([f"s_mov_b32 s60, {n*8192}"] if hd + half == 0 else [],
                            f"buffer_load_dwordx4 a[{r}:{r+3}], v{v}, s[{sr}:{sr+3}], s60 offen offset:{hd*2048+half*1024} {OPT['kfl'] if kind == 'K' else OPT['vfl']}"))
        return out
    def pf_write(kind, base, areg, off):
        return [f"ds_write_b128 v{areg}, a[{base+4*i}:{base+4*i+3}] offset:{off + i*1024}" for i in range(4)]
    def tile_vm(kind, n, dst):
        pre, dm = kv_tile(kind, n, dst)
        return [(pre if i == 0 else [], d) for i, d in enumerate(dm)]
    NA, NB = 112, 144
    def a_read(ks, dt, sec, dst): return f"ds_read_b64_tr_b16 a[{dst+2*sec}:{dst+2*sec+1}], v{vW1 if dt & 1 else vW0} offset:{ks*8192 + (dt>>1)*1024 + sec*512}"
    def b_read(ks, t, dst): return f"ds_read_b128 a[{dst}:{dst+3}], v{vX} offset:{t*4*XBLK + ks*32}"
    def qp_reads(ks):
        par = ks & 1
        A = [a_read(ks, dt, sec, NA + 16 * par + 4 * dt) for dt in range(4) for sec in range(2)]
        B = [b_read(ks, t, NB + 12 * par + 4 * t) for t in range(3)]
        return A[:2] + B + A[2:]
    def qp_mfmas(first):
        ms = []
        for ks in range(4):
            par = ks & 1
            for dt in range(4):
                for t in range(3):
                    d = f"v[{acc(t,dt)}:{acc(t,dt)+15}]"
                    a = NA + 16 * par + 4 * dt; b = NB + 12 * par + 4 * t
                    ms.append(f"v_mfma_f32_32x32x16_bf16 {d}, a[{a}:{a+3}], a[{b}:{b+3}], {'0' if first and ks == 0 else d}")
        return ms
    A7 = [112, 168, 128, 144]; B7 = [192, 208, 192]
    def put_vm(sl, gaps, lst):
        for g, (pre, x) in zip(gaps, lst):
            sl.put(g - 1, list(pre))
            sl.setdefault(g, []).insert(0, x)
        assert len(gaps) >= len(lst), (len(gaps), len(lst))
    def qp_stage(s, carry):
        sl = Slots()
        def put_reads(g0, rs):
            for i, r in enumerate(rs): sl.put(g0 + 2 * (i // 2), r)
        for ks in range(3): put_reads(ks * 12, qp_reads(ks + 1))
        put_vm(sl, list(range(1, 35, 2)), carry)
        d = BUFSZ if s % 2 == 0 else -BUFSZ
        op = (lambda r: f"v_add_u32 v{r}, {d}, v{r}") if d > 0 else (lambda r: f"v_subrev_u32 v{r}, {-d}, v{r}")
        sl.put(35, [op(vX), op(vW0), op(vW1), "s_waitcnt lgkmcnt(0)", Ins("s_barrier", lr=[f"Q{s+1}"] + (["K0", "V0"] if s == 6 else []))])
        left = []
        if s == 6:
            sl.put(1, ["s_mov_b32 s12, 1", "v_and_b32 v225, 31, v224", "v_lshlrev_b32 v225, v225, 1"])
            sl.put(3, ["v_cmp_gt_u32 vcc, 0x100, v224"])
            sl.put(5, ["v_cndmask_b32 v225, 0, v225, vcc"])
            for i_ in range(16):
                sl.put(7 + i_, [f"v_readlane_b32 s{14 + (i_ & 1)}, v225, {i_}"] + ([f"s_or_b32 s12, s12, s{14 + ((i_ - 1) & 1)}"] if i_ else []))
            sl.put(24, ["s_or_b32 s12, s12, s15"])
            sl.put(26, ["s_ff0_i32_b32 s12, s12"])
        if s < 6:
            put_reads(36, qp_reads(0))
            post = stage_dma(s + 2)
            put_vm(sl, list(range(37, 48, 2)), post[:6])
            left = post[6:]
        else:
            rs = [a_read(0, dt, sec, A7[0] + 4 * dt) for dt in range(4) for sec in range(2)]
            rs = rs[:2] + [b_read(0, 0, B7[0])] + rs[2:] + [a_read(1, dt, sec, A7[1] + 4 * dt) for dt in range(4) for sec in range(2)] + [b_read(ks, 0, B7[0] + 4 * ks) for ks in (1, 2, 3)]
            for i, r in enumerate(rs): sl.put(36 + (i * 12) // len(rs), r)
        schedule(p, qp_mfmas(s == 0), sl)
        return left
    p.add(Ins("s_barrier", lr=["Q0"]))
    stamp(p, 2)
    for r in qp_reads(0): I(r)
    PFL = []
    for t_ in PFT + ([('K', 4, 96)] if OPT['xreg'] >= 2 else []): PFL += pf_load(*t_)
    def la(s): return touch(OPT['la'] - 1) if (OPT['la'] and s + 1 + OPT['la'] < 8) else []
    carry = qp_stage(0, st1[OPT['pre1']:] + la(0) + tile_vm('K', 0, KS[0]) + tile_vm('V', 0, VS[0]))
    stamp(p, 3)
    for s in range(1, 7):
        ex = [([], f"buffer_load_dword v224, v230, s[4:7], s53 offen sc1")] if s == 4 else []
        pfl = PFL[(s - 1) * len(PFL) // 6: s * len(PFL) // 6]
        carry = qp_stage(s, carry + la(s) + pfl + ex)
    stamp(p, 4)
    ms = []
    for t in range(3):
        for ks in range(4):
            for dt in range(4):
                d = f"v[{acc(t,dt)}:{acc(t,dt)+15}]"
                a = A7[ks] + 4 * dt; b = B7[t] + 4 * ks
                ms.append(f"v_mfma_f32_32x32x16_bf16 {d}, a[{a}:{a+3}], a[{b}:{b+3}], {d}")
    ms += [s_mfma(S[0], t, ks, True) for t in range(3) for ks in range(8)]
    I0 = 72
    def IT(i, g=0): return I0 + 48 * i + g
    ms += [s_mfma(S[1], t, ks) for t in range(3) for ks in range(8)]
    ms += [pv_mfma(S[0], j, t, True) for j in range(8) for t in range(3)]
    for i in range(1, 15):
        ms += [s_mfma(S[(i + 1) & 1], t, ks) for ks in range(8) for t in range(3)]
        ms += [pv_mfma(S[i & 1], j, t) for j in range(8) for t in range(3)]
    TL = IT(15)
    ms += [pv_mfma(S[1], j, t) for j in range(8) for t in range(3)]
    sl = Slots()
    rs = [a_read(ks, dt, sec, A7[ks] + 4 * dt) for ks in (2, 3) for dt in range(4) for sec in range(2)]
    for i, r in enumerate(rs): sl.put(i // 2, r)
    for ks in range(4): sl.put(8 + ks, b_read(ks, 1, B7[1] + 4 * ks))
    for ks in range(4): sl.put(17 + ks, b_read(ks, 2, B7[2] + 4 * ks))
    sl.put(-1, [f"v_mbcnt_lo_u32_b32 v{vOX}, -1, 0", f"v_mbcnt_hi_u32_b32 v{vOX}, -1, v{vOX}", f"v_lshlrev_b32 v{vOX}, 4, v{vOX}",
                f"v_add_u32 v{vOW}, s62, v{vOX}", f"v_add_u32 v{vOX}, s61, v{vOX}"])
    w1 = pf_write('K', 0, vOX, KS[1]) + pf_write('V', 16, vOW, VS[1])
    WS2 = OPT['ws2']
    for i, x in enumerate(w1): sl.put(WS2 * i, x)
    sl.put(WS2 * 8 - 1, [f"v_add_u32 v{vOX}, {WIN}, v{vOX}", f"v_add_u32 v{vOW}, {WIN}, v{vOW}"])
    w2 = pf_write('K', 32, vOX, KS[2] - WIN) + pf_write('V', 48, vOW, VS[2] - WIN)
    for i, x in enumerate(w2): sl.put(WS2 * (8 + i), x)
    sl.put(25, ["s_waitcnt lgkmcnt(1)", "s_barrier"])
    w3 = pf_write('K', 64, vOX, KS[3] - WIN) + pf_write('V', 80, vOW, VS[3] - WIN)
    for i, x in enumerate(w3): sl.put(max(WS2 * 16, 26) + 2 * i, x)
    for ks in range(8): sl.put(33 + 2 * ks, k_read(ks, KS[0]))
    sl.put(52, ["s_waitcnt lgkmcnt(0)", "s_barrier"])
    for ks in range(8): sl.put(65 + ks, k_read(ks, KS[1]))
    kwin = 0; vwin = 0
    def win_move(regs, d): return [(f"v_add_u32 v{r}, {d}, v{r}" if d > 0 else f"v_subrev_u32 v{r}, {-d}, v{r}") for r in regs]
    for i in range(0, 16):
        va = VS[i % 4]; w = (va // WIN) * WIN
        if w != vwin:
            sl.put(IT(i, 10) if i < 15 else IT(14, 41), win_move([vV0, vV1], w - vwin)); vwin = w
        for j in range(8):
            if i == 0: g0 = max(89 + j, IT(0, 15 + 3 * j)); g1 = g0 + (0 if j < 2 else 1)
            elif i < 15: g0 = IT(i, 15 + 3 * j); g1 = g0 + 1
            else: g0 = max(IT(14, 42 + 2 * j), TL + 3 * j - 9); g1 = g0 + 1
            sl.put(g0, v_read(j, 0, va - vwin)); sl.put(g1, v_read(j, 1, va - vwin))
        if i == 15: break
        need = [f"V{i+1}"] + ([f"K{i+2}"] if i + 2 < 16 else [])
        sl.put(IT(i, 40), ["s_waitcnt lgkmcnt(0)", Ins("s_barrier", lr=need)])
        n = i + 2
        if n < 16:
            ka = KS[n % 5]; w = (ka // WIN) * WIN
            if w != kwin:
                sl.put(IT(i, 38), win_move([vK], w - kwin)); kwin = w
            for ks, g in enumerate([IT(i, 42), IT(i, 44), IT(i, 46), IT(i + 1, 1), IT(i + 1, 4), IT(i + 1, 7), IT(i + 1, 10), IT(i + 1, 13)]):
                sl.put(g, k_read(ks, ka - kwin))
    XR = OPT['xreg']
    tiles = []
    def add_tile(kind, n, ear):
        dst = KS[n % 5] if kind == 'K' else VS[n % 4]
        tiles.append((IT(n - 2, 40) if kind == 'K' else IT(n - 1, 40) - 1, ear, tile_vm(kind, n, dst)))
    if XR < 2: add_tile('K', 4, 27)
    add_tile('K', 5, 54)
    for n in range(6, 16): add_tile('K', n, IT(n - 6, 42))
    for n in range(4 + min(XR, 2), 16): add_tile('V', n, IT(n - 4, 42))
    if XR:
        tiles.append((IT(2, 40), 49, pf_load('V', 4, 192)))
        sl.put(IT(2, 14), [f"v_mbcnt_lo_u32_b32 v{vOW}, -1, 0", f"v_mbcnt_hi_u32_b32 v{vOW}, -1, v{vOW}"])
        sl.put(IT(2, 16), [f"v_lshlrev_b32 v{vOW}, 4, v{vOW}", f"v_add_u32 v{vOW}, s62, v{vOW}"])
        for i, x in enumerate(pf_write('V', 192, vOW, VS[0])): sl.put(IT(2, 18) + 2 * i, x)
    if XR >= 2:
        tiles.append((IT(2, 39), 33, pf_load('V', 5, 208)))
        for i, x in enumerate(pf_write('V', 208, vOW, VS[1])): sl.put(IT(3, 18) + 2 * i, x)
        sl.put(47, [f"v_add_u32 v{vOX}, {WIN}, v{vOX}"])
        for i, x in enumerate(pf_write('K', 96, vOX, KS[4] - 2 * WIN)): sl.put(48 + i, x)
    g_first, g_last = OPT['dfirst'], I0 + OPT['dlast']
    nops = sum(len(t[2]) for t in tiles)
    gaps = []; vm = []; g = g_first - 2.0
    while tiles:
        step = max(2.0, (g_last - g) / (nops - len(gaps)))
        av = [t for t in tiles if t[1] <= g + step]
        t = min(av, key=lambda t: t[0]) if av else min(tiles, key=lambda t: t[1])
        tiles.remove(t)
        for pre, d in t[2]:
            step = max(2.0, (g_last - g) / (nops - len(gaps)))
            g = max(g + step, t[1])
            gi = int(round(g))
            while gi in gaps or (gi - 1) in gaps or any(txt(x).startswith('s_barrier') for x in sl.get(gi, [])): gi += 1
            gaps.append(gi); g = max(g, gi); vm.append((pre, d, t[1]))
        assert gaps[-1] + OPT['kmar'] <= t[0], (txt(t[2][0][1]), gaps[-1], t[0])
    put_vm(sl, gaps, [(a, b) for a, b, _ in vm])
    if OPT.get('verbose'):
        last = {}
        for gi, (pre, d, ear) in zip(gaps, vm):
            if isinstance(d, Ins): last[d.lw[0]] = gi
        for k_, gi in last.items():
            n = int(k_[1:]); nb = IT(n - 2, 40) if k_[0] == 'K' else IT(n - 1, 40)
            sys.stderr.write(f"{k_}: last issue {gi} (iter {(gi-I0)/48:.2f}) margin {nb-gi}\n")
    used_vm = set(gaps)
    def free_gap(g):
        while g in used_vm or (g - 1) in used_vm or (g + 1) in used_vm: g += 1
        used_vm.add(g); return g
    sl.put(-1, ["v_mbcnt_lo_u32_b32 v237, -1, 0", "v_mbcnt_hi_u32_b32 v237, -1, v237", "v_lshlrev_b32 v237, 7, v237"])
    sl.put(free_gap(12), "buffer_load_dword a184, v237, s[8:11], s63 offen offset:1024")
    sl.put(free_gap(14), "buffer_load_dword a185, v237, s[8:11], s63 offen offset:1088")
    if XR < 2:
        sl.put(32, ["v_accvgpr_write_b32 a208, s12", "v_accvgpr_write_b32 a209, 0"])
        sl.put(free_gap(34), f"buffer_atomic_cmpswap a[208:209], v{vSY}, s[72:75], s65 offen sc0 sc1")
        sl.put(IT(8, 6), [f"v_accvgpr_read_b32 v{vX}, a208"])
        sl.put(IT(8, 8), [f"v_readfirstlane_b32 s13, v{vX}"])
        sl.put(IT(8, 10), ["s_cmp_eq_u32 s13, 0", "s_cselect_b32 s13, s12, s13"])
    else:
        sl.put(14, ["v_mov_b32 v238, s12", "v_mov_b32 v239, 0"])
        sl.put(free_gap(16), f"buffer_atomic_cmpswap v[238:239], v{vSY}, s[72:75], s65 offen sc1")
        sl.put(free_gap(IT(4, 20)), f"buffer_load_dword v{vX}, v{vSY}, s[72:75], s65 offen sc1")
        sl.put(IT(8, 8), [f"v_readfirstlane_b32 s13, v{vX}"])
    if OPT.get('gfix'):
        sl.put(36, ["s_not_b32 s97, s96", "v_accvgpr_write_b32 a210, s97"])
        sl.put(free_gap(40), f"buffer_atomic_umax a210, v{vSY}, s[72:75], 0 offen offset:160 sc1")
    for k_, it_ in enumerate([int(x) for x in str(OPT['rt']).split(':') if x]):
        g_ = IT(it_, 20)
        sl.put(g_ - 3, [f"v_mbcnt_lo_u32_b32 v{vOX}, -1, 0", f"v_mbcnt_hi_u32_b32 v{vOX}, -1, v{vOX}"])
        sl.put(g_ - 2, [f"v_lshlrev_b32 v{vOX}, 3, v{vOX}"])
        sl.put(free_gap(g_), f"global_load_dword a{212+k_}, v{vOX}, s[100:101]")
    if OPT['rtw']:
        g_ = IT(OPT['rtw'], 20)
        sl.put(g_ - 3, [f"v_mbcnt_lo_u32_b32 v{vOX}, -1, 0", f"v_mbcnt_hi_u32_b32 v{vOX}, -1, v{vOX}"])
        sl.put(g_ - 2, [f"v_lshlrev_b32 v{vOX}, 7, v{vOX}"])
        sl.put(free_gap(g_), f"buffer_load_dword a220, v{vOX}, s[8:11], s63 offen offset:1024")
    if OPT['rt0']:
        sl.put(1, ["v_lshrrev_b32 v236, 4, v237"])
        sl.put(free_gap(9), "global_load_dword a186, v236, s[100:101]")
    for i, x in enumerate(wo_setup()): sl.put(IT(9, 2) + i, x)
    wear = [IT(10, 42), IT(11, 42), IT(12, 42), IT(12, 42), IT(13, 42), IT(13, 42)]
    g = max(max(gaps) + 2, IT(13, 10))
    wg_, wl_ = [], []
    for sig in range(NWPRE):
        for pre, d in wo_tile(sig):
            g = free_gap(max(g, wear[sig]))
            while any(txt(x).startswith('s_barrier') for x in sl.get(g, [])): g = free_gap(g + 1)
            wg_.append(g); wl_.append((pre, d)); g += OPT.get('wps', 3)
    put_vm(sl, wg_, wl_)
    conv = []
    for t in range(3):
        for dt in range(4):
            a = acc(t, dt)
            ear = 16 * t + 12 + dt + 3
            for k2 in range(2):
                dl = 48 + 8 * t + 2 * dt + k2 - 2
                if t == 1 and dt < 3: dl = min(dl, 48 + 8 * dt - 2)
                for pr in range(4):
                    r = a + 8 * k2 + 2 * pr
                    conv.append((f"v_mul_f32 v{r}, s64, v{r}", ear, dl))
                    conv.append((f"v_mul_f32 v{r+1}, s64, v{r+1}", ear, dl))
                for pr in range(4):
                    r = a + 8 * k2 + 2 * pr
                    conv.append((f"v_cvt_pk_bf16_f32 v{QB[t] + 4*(2*dt+k2) + pr}, v{r}, v{r+1}", ear, dl))
    mx = []
    for t in range(3):
        b = S[0] + t * 16
        ear0 = 48 + 8 * t + 7 + 3
        ear = ear0 if t == 0 else max(ear0, 71)
        dl = 72 + 8 * t - 2
        ops = [f"v_max3_f32 v{vM[t]}, v{b}, v{b+1}, v{b+2}"]
        ops += [f"v_max3_f32 v{vM[t]}, v{vM[t]}, v{b+r}, v{b+r+1}" for r in range(3, 15, 2)]
        ops += [f"v_max_f32 v{vM[t]}, v{vM[t]}, v{b+15}", f"v_mov_b32 v{vT[t]}, v{vM[t]}", "s_nop 1", f"v_permlane32_swap_b32 v{vT[t]}, v{vM[t]}",
                f"v_max_f32 v{vM[t]}, v{vM[t]}, v{vT[t]}"]
        mx += [(o, ear0, dl) for o in ops]
        mx += [(f"v_sub_f32 v{NEGM[t]+r}, 0, v{vM[t]}", ear, dl) for r in range(16)]
    sm = []
    for n in range(16):
        buf = S[n & 1]
        pv0 = IT(n, 24) if n < 15 else TL
        def dl_of(e): return pv0 + (0 if e < 24 else 12) + (e % 24) // 8 - 2
        for e in range(49):
            t = (min(e, 47) % 24) // 8
            if n == 0: ear = 72 + 8 * t - 1
            elif n == 1: ear = IT(0, 8 * t + 7 + 4)
            else: ear = IT(n - 1, 21 + t + 4)
            if n == 0 and e < 48:
                r, t = ereg(buf, e)
                sm.append((f"v_sub_f32 v{r}, v{r}, v{vM[t]}", ear, dl_of(e) - 1))
            for o in sm_ops(buf, e):
                sm.append((o, ear, dl_of(e) - 1 if o.startswith('v_exp') else dl_of(e - 1)))
    fin = fin_ops()
    vote = [f"s_mov_b32 s66, {f2u(OPT['thr']):#x}",
            f"v_max3_f32 v232, v{vL[0]}, v{vL[1]}, v{vL[2]}", f"v_add_f32 v233, v{vL[0]}, v{vL[1]}", f"v_add_f32 v233, v233, v{vL[2]}",
            f"v_cmp_nge_f32 vcc, s66, v233", f"v_mov_b32 v234, {SPARE}", "s_lshl_b32 s67, s3, 2", "s_cmp_lg_u64 vcc, 0\ns_cselect_b32 s66, 1, 0",
            "v_add_u32 v235, s67, v234", "v_mov_b32 v236, s66", "ds_write_b32 v235, v236"]
    vote = [x for x in vote if 'max3' not in x]
    vote = [x.replace("s67", "s14").replace("s66", "s17") for x in vote]
    sm += [(o, TL + 10, TL + 16) for o in fin + vote]
    sl.put(TL + 18, ["s_waitcnt lgkmcnt(0)", Ins("s_barrier", lr=[f"W{i}" for i in range(4)]), "ds_read_b128 v[236:239], v234"])
    for k in range(RD): sl.put(TL + 19 + k, [a_rd(k, 0), a_rd(k, 1)])
    sm += [(o, TL + 17, TL + 99) for o in norm_unit(0, True, (64, 96))]
    low = [(o, IT(10, 0), IT(13, 0)) for o in op_setup()] + [(o, max(max(gaps) + 1, IT(14, 15)), TL + 10) for o in win_regs()]
    if OPT['stamp']:
        sl.put(IT(1, 0) - 1, stamp_ops(5)); sl.put(TL - 1, stamp_ops(6))
    for i_ in range(1, 15):
        for k_ in range(OPT.get('pad', 0)): sl.put(IT(i_, 5 + 3 * k_), 's_nop 7')
    def bud(g):
        if g < IT(1): return OPT['tbud']
        return OPT['bud'] - (4 if (g - I0) % 3 == 2 else 0)
    schedule(p, ms, sl, [conv, mx, sm, low], budget=bud)
    I("""
v_or3_b32 v236, v236, v237, v238
v_or_b32 v236, v236, v239
v_readfirstlane_b32 s66, v236
s_cmp_lg_u32 s66, 0
s_cbranch_scc1 L1_slow
L1_norm:
""")
    stamp(p, 7)
    def oacc(n, t):
        return (f"v[{120+(n*3+t)*16}:{135+(n*3+t)*16}]" if n < 2 else f"a[{((n-2)*3+t)*16}:{((n-2)*3+t)*16+15}]")
    def op_mfma(k, t):
        sig, ks, n = GR[k]
        b = bfr(sig, ks, t); d = oacc(n, t)
        return f"v_mfma_f32_32x32x16_bf16 {d}, a[{fr(k)}:{fr(k)+3}], v[{b}:{b+3}], {'0' if (sig == 0 and ks == 0) else d}"
    stamp(p, 8)
    nrm = []
    late = []
    for dt, dl in ((1, 18), (2, 48), (3, 72)):
        u = norm_unit(dt, OPT['npk'])
        if dt >= OPT['ldt']:
            for i_, x in enumerate(u):
                if isinstance(x, Ins): late.append(([u[i_ - 1]], x))
            u = [x for i_, x in enumerate(u) if not isinstance(x, Ins) and not (i_ + 1 < len(u) and isinstance(u[i_ + 1], Ins))]
        nrm += [(x, 0, dl - 2) for x in u]
    def ox_load(sig):
        rho, dq = step_of(sig)
        out = []
        for ks in range(2):
            for t in range(3):
                b = bfr(sig, ks, t)
                out.append(([f"s_add_u32 s60, s{OXS[rho]}, {(2*dq+ks)*3072}"] if t == 0 else [],
                            f"buffer_load_dwordx4 v[{b}:{b+3}], v{rL16}, s[44:47], s60 offen offset:{t*1024} {OPT['oxl']}"))
        return out
    al = Slots()
    for k in range(len(GR)):
        kn = k + RD
        if kn < len(GR):
            nxt = (kn >> 3) != (k >> 3)
            g0 = 3 * k + (2 if nxt else 0)
            al.put(g0, a_rd(kn, 0)); al.put(min(g0 + 1, (k >> 3) * 24 + 23), a_rd(kn, 1))
    def bar(g, need, extra=()):
        al.put(g, ["s_waitcnt lgkmcnt(0)", Ins("s_barrier", lr=list(need))] + list(extra))
    PA, PL, PB, PL2 = OPT['pa'], OPT['pl'], 3 * 24 + 13, OPT['pl2']
    al.put(PA, [Ins("s_barrier", lr=["OA"]), "s_or_b32 s66, s13, 0x20", "v_mov_b32 v242, s66", f"buffer_store_dword v242, v{vSY}, s[4:7], s52 offen sc1"])
    bar(12 * 24 + 13, ["W14", "W15"])
    for s_ in (3, 5, 7, 9, 11):
        ex = ["s_or_b32 s66, s13, 0x60", "v_mov_b32 v242, s66", f"buffer_store_dword v242, v{vSY}, s[4:7], s52 offen sc1"] if s_ == OPT['pbs'] else []
        bar(s_ * 24 + 13, [f"W{s_+1}", f"W{s_+2}"] + (["OB"] if s_ == OPT['pbs'] else []), ex)
    used = set([PA, OPT['pbs'] * 24 + 13])
    def place(g0, lst, stride):
        gs = []; g = g0
        for _ in lst:
            while g in used or g in (PL, PL2): g += 1
            gs.append(g); used.add(g); g += stride
        put_vm(al, gs, lst); return g
    for pl_ in (PL, PL2):
        al.put(pl_ - OPT['pe'], f"buffer_load_dword v241, v254, s[4:7], s53 offen sc1"); used.add(pl_ - OPT['pe'])
    def chk(tl, g):
        nb = min(tl - 1 if tl % 2 == 0 else tl - 2, 12) * 24 + 13
        assert g + OPT['wmar'] <= nb, f"wo tile {tl} issued at {g}, needed by barrier {nb}"
    g = OPT['w6']
    for tl in range(NWPRE, NSL):
        g = place(g, wo_tile(tl), OPT['w6s']); chk(tl, g)
    for tl in range(NSL, 16):
        st = tl - NSL
        sb = 3 if st <= 3 else (st if st % 2 else st + 1)
        g = place(max(g, sb * 24 + 16), wo_tile(tl), OPT['wls']); chk(tl, g)
    g = PL + 1
    for sig in range(4, 16):
        if sig == OPT['lat'] and late:
            g = place(g, late, OPT['lst'])
            assert g < OPT['pbs'] * 24 + 13
        g = max(g, (sig - NBR + 1) * 24 + 1)
        if sig >= 10: g = max(g, PL2 + 1)
        g = place(g, ox_load(sig), OPT['oxs'] if sig < 4 + OPT['oxn'] else OPT['oxt'])
        if OPT.get('verbose'): sys.stderr.write(f"ox {sig}: end gap {g} need {sig*24}\n")
        assert g <= min(sig * 24, 13 * 24)
    def h1(dst, w): return [f"s_mul_i32 {dst}, {w}, 12288", f"s_add_u32 {dst}, {dst}, {(16512 - 2*12288) & 0xffffffff:#x}", f"s_cmp_eq_u32 {w}, 0\ns_cselect_b32 {dst}, 114944, {dst}",
                            f"s_cmp_eq_u32 {w}, 1\ns_cselect_b32 {dst}, 148096, {dst}"]
    setup = ["s_mul_i32 s66, s3, 12288", "s_add_u32 s66, s66, 65792", f"v_add_u32 v247, s66, v{rL16}"] + h1("s66", "s3") + [f"v_add_u32 v248, s66, v{rL16}",
             "s_xor_b32 s67, s3, 2", "s_mul_i32 s66, s67, 12288", "s_add_u32 s66, s66, 65792", f"v_add_u32 v249, s66, v{rL16}"] + h1("s66", "s67") + [f"v_add_u32 v250, s66, v{rL16}",
             f"s_add_u32 s28, s18, {P_WS_OFF}\ns_addc_u32 s29, s19, 0", "s_and_b32 s29, s29, 0xffff", f"s_mov_b32 s30, {P_BYTES}",
             "s_lshr_b32 s66, s49, 2", "s_lshl_b32 s66, s66, 4", "s_add_u32 s66, s66, s48", "s_mul_i32 s66, s66, 6", "s_and_b32 s67, s3, 1", "s_mul_i32 s67, s67, 3",
             "s_add_u32 s66, s66, s67", "s_lshl_b32 s66, s66, 15", "s_lshl_b32 s67, s71, 13", "s_add_u32 s66, s66, s67", "s_lshr_b32 s67, s3, 1", "s_lshl_b32 s67, s67, 12",
             "s_add_u32 s14, s66, s67"]
    for i, x in enumerate(setup): al.put(12 * 24 - 6 + i, x)
    E0 = 13 * 24
    for i in range(12): al.put(E0 + 18 + 2 + (i * 4) // 3, f"ds_write_b128 v247, a[{4*i}:{4*i+3}] offset:{i*1024}")
    al.put(E0 + 37, ["s_waitcnt lgkmcnt(0)", "s_barrier"])
    for i in range(12): al.put(E0 + 36 + 2 + (i * 4) // 3, f"ds_write_b128 v248, a[{48+4*i}:{51+4*i}] offset:{i*1024}")
    def xr(i): return [96 + 4 * i, 4 * (i - 6), 216 + 4 * (i - 12), 24 + 4 * (i - 18)][i // 6]
    for i in range(12): al.put(E0 + 39 + i, f"ds_read_b128 v[{xr(i)}:{xr(i)+3}], v249 offset:{i*1024}")
    al.put(E0 + 55, ["s_waitcnt lgkmcnt(0)", "s_barrier"])
    for i in range(12): al.put(E0 + 56 + i, f"ds_read_b128 v[{xr(12+i)}:{xr(12+i)+3}], v250 offset:{i*1024}")
    def fin_tile(n, t, pk):
        o = 120 + (n * 3 + t) * 16
        out = []
        for q4 in range(4):
            x = xr((n * 3 + t) * 4 + q4)
            if pk: out += [f"v_pk_add_f32 v[{o+4*q4+h}:{o+4*q4+h+1}], v[{o+4*q4+h}:{o+4*q4+h+1}], v[{x+h}:{x+h+1}]" for h in (0, 2)]
            else: out += [f"v_add_f32 v{o+4*q4+h}, v{o+4*q4+h}, v{x+h}" for h in range(4)]
        out += [f"v_cvt_pk_bf16_f32 v{o+pr}, v{o+2*pr}, v{o+2*pr+1}" for pr in range(8)]
        out.append(f"s_add_u32 s67, s14, {t*32768}")
        out += [f"buffer_store_dwordx4 v[{o+4*s2}:{o+4*s2+3}], v{rL16}, s[28:31], s67 offen offset:{(n*2+s2)*1024} {OPT['pst']}" for s2 in range(2)]
        return out
    fin0 = [(x, E0 + 56 - OPT['pl2'], 9999) for t in range(3) for x in fin_tile(0, t, False)]
    if OPT['st2']:
        for idx, s_ in ((2, 8), (3, 12)): al.put(s_ * 24 - 1, stamp_ops(idx))
    allm = [op_mfma(k, t) for k in range(len(GR)) for t in range(3)]
    def seg(g0, g1, streams=(), budget=None):
        r = Slots()
        for k_, v_ in al.items():
            if g0 <= k_ < g1: r[k_ - g0] = list(v_)
        schedule(p, allm[g0:g1], r, streams, budget)
    def poll(tag, bit, mask):
        p.raw(f"""
s_mov_b32 s51, 0
s_cmp_lg_u32 s3, 0
s_cbranch_scc1 L1_go{tag}
L1_poll{tag}:
s_waitcnt vmcnt(0)
v_xor_b32 v241, s13, v241
v_and_b32 v241, {(~(0xE0 & ~bit)) & 0xffffffff:#x}, v241
v_cmp_eq_u32 vcc, {bit}, v241
s_nop 3
s_and_b32 s68, vcc_lo, {mask}
s_cmp_eq_u32 s68, {mask}
s_cbranch_scc1 L1_go{tag}
s_sleep 1
buffer_load_dword v241, v254, s[4:7], s53 offen sc1
s_add_u32 s51, s51, 1
s_cmp_lt_u32 s51, 0x40000
s_cbranch_scc1 L1_poll{tag}
L1_go{tag}:
""")
        I("s_barrier")
    assert PL >= 72
    seg(0, PL, [nrm], lambda g: OPT['nbud'])
    poll("a", 0x20, "s15")
    stamp(p, 9)
    seg(PL, PL2)
    poll("b", 0x40, "s15")
    seg(PL2, len(allm), [fin0])
    if OPT['st2']: stamp(p, 4)
    for t in range(3):
        for x in fin_tile(1, t, True): I(x)
    I(f"""
v_lshrrev_b32 v2, 7, v{rL16}
v_bfe_u32 v3, v{rL16}, 4, 3
v_lshlrev_b32 v4, 9, v2
v_lshl_add_u32 v4, v3, 4, v4
v_lshlrev_b32 v5, 4, v2
v_lshl_add_u32 v5, v3, 10, v5
s_load_dwordx2 s[20:21], s[0:1], 40
s_lshr_b32 s66, s49, 2
s_mul_i32 s66, s66, 12
s_mul_i32 s67, s3, 3
s_add_u32 s66, s66, s67
s_mul_i32 s60, s48, {6*32768}
s_lshl_b32 s67, s71, 13
s_add_u32 s61, s60, s67
s_lshl_b32 s67, s71, 8
s_add_u32 s60, s60, s67
""")
    for i in range(3):
        I(f"""
s_add_u32 s67, s66, {i}
s_lshr_b32 s68, s67, 3
s_lshl_b32 s68, s68, 15
s_bfe_u32 s69, s67, 0x20001
s_lshl_b32 s59, s69, 7
s_add_u32 s{32+i}, s61, s68
s_add_u32 s{32+i}, s{32+i}, s59
s_and_b32 s59, s67, 1
s_lshl_b32 s62, s59, 12
s_add_u32 s{32+i}, s{32+i}, s62
s_lshl_b32 s69, s69, 13
s_add_u32 s{36+i}, s60, s68
s_add_u32 s{36+i}, s{36+i}, s69
s_lshl_b32 s59, s59, 7
s_add_u32 s{36+i}, s{36+i}, s59
""")
    I(f"""
s_or_b32 s66, s13, 0xe0
v_mov_b32 v242, s66
s_waitcnt vmcnt(0) lgkmcnt(0)
s_barrier
buffer_store_dword v242, v{vSY}, s[4:7], s52 offen sc1
buffer_load_dword v241, v254, s[4:7], s53 offen sc1
s_and_b32 s21, s21, 0xffff
s_mov_b32 s22, {16*192*1024}
s_mov_b32 s23, 0x00020000
""")
    if OPT['st2']: stamp(p, 5)
    poll("c", 0x80, "s16")
    if OPT['st2']: stamp(p, 6)
    for i in range(3):
        for g_ in range(4):
            I(f"buffer_load_dwordx4 v[{8+16*i+4*g_}:{11+16*i+4*g_}], v4, s[28:31], s{32+i} offen sc1")
            if g_ < 3: I(f"s_add_u32 s{32+i}, s{32+i}, {16*192*1024}")
    for i in range(3):
        for d in range(4):
            for g_ in range(4):
                r = 8 + 16 * i + 4 * g_ + d
                I(f"v_lshlrev_b32 v{64+2*g_}, 16, v{r}\nv_and_b32 v{65+2*g_}, 0xffff0000, v{r}")
            I(f"v_pk_add_f32 v[64:65], v[64:65], v[66:67]\nv_pk_add_f32 v[68:69], v[68:69], v[70:71]\nv_pk_add_f32 v[64:65], v[64:65], v[68:69]")
            I(f"v_cvt_pk_bf16_f32 v{72+4*i+d}, v64, v65")
        I(f"buffer_store_dwordx4 v[{72+4*i}:{75+4*i}], v5, s[20:23], s{36+i} offen {OPT['outf']}")
    if OPT['stamp']:
        I("s_waitcnt vmcnt(0)")
        stamp(p, 1)
        if OPT.get('dbg'):
            I(f"s_lshl_b32 s76, s2, 2\ns_add_u32 s76, s76, s3\ns_sub_u32 s76, s76, {OPT['dbg']*4}\ns_lshl_b32 s76, s76, 12\nv_mov_b32 v1, 0")
            for i in range(1, 10):
                I(f"s_sub_u32 s77, s{80+i}, s80\nv_mov_b32 v2, s77\nbuffer_store_dword v2, v1, s[72:75], s76 offen offset:{4*i}")
        stamp_out(p, 10, 0)
    if OPT.get('fix'):
        p.raw(f"""
s_waitcnt vmcnt(0)
{"buffer_load_dword v2, off, s[72:75], 0 offset:160 sc1" if OPT.get('gfix') else ""}
{"s_waitcnt vmcnt(0)" if OPT.get('gfix') else ""}
{"v_readfirstlane_b32 s96, v2" if OPT.get('gfix') else ""}
{"s_nop 3" if OPT.get('gfix') else ""}
{"s_not_b32 s96, s96" if OPT.get('gfix') else ""}
L1_fix:
s_memrealtime s[98:99]
s_waitcnt lgkmcnt(0)
s_sub_u32 s98, s98, s96
s_cmp_lt_u32 s98, {OPT['fix']*100}
s_cbranch_scc1 L1_fix
""")
    I("L1_end:\ns_endpgm\nL1_code_end:")
    return p

def gen_slow():
    p = Prog(); I = p.I
    M = [232, 233, 234]; T = [235, 236, 237]
    M = [S[1], S[1] + 1, S[1] + 2]; T = [S[1] + 3, S[1] + 4, S[1] + 5]
    I("L1_slow:\ns_nop 15\ns_waitcnt vmcnt(0) lgkmcnt(0)\ns_barrier")
    I(f"v_mbcnt_lo_u32_b32 v{S[1]+8}, -1, 0\nv_mbcnt_hi_u32_b32 v{S[1]+8}, -1, v{S[1]+8}")
    for x in kv_addr_setup(f"v{S[1]+8}", S[1] + 9): I(x)
    for t in range(3): I(f"v_mov_b32 v{M[t]}, 0xff800000")
    def load(kinds):
        for kind in kinds:
            pre, dm = kv_tile(kind, 0, KS[0] if kind == 'K' else VS[0], soff="s60", tag=False)
            for x in pre: I(x)
            for d in dm: p.add(d)
        I("s_waitcnt vmcnt(0)\ns_barrier")
    I("s_mov_b32 s60, 0\nL1_s1:")
    p.loop_begin(2)
    load("K")
    for ks in range(8): I(k_read(ks, KS[0]))
    for ks in range(8):
        for t in range(3): I(s_mfma(S[0], t, ks, True))
    for t in range(3):
        b = S[0] + 16 * t
        for r in range(0, 16, 2): I(f"v_max3_f32 v{M[t]}, v{M[t]}, v{b+r}, v{b+r+1}")
    I("s_barrier\ns_add_u32 s60, s60, 8192\ns_cmp_lt_u32 s60, 131072\ns_cbranch_scc1 L1_s1")
    p.loop_end()
    for t in range(3): I(f"v_mov_b32 v{T[t]}, v{M[t]}")
    for t in range(3): I(f"v_permlane32_swap_b32 v{T[t]}, v{M[t]}")
    for t in range(3): I(f"v_max_f32 v{M[t]}, v{M[t]}, v{T[t]}")
    for t in range(3):
        for r in range(16): I(f"v_sub_f32 v{NEGM[t]+r}, 0, v{M[t]}")
        I(f"v_mov_b32 v{vL[t]}, 0")
    for r in range(192): I(f"v_accvgpr_write_b32 a{r}, 0")
    I("s_mov_b32 s60, 0\nL1_s2:")
    p.loop_begin(2)
    load("KV")
    for ks in range(8): I(k_read(ks, KS[0]))
    for ks in range(8):
        for t in range(3): I(s_mfma(S[0], t, ks))
    for j in range(8):
        I(v_read(j, 0, VS[0])); I(v_read(j, 1, VS[0]))
    for e in range(49):
        for x in sm_ops(S[0], e): I(x)
    for j in range(8):
        for t in range(3): I(pv_mfma(S[0], j, t))
    I("s_barrier\ns_add_u32 s60, s60, 8192\ns_cmp_lt_u32 s60, 131072\ns_cbranch_scc1 L1_s2")
    p.loop_end()
    for x in fin_ops(): I(x)
    for sig in range(NWPRE):
        for pre, d in wo_tile(sig):
            for x in pre: I(x)
            p.add(d)
    for x in win_regs(): I(x)
    for x in norm_unit(0, True, (64, 96)): em(p, x)
    I("s_waitcnt vmcnt(0)\ns_barrier")
    for k in range(RD):
        I(a_rd(k, 0)); I(a_rd(k, 1))
    I("s_waitcnt lgkmcnt(0)\ns_nop 15\ns_branch L1_norm")
    return p

def gen_red():
    p = Prog(); I = p.I
    I("s_cmp_ge_u32 s2, 768\ns_cbranch_scc1 L2_end")
    I("s_load_dwordx2 s[14:15], s[0:1], 40\ns_load_dwordx2 s[18:19], s[0:1], 56")
    stamp(p, 0)
    I(f"""
v_lshrrev_b32 v1, 6, v0
v_and_b32 v0, 63, v0
v_readfirstlane_b32 s3, v1
v_lshrrev_b32 v2, 3, v0
v_and_b32 v3, 7, v0
v_lshlrev_b32 v4, 9, v2
v_lshl_add_u32 v4, v3, 4, v4
v_lshlrev_b32 v5, 4, v2
v_lshl_add_u32 v5, v3, 10, v5
s_lshl_b32 s4, s2, 2
s_add_u32 s4, s4, s3
s_lshr_b32 s5, s4, 5
s_bfe_u32 s6, s4, 0x20003
s_and_b32 s7, s4, 7
s_lshl_b32 s8, s5, 15
s_lshl_b32 s9, s7, 12
s_add_u32 s9, s9, s8
s_lshl_b32 s10, s6, 7
s_add_u32 s9, s9, s10
s_lshl_b32 s10, s6, 13
s_add_u32 s8, s8, s10
s_lshl_b32 s10, s7, 7
s_add_u32 s8, s8, s10
s_waitcnt lgkmcnt(0)
s_add_u32 s20, s18, {P_WS_OFF}
s_addc_u32 s21, s19, 0
s_and_b32 s21, s21, 0xffff
s_mov_b32 s22, {P_BYTES}
s_mov_b32 s23, 0x00020000
""")
    for g in range(4):
        I(f"buffer_load_dwordx4 v[{8+4*g}:{11+4*g}], v4, s[20:23], s9 offen {OPT['rld']}")
        if g < 3: I(f"s_add_u32 s9, s9, {16*192*1024}")
    srd(p, 24, 14, 15, 16 * 192 * 1024)
    for d in range(4):
        for g in range(4):
            r = 8 + 4 * g + d
            I(f"v_lshlrev_b32 v{24+2*g}, 16, v{r}\nv_and_b32 v{25+2*g}, 0xffff0000, v{r}")
        I(f"v_pk_add_f32 v[24:25], v[24:25], v[26:27]\nv_pk_add_f32 v[28:29], v[28:29], v[30:31]\nv_pk_add_f32 v[24:25], v[24:25], v[28:29]")
        I(f"v_cvt_pk_bf16_f32 v{32+d}, v24, v25")
    I("buffer_store_dwordx4 v[32:35], v5, s[24:27], s8 offen")
    if OPT['stamp']:
        I("s_waitcnt vmcnt(0)")
        stamp(p, 1)
        I("s_cmp_ge_u32 s2, 256\ns_cbranch_scc1 L2_end\ns_mul_i32 s2, s2, 1")
        stamp_out(p, 2, 0x20000)
    I("L2_end:\ns_endpgm")
    return p

def kd(name, vg, acc, sg=102):
    return f""".p2align 6
.amdhsa_kernel {name}
  .amdhsa_next_free_vgpr {vg}
  .amdhsa_next_free_sgpr {sg}
  .amdhsa_accum_offset {acc}
  .amdhsa_group_segment_fixed_size 0
  .amdhsa_kernarg_size 64
  .amdhsa_user_sgpr_count 2
  .amdhsa_user_sgpr_kernarg_segment_ptr 1
  .amdhsa_system_sgpr_workgroup_id_x 1
  .amdhsa_float_denorm_mode_32 3
.end_amdhsa_kernel
"""

def main():
    k1 = gen_k1(); k1.resolve(); t1, s1 = k1.emit()
    ks = gen_slow(); ks.resolve(); ts, _ = ks.emit(); t1 += ts
    sys.stderr.write(f"k1 {s1}\n")
    hdr = open('cdna_kernels/' + NAME + '.s.ref').read().split('\n')
    top = [l for l in hdr if l.startswith(';') and '@launch' not in l]
    out = '\n'.join(top) + f"""
; @launch grid=(256,1,1) block=(256,1,1) lds=163840
.amdgcn_target "amdgcn-amd-amdhsa--gfx950"
.text
.globl {NAME}_kernel
.p2align 8
.type {NAME}_kernel,@function
{NAME}_kernel:
{t1}
.section .rodata,"a"
{kd(NAME + '_kernel', 512, 256)}"""
    open(sys.argv[1], 'w').write(out)
main()
```
